```python
import torch

def _softmax(x, axis=-1):
    return torch.softmax(x, dim=axis)
def _gelu(x):
    return torch.nn.functional.gelu(x, approximate="tanh")
def _silu(x):
    return torch.nn.functional.silu(x)
def _sigmoid(x):
    return torch.sigmoid(x)
def _layernorm(x, axis=-1, eps=1e-5):
    m = x.mean(dim=axis, keepdim=True)
    v = x.var(dim=axis, keepdim=True, unbiased=False)
    return (x - m) / torch.sqrt(v + eps)
def _scatter_add(tgt, idx, src, axis=0):
    return tgt.clone().index_add_(axis, idx, src)
def _segment_sum(src, seg, n):
    out = torch.zeros((n,) + src.shape[1:], dtype=src.dtype)
    return out.index_add_(0, seg, src)
def _pad(x, pw):
    flat = tuple(v for pair in reversed(pw) for v in pair)
    return torch.nn.functional.pad(x, flat)

kernel_name = 'interleave_layers__ssm_conv_h3__glu_gated_reglu__prompt'

def setup_inputs():

    _w = (lambda a: (lambda t: t.to(torch.bfloat16) if t.is_floating_point() else t)(torch.as_tensor(a)))
    def _A_setup():
        B, S, D = 1, 2048, 512
        ks = 4
        return {
            "q": _w((lambda *s: torch.randn(*s, dtype=torch.bfloat16) * 0.05)(B, S, D)),
            "k": _w((lambda *s: torch.randn(*s, dtype=torch.bfloat16) * 0.4)(B, S, D)),
            "v": _w((lambda *s: torch.randn(*s, dtype=torch.bfloat16) * 0.4)(B, S, D)),
            "shift_k": _w((lambda *s: torch.randn(*s, dtype=torch.bfloat16) * 0.4)(D, ks) * 0.5),
            "ssm_k": _w((lambda *s: torch.randn(*s, dtype=torch.bfloat16) * 0.4)(D, S) * (1.0 / S ** 0.5)),
            "ssm_D": _w((lambda *s: torch.randn(*s, dtype=torch.bfloat16) * 0.4)(D)),
        }
    _A_in = _A_setup()

    def _B_setup():
        B, S, D, F = 1, 2048, 512, 1376
        return {
            "x": _w((lambda *s: torch.randn(*s, dtype=torch.bfloat16) * 0.05)(B, S, D)),
            "W_gate": _w((lambda *s: torch.randn(*s, dtype=torch.bfloat16) * 0.8)(D, F) * (2.0 / D) ** 0.5),
            "W_up": _w((lambda *s: torch.randn(*s, dtype=torch.bfloat16) * 0.8)(D, F) * (2.0 / D) ** 0.5),
            "W_down": _w((lambda *s: torch.randn(*s, dtype=torch.bfloat16) * 0.8)(F, D) * (1.0 / F) ** 0.5),
        }
    _B_in = _B_setup()

    return {
        "A_q": _A_in["q"],
        "A_k": _A_in["k"],
        "A_v": _A_in["v"],
        "A_shift_k": _A_in["shift_k"],
        "A_ssm_k": _A_in["ssm_k"],
        "A_ssm_D": _A_in["ssm_D"],
        "B_x": _B_in["x"],
        "B_W_gate": _B_in["W_gate"],
        "B_W_up": _B_in["W_up"],
        "B_W_down": _B_in["W_down"],
    }

def reference(A_q, A_k, A_v, A_shift_k, A_ssm_k, A_ssm_D, B_x, B_W_gate, B_W_up, B_W_down):
    def _A_ref(q, k, v, shift_k, ssm_k, ssm_D):
        B, S, D = q.shape
        ks = shift_k.shape[-1]
        k_pad = _pad(k, ((0, 0), (ks - 1, 0), (0, 0)))
        k_shift = torch.zeros_like(k)
        for t in range(ks):
            k_shift = k_shift + k_pad[:, t:t + S, :] * shift_k[:, ks - 1 - t][None, None, :]
        kv = k_shift * v
        L = 2 * S
        kv_pad = _pad(kv, ((0, 0), (0, S), (0, 0)))
        kf_pad = _pad(ssm_k, ((0, 0), (0, S)))
        kv_f = (lambda x, axes=(-2,-1): torch.fft.rfft2(x.float(), dim=axes))(kv_pad[:, None, :, :], axes=(1, 2))
        kf_f = (lambda x, axes=(-2,-1): torch.fft.rfft2(x.float(), dim=axes))(kf_pad[:, None, :], axes=(1, 2))
        kf_f = (lambda x, *d: x.permute(*d))(kf_f, 1, 2, 0)
        y_f = kv_f * kf_f[None, :, :, :]
        y = (lambda x, s, axes=(-2,-1): torch.fft.irfft2(x, s=s, dim=axes).to(torch.bfloat16))(y_f, (1, L), axes=(1, 2))[:, 0, :S, :]
        y = y + kv * ssm_D[None, None, :]
        return q * y

    def _B_ref(x, W_gate, W_up, W_down):
        gate = torch.einsum("bsd,df->bsf", x, W_gate)
        up = torch.einsum("bsd,df->bsf", x, W_up)
        gate = gate * (lambda x, dt: x.to(dt))(gate > 0, gate.dtype)
        h = gate * up
        return torch.einsum("bsf,fd->bsd", h, W_down)

    x = A_q
    x = x + _A_ref(_layernorm(x, axis=-1), A_k, A_v, A_shift_k, A_ssm_k, A_ssm_D)
    x = x + _B_ref(_layernorm(x, axis=-1), B_W_gate, B_W_up, B_W_down)
    x = x + _A_ref(_layernorm(x, axis=-1), A_k, A_v, A_shift_k, A_ssm_k, A_ssm_D)
    x = x + _B_ref(_layernorm(x, axis=-1), B_W_gate, B_W_up, B_W_down)
    return x
```

```python
import sys
sys.path.insert(0, "tools")
from pg import weave
from gen import *

WS = srd(SRD_WS)
vXT = 3
vVF = 6
vWG = 9
vWT = 13
vH2, vH1, vSG = 24, 25, 26
vHA, vHB = 27, 47
vONE = 28
vCS = 32
vEP, vSTW, vSTR = 44, 45, 46
vXR = 48
vY = 56
vR2 = 64
RING = 72
def ACC(g): return 72 + 12 * g if g < 6 else 160 + 12 * (g - 6)
vVER = 144
XF = 184
vTM = 208
vSTAT = 212
vPOI = 216
vVA = 220
AP = (224, 160)
WF = 192
sXB, sHF, sSG, sWD, sM0X, sM0W = 8, 9, 10, 11, 12, 13
sHL = 72
GID = [0, 1, 2, 3, 4, 5, 8, 0]
WID = {4: 6, 5: 7, 6: 1, 7: 2, 8: 3, 9: 4, 10: 5}

def lds(base_regs, addr):
    return base_regs + addr // 65536, addr % 65536

def x_dma(g, L):
    o = [f"s_add_u32 m0, s{sM0X}, {GID[g]*16384}", f"s_add_u32 s{sT+12}, s{sXB}, {g*16384}"]
    for i in range(4): o.append(f"buffer_load_dwordx4 v{vVF}, {WS}, s{sT+12} offen offset:{1024*i} sc1 lds @x{L}_{g}")
    return o

def x_verify_ops(g):
    rd = []
    for i in range(4):
        r, im = lds(vVF, GID[g]*16384 + 1024*i)
        rd.append(f"ds_read_b128 v[{vVER+4*i}:{vVER+4*i+3}], v{r} offset:{im}")
    ck = [f"v_max3_u32 v{vVA}, v{vVER}, v{vVER+1}, v{vVER+2}"]
    k = 3
    while k < 15:
        ck.append(f"v_max3_u32 v{vVA}, v{vVA}, v{vVER+k}, v{vVER+k+1}"); k += 2
    ck.append(f"v_max_u32 v{vVA}, v{vVA}, v{vVER+15}")
    ck.append(f"v_cmp_eq_u32 vcc, -1, v{vVA}")
    return rd, ck

def x_verify(G, g, L, also=()):
    rd, ck = x_verify_ops(g)
    rl = []
    for gg in (g,) + tuple(also): rl += [l.split(" @")[0] for l in x_dma(gg, L)]
    lf, lb = G.add_fix(rl + ["s_waitcnt vmcnt(0)"] + rd, ck)
    return [f"@wv x{L}_{g}"] + rd + ck + [f"s_cbranch_vccnz {lf}", lb + ":"]

def wd_dma(k, slot, tag):
    o = [f"s_add_u32 m0, s{sM0X}, {slot*16384}", f"s_add_u32 s{sT+13}, s{sWD}, {k*32768}"]
    for b in range(4): o.append(f"buffer_load_dwordx4 v{vWG+b}, {srd(SRD_WD)}, s{sT+13} offen offset:{1024*b} lds @{tag}")
    return o

def wd_tr(slot, dst, agpr):
    o = []
    for cs in range(4):
        for t in range(2):
            a = slot*16384 + t*2048
            r = vWT + 4*(a // 65536) + cs
            d = (ar if agpr else vr)(dst + 4*cs + 2*t, 2)
            o.append(f"ds_read_b64_tr_b16 {d}, v{r} offset:{a % 65536}")
    return o

def x_tr(n):
    g, kk = n // 16, n % 16
    o = []
    for t in range(2):
        r, im = lds(vXT, GID[g]*16384 + kk*1024 + t*512)
        o.append(f"ds_read_b64_tr_b16 {vr(XF + 4*(n % 6) + 2*t, 2)}, v{r} offset:{im}")
    return o

def setup(G):
    p = G.p
    p(f"""v_bfe_u32 v21, v0, 2, 4
v_lshlrev_b32 v{vXT}, 5, v21
v_and_b32 v22, 3, v0
v_lshl_add_u32 v{vXT}, v22, 3, v{vXT}
v_add_u32 v{vXT+1}, 0x10000, v{vXT}
v_add_u32 v{vXT+2}, 0x20000, v{vXT}
v_add_u32 v{vVF+1}, 0x10000, v{vVF}
v_add_u32 v{vVF+2}, 0x20000, v{vVF}""")
    p(f"""v_bfe_u32 v21, v0, 5, 1
v_bfe_u32 v22, v0, 3, 2
v_lshl_add_u32 v21, v21, 3, v22
v_lshlrev_b32 v21, 10, v21
v_bfe_u32 v22, v0, 1, 2
v_bfe_u32 v23, v0, 4, 2
v_xor_b32 v22, v22, v23
v_lshl_add_u32 v21, v22, 5, v21
v_and_b32 v22, 1, v0
v_lshl_add_u32 v21, v22, 4, v21
s_lshl_b32 s{sT+2}, s{sCT}, 7
v_add_u32 v{vWG}, s{sT+2}, v21
v_add_u32 v{vWG+1}, 15360, v{vWG}
v_add_u32 v{vWG+2}, 2048, v{vWG}
v_add_u32 v{vWG+3}, 17408, v{vWG}
s_mul_i32 s{sWD}, s{sW}, {11*32768}""")
    p(f"""v_bfe_u32 v21, v0, 2, 3
v_lshlrev_b32 v22, 7, v21
v_bfe_u32 v23, v0, 5, 1
v_lshl_add_u32 v22, v23, 10, v22
v_and_b32 v23, 3, v0
v_lshl_add_u32 v22, v23, 3, v22
v_lshl_add_u32 v22, v2, 12, v22
v_lshrrev_b32 v21, 1, v21
v_and_b32 v23, 1, v2
v_lshlrev_b32 v23, 1, v23
v_xor_b32 v21, v21, v23""")
    for cs in range(4):
        p(f"v_xor_b32 v23, {cs}, v21\nv_lshl_add_u32 v{vWT+cs}, v23, 5, v22\nv_add_u32 v{vWT+4+cs}, 0x10000, v{vWT+cs}")
    p(f"""v_and_b32 v21, 15, v0
v_lshlrev_b32 v{vSG}, 3, v21
v_lshlrev_b32 v21, 4, v21
v_bfe_u32 v22, v0, 4, 1
v_bfe_u32 v23, v0, 5, 1
v_lshl_add_u32 v{vH2}, v22, 3, v21
v_lshl_add_u32 v{vH2}, v23, 8, v{vH2}
v_lshl_add_u32 v{vH2}, v2, 9, v{vH2}
v_lshl_add_u32 v{vH1}, v22, 3, v21
v_lshl_add_u32 v{vH1}, v23, 2, v{vH1}
v_lshl_add_u32 v{vH1}, v2, 8, v{vH1}
v_add_u32 v{vH1}, 2048, v{vH1}""")
    p(f"""v_lshlrev_b32 v21, 4, v1
v_mul_u32_u24 v22, 11264, v2
v_add_u32 v21, v21, v22
v_lshrrev_b32 v22, 1, v2
v_mul_u32_u24 v23, {2*HF_PITCH}, v22
v_add_u32 v{vHA}, v21, v23
v_xor_b32 v22, 1, v22
v_mul_u32_u24 v23, {2*HF_PITCH}, v22
v_add_u32 v{vHB}, v21, v23""")
    p(f"""v_lshrrev_b32 v22, 1, v2
v_lshlrev_b32 v{vEP}, 15, v22
v_and_b32 v21, 15, v0
v_and_b32 v23, 1, v2
v_lshl_add_u32 v21, v23, 5, v21
v_lshl_add_u32 v{vEP}, v21, 5, v{vEP}
v_bfe_u32 v21, v0, 4, 2
v_lshl_add_u32 v{vEP}, v21, 3, v{vEP}
s_lshl_b32 s{sT+2}, s{sCT}, 11
v_add_u32 v{vEP}, s{sT+2}, v{vEP}""")
    p(f"""v_lshlrev_b32 v22, 12, v22
v_lshl_add_u32 v22, v21, 5, v22
v_and_b32 v21, 15, v0
v_lshl_add_u32 v{vSTR}, v21, 7, v22
v_lshl_add_u32 v22, v23, 7, v22
v_and_b32 v21, 1, v0
v_lshl_add_u32 v22, v21, 4, v22
s_lshl_b32 s{sT+2}, s{sCT}, 8
v_add_u32 v{vSTW}, s{sT+2}, v22""")
    for i in range(4): p(f"v_mov_b32 v{vPOI+i}, -1")

def layer_scalars(G, L):
    p = G.p
    xb = WS_X1B if L == 0 else WS_X3B
    p(f"""s_lshl_b32 s{sXB}, s{sR0}, 14
s_add_u32 s{sXB}, s{sXB}, 0x{xb:x}
s_mul_i32 s{sHF}, s{sR0}, {HF_PITCH}
s_add_u32 s{sHF}, s{sHF}, 0x{WS_HF[L]:x}
s_lshl_b32 s{sSG}, s{sR0}, 7
s_add_u32 s{sSG}, s{sSG}, 0x{WS_SG[L]:x}
s_lshl_b32 s{sM0X}, s{sW}, 12""")

def poison_l2():
    o = [f"v_lshlrev_b32 v21, 4, v1", f"v_mul_u32_u24 v22, {2*HF_PITCH}, v2", "v_add_u32 v22, v21, v22",
         f"s_mul_i32 s{sT+2}, s{sC}, 3072", f"s_add_u32 s{sT+2}, s{sT+2}, s{sHF}", f"s_add_u32 s{sT+2}, s{sT+2}, 0x{WS_HF[1]-WS_HF[0]:x}"]
    for r in range(2):
        for i in range(3): o.append(f"buffer_store_dwordx4 v[{vPOI}:{vPOI+3}], v22, {WS}, s{sT+2} offen offset:{1024*i} sc1 @poi")
        o.append(f"s_add_u32 s{sT+2}, s{sT+2}, {HF_PITCH}")
    o += [f"s_lshl_b32 s{sT+2}, s{sW}, 1", f"s_add_u32 s{sT+2}, s{sT+2}, s{sHB}", f"s_add_u32 s{sT+2}, s{sT+2}, s{sR0}",
          f"s_lshl_b32 s{sT+3}, s{sT+2}, 14", f"s_lshl_b32 s{sT+4}, s{sCT}, 11", f"s_add_u32 s{sT+3}, s{sT+3}, s{sT+4}", f"s_add_u32 s{sT+3}, s{sT+3}, 0x{WS_X3B:x}"]
    for i in range(2): o.append(f"buffer_store_dwordx4 v[{vPOI}:{vPOI+3}], v21, {WS}, s{sT+3} offen offset:{1024*i} sc1 @poi")
    o += [f"s_lshl_b32 s{sT+3}, s{sT+2}, 11", f"s_lshl_b32 s{sT+4}, s{sCT}, 8", f"s_add_u32 s{sT+3}, s{sT+3}, s{sT+4}", f"s_add_u32 s{sT+3}, s{sT+3}, 0x{WS_ST:x}",
          "v_lshlrev_b32 v21, 2, v1", f"buffer_store_dword v{vPOI}, v21, {WS}, s{sT+3} offen sc1 @poi",
          "v_lshlrev_b32 v21, 2, v0", f"s_add_u32 s{sT+3}, s{sSG}, 0x{WS_SG[1]-WS_SG[0]:x}", f"buffer_store_dword v{vPOI}, v21, {WS}, s{sT+3} offen sc1 @poi"]
    return o

def stat_ld(g):
    r = vSTAT + 2*(g % 2)
    return [f"buffer_load_dwordx2 v[{r}:{r+1}], v{vSG}, {WS}, s{sSG} offen offset:{128*g} sc1"]

def epi(G, g, L):
    a = ACC(g); r = vSTAT + 2*(g % 2)
    ck = [f"v_max_u32 v{vTM+3}, v{r}, v{r+1}", f"v_cmp_eq_u32 vcc, -1, v{vTM+3}"]
    lf, lb = G.add_fix(stat_ld(g), ck)
    o = ck + [f"s_cbranch_vccnz {lf}", lb + ":"]
    for t in (2, 0, 1):
        for i in range(4): o.append(f"v_fma_f32 v{a+4*t+i}, -v{r}, v{vCS+4*t+i}, v{a+4*t+i}")
    m = a + 8
    o += [f"v_permlane32_swap_b32 v{m}, v{m+2}", f"v_permlane32_swap_b32 v{m+1}, v{m+3}"]
    for i in range(4): o.append(f"v_max_f32 v{a+i}, 0, v{a+i}")
    for i in range(4): o.append(f"v_mul_f32 v{a+i}, v{a+i}, v{a+4+i}")
    o += [f"v_cvt_pk_bf16_f32 v{vTM}, v{a}, v{a+1}", f"v_cvt_pk_bf16_f32 v{vTM+1}, v{a+2}, v{a+3}",
          f"s_add_u32 s{sT+14}, s{sT+15}, {g*HF_PITCH}",
          f"buffer_store_dwordx2 v[{vTM}:{vTM+1}], v{vH2}, {WS}, s{sT+14} offen sc1"]
    o += [f"v_max_f32 v{m}, 0, v{m}", f"v_max_f32 v{m+1}, 0, v{m+1}", f"v_mul_f32 v{m}, v{m}, v{m+2}", f"v_mul_f32 v{m+1}, v{m+1}, v{m+3}",
          f"v_cvt_pk_bf16_f32 v{vTM+2}, v{m}, v{m+1}", f"buffer_store_dword v{vTM+2}, v{vH1}, {WS}, s{sT+14} offen sc1"]
    return o

EPI_AT = {3: [0], 4: [1, 2], 5: [3], 6: [4, 5], 7: [6]}

def side_dma(L, g):
    pre = []; post = []
    if L == 0:
        if g == 0: pre += wd_dma(0, 6, "wa") + wd_dma(1, 7, "wa")
        if g == 2: pre += ["@wv wa"] + wd_tr(6, 192, True) + wd_tr(7, 208, True); post += ["s_waitcnt lgkmcnt(0)"] + wd_dma(2, 6, "wb") + wd_dma(3, 7, "wb")
        if g == 4: pre += ["@wv wb"] + wd_tr(6, 224, True) + wd_tr(7, 240, True); post += ["s_waitcnt lgkmcnt(0)"] + wd_dma(4, 6, "wd") + wd_dma(5, 7, "wd")
        if g == 1: pre += poison_l2()
    else:
        if g == 0: pre += wd_dma(4, 6, "wd") + wd_dma(5, 7, "wd")
    if g == 1: post += x_dma(7, L)
    if 2 <= g <= 6: post += wd_dma(4 + g, g - 1, "wd")
    return pre, post

def gemm1_normal(G, L):
    p = G.p
    p(f"s_mul_i32 s{sT+15}, s{sC}, 3072\ns_add_u32 s{sT+15}, s{sT+15}, s{sHF}")
    for n in range(4):
        for l in x_tr(n): p(l)
    for g in range(8):
        mf = []
        for kk in range(16):
            n = 16*g + kk
            for t in range(3):
                mf.append(mfma(ACC(g) + 4*t, ar(64*t + 4*kk, 4), vr(XF + 4*(n % 6), 4), "0" if kk == 0 else None))
        s0 = []
        for kk in range(16):
            n = 16*g + kk + 4
            if n < 128:
                a, b = x_tr(n); s0 += [(3*kk, a), (3*kk + 1, b)]
        pre, post = side_dma(L, g)
        s1 = []
        if g < 7: s1 += [(2 if g else 8, t) for t in x_verify(G, g + 1, L)]
        s1 += [(24, "s_barrier")] if g < 7 else []
        s1 += [(25, t) for t in post]
        s2 = []
        eps = EPI_AT.get(g, [])
        for i, e in enumerate(eps):
            s2 += [(24 if (g == 3) else (1 if i == 0 else 20), t) for t in epi(G, e, L)]
            nxt = e + 2
            if nxt < 8: s2 += [(0, t) for t in stat_ld(nxt)]
        if g == 2: s2 += [(30, t) for t in stat_ld(0) + stat_ld(1)]
        s3 = [(0, t) for t in pre]
        if g in (2, 4) and L == 0:
            s1 = [(2, t) for t in pre] + s1; s3 = []
        out = weave(mf, [s0, s1, s2, s3])
        if g < 7:
            assert out.index("s_barrier") < out.index(x_tr(16*g + 16)[0]), g
        for l in out: p(l)
    for l in epi(G, 7, L): p(l)

def gemm1_stats(G, L):
    p = G.p
    B = 72
    SQ, SM, FR = 80, 84, 96
    p(f"""v_lshl_add_u32 v{B}, v2, 12, v{vXT}
v_add_u32 v{B+1}, 0x10000, v{B}
v_add_u32 v{B+2}, 0x20000, v{B}
v_and_b32 v21, 3, v0
v_cmp_eq_u32 s[{sM}:{sM+1}], 1, v21
v_cmp_eq_u32 s[{sM+2}:{sM+3}], 2, v21
v_cmp_eq_u32 s[{sM+4}:{sM+5}], 3, v21
v_bfe_u32 v21, v0, 2, 2
v_bfe_u32 v22, v0, 4, 2
v_cmp_eq_u32 s[{sM+6}:{sM+7}], v21, v22
v_and_b32 v21, 15, v0
v_lshlrev_b32 v75, 3, v21
v_add_u32 v75, {L_MISC}, v75
v_lshl_add_u32 v76, v2, 7, v75""")
    for i in range(4): p(f"v_mov_b32 v{vONE+i}, 0x3f803f80")
    for g in range(8):
        pre, post = side_dma(L, g)
        for k in range(4):
            for t in range(2):
                r, im = lds(B, GID[g]*16384 + k*1024 + t*512)
                p(f"ds_read_b64_tr_b16 {vr(FR + 4*k + 2*t, 2)}, v{r} offset:{im}")
        for k in range(4):
            p(mfma(SQ, vr(FR + 4*k, 4), vr(FR + 4*k, 4), "0" if k == 0 else None))
            p(mfma(SM, vr(vONE, 4), vr(FR + 4*k, 4), "0" if k == 0 else None))
        p(f"""v_cndmask_b32 v88, v{SQ}, v{SQ+1}, s[{sM}:{sM+1}]
v_cndmask_b32 v88, v88, v{SQ+2}, s[{sM+2}:{sM+3}]
v_cndmask_b32 v89, v88, v{SQ+3}, s[{sM+4}:{sM+5}]
v_mov_b32 v88, v{SM}
s_mov_b64 exec, s[{sM+6}:{sM+7}]
ds_write_b64 v76, v[88:89] offset:{512*(g%2)}
s_mov_b64 exec, -1""")
        if g < 7:
            for l in x_verify(G, g + 1, L): p(l)
        p("s_waitcnt lgkmcnt(0)\ns_barrier")
        for w in range(4): p(f"ds_read_b64 v[{112+2*w}:{113+2*w}], v75 offset:{512*(g%2) + 128*w}")
        p(f"""v_add_f32 v112, v112, v114
v_add_f32 v113, v113, v115
v_add_f32 v116, v116, v118
v_add_f32 v117, v117, v119
v_add_f32 v112, v112, v116
v_add_f32 v113, v113, v117
v_mul_f32 v112, 0x3b000000, v112
v_mul_f32 v113, 0x3b000000, v113
v_fma_f32 v113, -v112, v112, v113
v_max_f32 v113, 0, v113
v_add_f32 v113, 0x3727c5ac, v113
v_rcp_f32 v113, v113
s_mov_b64 exec, 0xffff
s_nop 0
buffer_store_dwordx2 v[112:113], v{vSG}, {WS}, s{sSG} offen offset:{128*g} sc1
s_mov_b64 exec, -1""")
        for l in pre + post: p(l)
    p("s_waitcnt vmcnt(0) lgkmcnt(0)")

def h_ld(P, k, rs):
    e = RING + 8*k + 4*rs
    return f"buffer_load_dwordx4 v[{e}:{e+3}], v{vHA if rs == 0 else vHB}, {WS}, s{sHL + 3*P + k//4} offen offset:{1024*(k%4)} sc1"

def h_verify(G, P, k):
    e = RING + 8*k
    ck = [f"v_max3_u32 v23, v{e}, v{e+1}, v{e+2}", f"v_max3_u32 v23, v23, v{e+3}, v{e+4}",
          f"v_max3_u32 v23, v23, v{e+5}, v{e+6}", f"v_max_u32 v23, v23, v{e+7}", f"v_cmp_eq_u32 vcc, -1, v23"]
    lf, lb = G.add_fix([h_ld(P, k, 0), h_ld(P, k, 1)], ck)
    return ck + [f"s_cbranch_vccnz {lf}", lb + ":"]

def red_imm(P, j):
    if P == 0: return (131072 + 1024*j) if j < 4 else 1024*(j - 4)
    return 16384 + 1024*j if j < 4 else 32768 + 1024*(j - 4)

def red_writes(P):
    o = []
    for rel in (1, 2, 3):
        for tl in range(2):
            j = 2*(rel - 1) + tl
            a = AP[P] + 16*(rel >> 1) + 4*(2*(rel & 1) + tl)
            r, im = lds(vVF, red_imm(P, j))
            o.append(f"ds_write_b128 v{r}, v[{a}:{a+3}] offset:{im}")
    return o

def gemm2(G, L):
    p = G.p
    vVA2 = 23
    p(f"s_mul_i32 s{sT+2}, s{sHB}, {HF_PITCH}\ns_add_u32 s{sHL}, s{sHF}, s{sT+2}")
    p(f"s_add_u32 s{sHL+1}, s{sHL}, 4096\ns_add_u32 s{sHL+2}, s{sHL}, 8192")
    for i in range(3): p(f"s_add_u32 s{sHL+3+i}, s{sHL+i}, {4*HF_PITCH}")
    for k in range(11):
        p(h_ld(0, k, 0)); p(h_ld(0, k, 1))
    p("s_barrier")
    G.stamp(f"g1end{L}")
    side = [f"s_lshl_b32 s{sT+2}, s{sHB}, 7", f"s_add_u32 s{sT+2}, s{sT+2}, s{sSG}", f"v_bfe_u32 v21, v0, 4, 2", "v_lshlrev_b32 v21, 5, v21",
            "v_lshrrev_b32 v22, 1, v2", "v_lshl_add_u32 v21, v22, 8, v21"]
    y_ld = []
    if L == 0:
        side += [f"s_lshl_b32 s{sT+3}, s{sHB}, 14", f"s_add_u32 s{sT+3}, s{sT+3}, s{sXB}", f"s_add_u32 s{sT+4}, s{sT+3}, {4*16384}",
                 f"s_add_u32 s{sT+5}, s{sT+3}, 0x{WS_YB-WS_X1B:x}", f"s_add_u32 s{sT+6}, s{sT+4}, 0x{WS_YB-WS_X1B:x}"]
        for P in range(2):
            for tl in range(2):
                side.append(f"buffer_load_dwordx2 v[{vXR+4*P+2*tl}:{vXR+4*P+2*tl+1}], v{vEP}, {WS}, s{sT+3+P} offen offset:{512*tl} sc1")
                y_ld.append(f"buffer_load_dwordx2 v[{vY+4*P+2*tl}:{vY+4*P+2*tl+1}], v{vEP}, {WS}, s{sT+5+P} offen offset:{512*tl} sc1")
    for P in range(2):
        for l in h_verify(G, P, 0): p(l)
        if P == 0: p("@wv wd")
        for k in range(11):
            mf = []
            for cs in range(4):
                for rs in range(2):
                    w = ar(192 + 16*k + 4*cs, 4) if k < 4 else vr(WF + 16*(k % 2) + 4*cs, 4)
                    mf.append(mfma(AP[P] + 16*rs + 4*cs, vr(RING + 8*k + 4*rs, 4), w, "0" if k == 0 else None))
            s0 = [(i // 2, t) for i, t in enumerate(wd_tr(WID[k + 1], WF + 16*((k + 1) % 2), False))] if 3 <= k < 10 else []
            s1 = [(3, t) for t in h_verify(G, P, k + 1)] if k < 10 else []
            s2 = []
            if P == 0:
                if k >= 1: s2.append((0, h_ld(1, k - 1, 0))); s2.append((0, h_ld(1, k - 1, 1)))
                if k == 1: s2 += [(2, t) for t in side]
            else:
                if k == 0: s2 += [(0, h_ld(1, 10, 0)), (0, h_ld(1, 10, 1))] + [(4, t) for t in y_ld]
                if k == 1: s2 += [(0, t) for t in red_writes(0)]
                if k == 2:
                    for PP in range(2):
                        for h in range(2):
                            s2.append((0, f"buffer_load_dwordx4 v[{RING+8*PP+4*h}:{RING+8*PP+4*h+3}], v21, {WS}, s{sT+2} offen offset:{512*PP + 16*h} sc1"))
            for l in weave(mf, [s0, s1, s2]): p(l)
    G.stamp(f"g2mm{L}")
    for PP in range(2):
        for i in range(4): p(f"v_mov_b32 v{vR2+4*PP+i}, v{RING+8*PP+2*i+1}")
    for l in red_writes(1): p(l)
    RA = 88
    p("v_lshlrev_b32 v21, 4, v1")
    for rel in (1, 2, 3):
        p(f"v_xor_b32 v22, {rel}, v2\nv_lshl_add_u32 v{RA+2*(rel-1)}, v22, 12, v21\nv_add_u32 v{RA+2*(rel-1)+1}, 0x20000, v{RA+2*(rel-1)}")
    p("s_waitcnt lgkmcnt(0)\ns_barrier")
    RD = 96
    for P in range(2):
        for rel in (1, 2, 3):
            for tl in range(2):
                j = 2*(rel - 1) + tl
                im = red_imm(P, j)
                r = RA + 2*(rel - 1) + (1 if im >= 131072 else 0)
                d = RD + 24*P + 4*j
                p(f"ds_read_b128 v[{d}:{d+3}], v{r} offset:{im % 131072}")
    X = 144
    for P in range(2):
        for tl in range(2):
            a = AP[P] + 4*tl; d = RD + 24*P + 4*tl; x = X + 8*P + 4*tl; xr = vXR + 4*P + 2*tl
            for i in range(4): p(f"v_add_f32 v{a+i}, v{a+i}, v{d+i}")
            for i in range(4): p(f"v_add_f32 v{d+8+i}, v{d+8+i}, v{d+16+i}")
            p(f"v_lshlrev_b32 v{x}, 16, v{xr}\nv_and_b32 v{x+1}, 0xffff0000, v{xr}\nv_lshlrev_b32 v{x+2}, 16, v{xr+1}\nv_and_b32 v{x+3}, 0xffff0000, v{xr+1}")
            for i in range(4): p(f"v_add_f32 v{a+i}, v{a+i}, v{d+8+i}")
            for i in range(4): p(f"v_fmac_f32 v{x+i}, v{a+i}, v{vR2+4*P+i}")
    if L == 1:
        O = 96
        p(f"""v_and_b32 v21, 15, v0
v_lshlrev_b32 v21, 5, v21
v_bfe_u32 v22, v0, 4, 2
v_lshl_add_u32 v21, v22, 3, v21
v_lshl_add_u32 v21, v2, 12, v21""")
        for P in range(2):
            for tl in range(2):
                x = X + 8*P + 4*tl; o = O + 4*P + 2*tl
                p(f"v_cvt_pk_bf16_f32 v{o}, v{x}, v{x+1}\nv_cvt_pk_bf16_f32 v{o+1}, v{x+2}, v{x+3}")
                p(f"ds_write_b64 v21, v[{o}:{o+1}] offset:{49152 + 1024*P + 512*tl}")
        p(f"""v_bfe_u32 v22, v0, 4, 2
v_lshlrev_b32 v23, 8, v22
v_bfe_u32 v21, v0, 2, 2
v_lshl_add_u32 v23, v21, 5, v23
v_and_b32 v21, 3, v0
v_lshl_add_u32 v23, v21, 3, v23
v_lshl_add_u32 v23, v2, 12, v23
v_and_b32 v21, 15, v0
v_lshrrev_b32 v{O+16}, 1, v2
v_lshl_add_u32 v21, v{O+16}, 5, v21
v_lshlrev_b32 v21, 10, v21
v_lshl_add_u32 v21, v22, 4, v21
v_and_b32 v{O+16}, 1, v2
v_lshl_add_u32 v21, v{O+16}, 6, v21
s_add_u32 s{sT+2}, s{sR0}, s{sHB}
s_lshl_b32 s{sT+2}, s{sT+2}, 14
s_lshl_b32 s{sT+3}, s{sCT}, 7
s_add_u32 s{sT+2}, s{sT+2}, s{sT+3}
s_add_u32 s{sT+3}, s{sT+2}, {4*16384}
s_waitcnt lgkmcnt(0)""")
        for P in range(2):
            for t in range(2):
                p(f"ds_read_b64_tr_b16 v[{O+8+4*P+2*t}:{O+8+4*P+2*t+1}], v23 offset:{49152 + 1024*P + 128*t}")
        for P in range(2):
            p(f"buffer_store_dwordx4 v[{O+8+4*P}:{O+8+4*P+3}], v21, {srd(SRD_O)}, s{sT+2+P} offen")
        return
    PK = 96; SUM = 104
    for P in range(2):
        for tl in range(2):
            x = X + 8*P + 4*tl; o = PK + 4*P + 2*tl
            p(f"v_cvt_pk_bf16_f32 v{o}, v{x}, v{x+1}\nv_cvt_pk_bf16_f32 v{o+1}, v{x+2}, v{x+3}")
            p(f"v_lshlrev_b32 v{x}, 16, v{o}\nv_and_b32 v{x+1}, 0xffff0000, v{o}\nv_lshlrev_b32 v{x+2}, 16, v{o+1}\nv_and_b32 v{x+3}, 0xffff0000, v{o+1}")
    for P in range(2):
        x = X + 8*P
        for i in range(4): p(f"v_add_f32 v{SUM+8*P+2*i}, v{x+i}, v{x+4+i}\nv_mul_f32 v{SUM+8*P+2*i+1}, v{x+i}, v{x+i}")
        for i in range(4): p(f"v_fmac_f32 v{SUM+8*P+2*i+1}, v{x+4+i}, v{x+4+i}")
    for sh in (1, 2, 4, 8):
        for i in range(16): p(f"v_add_f32 v{SUM+i}, v{SUM+i}, v{SUM+i} row_ror:{sh} row_mask:0xf bank_mask:0xf")
    p(f"""v_and_b32 v21, 1, v0
v_cmp_eq_u32 vcc, 1, v21
s_add_u32 s{sT+2}, s{sR0}, s{sHB}
s_lshl_b32 s{sT+2}, s{sT+2}, 11
s_add_u32 s{sT+2}, s{sT+2}, 0x{WS_ST:x}
s_add_u32 s{sT+3}, s{sT+2}, {4*2048}""")
    SO = 120
    for P in range(2):
        for i in range(4): p(f"v_cndmask_b32 v{SO+4*P+i}, v{SUM+8*P+i}, v{SUM+8*P+4+i}, vcc")
    p("s_mov_b32 exec_lo, 0x00030003\ns_mov_b32 exec_hi, 0x00030003")
    for P in range(2): p(f"buffer_store_dwordx4 v[{SO+4*P}:{SO+4*P+3}], v{vSTW}, {WS}, s{sT+2+P} offen sc1")
    p("s_mov_b64 exec, -1")
    G.stamp("stpub")
    ld = [f"buffer_load_dwordx4 v[{SUM+8*P+4*h}:{SUM+8*P+4*h+3}], v{vSTR}, {WS}, s{sT+2+P} offen offset:{16*h} sc1" for P in range(2) for h in range(2)]
    ck = [f"v_max3_u32 v{vVA}, v{SUM}, v{SUM+1}, v{SUM+2}"] + [f"v_max3_u32 v{vVA}, v{vVA}, v{SUM+k}, v{SUM+k+1}" for k in range(3, 15, 2)] + \
         [f"v_max_u32 v{vVA}, v{vVA}, v{SUM+15}", f"v_cmp_eq_u32 vcc, -1, v{vVA}"]
    lf, lb = G.add_fix(ld, ck)
    for l in ld: p(l)
    yck = [f"v_max3_u32 v{vVA}, v{vY}, v{vY+1}, v{vY+2}", f"v_max3_u32 v{vVA}, v{vVA}, v{vY+3}, v{vY+4}",
           f"v_max3_u32 v{vVA}, v{vVA}, v{vY+5}, v{vY+6}", f"v_max_u32 v{vVA}, v{vVA}, v{vY+7}", f"v_cmp_eq_u32 vcc, -1, v{vVA}"]
    lf2, lb2 = G.add_fix(y_ld, yck)
    for l in yck: p(l)
    p(f"s_cbranch_vccnz {lf2}\n{lb2}:")
    YU = 128
    for k in range(8): p(f"v_lshlrev_b32 v{YU+2*k}, 16, v{vY+k}\nv_and_b32 v{YU+2*k+1}, 0xffff0000, v{vY+k}")
    for l in ck: p(l)
    p(f"s_cbranch_vccnz {lf}\n{lb}:")
    for sh in (1, 2, 4, 8):
        for i in range(16): p(f"v_add_f32 v{SUM+i}, v{SUM+i}, v{SUM+i} row_ror:{sh} row_mask:0xf bank_mask:0xf")
    p(f"s_mov_b32 s{sT+2}, 0x3b000000\ns_mov_b32 s{sT+3}, 0x3727c5ac")
    for i in range(8): p(f"v_mul_f32 v{SUM+2*i}, s{sT+2}, v{SUM+2*i}\nv_mul_f32 v{SUM+2*i+1}, s{sT+2}, v{SUM+2*i+1}")
    for i in range(8): p(f"v_fma_f32 v{SUM+2*i+1}, -v{SUM+2*i}, v{SUM+2*i}, v{SUM+2*i+1}")
    for i in range(8): p(f"v_max_f32 v{SUM+2*i+1}, 0, v{SUM+2*i+1}")
    for i in range(8): p(f"v_add_f32 v{SUM+2*i+1}, s{sT+3}, v{SUM+2*i+1}")
    for i in range(8): p(f"v_rsq_f32 v{SUM+2*i+1}, v{SUM+2*i+1}")
    for i in range(8): p(f"v_mul_f32 v{SUM+2*i}, v{SUM+2*i}, v{SUM+2*i+1}")
    p(f"s_add_u32 s{sT+2}, s{sR0}, s{sHB}\ns_lshl_b32 s{sT+2}, s{sT+2}, 14\ns_add_u32 s{sT+2}, s{sT+2}, 0x{WS_X3B:x}\ns_add_u32 s{sT+3}, s{sT+2}, {4*16384}")
    TT = 96
    for P in range(2):
        for tl in range(2):
            x = X + 8*P + 4*tl; y = YU + 8*P + 4*tl; o = vXR + 4*P + 2*tl
            for i in range(4): p(f"v_fma_f32 v{TT+i}, v{x+i}, v{SUM+8*P+2*i+1}, -v{SUM+8*P+2*i}")
            for i in range(4): p(f"v_fmac_f32 v{x+i}, v{TT+i}, v{y+i}")
            p(f"v_cvt_pk_bf16_f32 v{o}, v{x}, v{x+1}\nv_cvt_pk_bf16_f32 v{o+1}, v{x+2}, v{x+3}")
            p(f"buffer_store_dwordx2 v[{o}:{o+1}], v{vEP}, {WS}, s{sT+2+P} offen offset:{512*tl} sc1")
    G.stamp("x3st")

def mlp(G):
    p = G.p
    for L in range(2):
        layer_scalars(G, L)
        if L == 0:
            p(f"v_lshlrev_b32 v{vVF}, 4, v1\nv_lshl_add_u32 v{vVF}, v2, 12, v{vVF}")
        p("s_waitcnt lgkmcnt(0)\ns_barrier")
        for g in range(3):
            for l in x_dma(g, L): p(l)
        if L == 0:
            G.w_consume(1)
            setup(G)
        for l in x_verify(G, 0, L, also=(1, 2)): p(l)
        p("s_waitcnt lgkmcnt(0)\ns_barrier")
        G.stamp(f"g1go{L}")
        for g in range(3, 7):
            for l in x_dma(g, L): p(l)
        ls, lj = p.new("STATS"), p.new("JOIN")
        p(f"s_cmp_eq_u32 s{sC}, 15\ns_cbranch_scc1 {ls}")
        gemm1_normal(G, L)
        p(lj + ":")
        main = G.p
        import pg
        sub = pg.Prog(); sub.uid = main.uid + 1000 * (L + 1)
        G.p = sub
        sub(ls + ":")
        for g in range(1, 7): sub(f"@seed x{L}_{g} 4")
        gemm1_stats(G, L)
        sub(f"s_branch {lj}")
        G.p = main
        G.extra.append(sub)
        if G.stop == "g1": return
        gemm2(G, L)
        if G.stop == "g2": return
```

```python
import re

REG = re.compile(r'^(-|\|)?(abs\()?([vas])(\d+|\[(\d+):(\d+)\])\)?\|?$')

def regs_of(tok):
    tok = tok.strip()
    if tok in ("vcc", "exec"):
        return {tok + "_lo", tok + "_hi"}
    if tok in ("vcc_lo", "vcc_hi", "exec_lo", "exec_hi", "m0"):
        return {tok}
    m = REG.match(tok)
    if not m:
        return set()
    k = m.group(3)
    if m.group(5) is not None:
        return {"%s%d" % (k, i) for i in range(int(m.group(5)), int(m.group(6)) + 1)}
    return {"%s%d" % (k, int(m.group(4)))}

TRANS = ("v_exp_f32", "v_log_f32", "v_rcp_f32", "v_rsq_f32", "v_sqrt_f32", "v_sin_f32", "v_cos_f32")

class Ins:
    __slots__ = ("text", "mn", "ops", "mods", "rd", "wr", "kind", "tag", "dpp", "nslots", "cC", "store_data", "islds")
    def __init__(self, text, tag=None):
        self.text = text.strip()
        self.tag = tag
        t = self.text.split(";")[0].strip()
        p = t.split(None, 1)
        self.mn = p[0]
        rest = p[1] if len(p) > 1 else ""
        ops = []; depth = 0; cur = ""
        for ch in rest:
            if ch in "[(": depth += 1
            if ch in "])": depth -= 1
            if ch == "," and depth == 0:
                ops.append(cur.strip()); cur = ""
            else:
                cur += ch
        if cur.strip(): ops.append(cur.strip())
        mods = ""
        if ops:
            q = ops[-1].split(None, 1)
            if len(q) > 1 and not ops[-1].startswith("hwreg"):
                ops[-1] = q[0]; mods = q[1]
        self.ops = ops; self.mods = mods
        self.dpp = ("row_" in mods or "quad_perm" in mods or "_dpp" in self.mn)
        self.nslots = 1
        self.cC = set(); self.store_data = set(); self.islds = False
        mn = self.mn
        R = lambda i: regs_of(ops[i]) if i < len(ops) else set()
        allr = lambda a: set().union(*[R(i) for i in range(a, len(ops))]) if a < len(ops) else set()
        if mn.startswith("v_mfma"):
            self.kind = "mfma"; self.wr = R(0); self.rd = allr(1); self.cC = R(3)
        elif mn.startswith("v_"):
            self.kind = "valu"
            if mn.startswith("v_cmp"):
                self.wr = R(0); self.rd = allr(1)
            elif mn.startswith("v_permlane") and "swap" in mn:
                self.wr = R(0) | R(1); self.rd = R(0) | R(1)
            elif mn.startswith(("v_fmac", "v_dot2c", "v_pk_fmac")):
                self.wr = R(0); self.rd = allr(0)
            elif mn.startswith(("v_add_co", "v_sub_co", "v_addc_co")):
                self.wr = R(0) | R(1); self.rd = allr(2)
            else:
                self.wr = R(0); self.rd = allr(1)
                if mn.startswith("v_cndmask") and len(ops) == 3: self.rd |= {"vcc_lo", "vcc_hi"}
            if self.dpp and "bound_ctrl" not in mods and mn.startswith("v_mov"): self.rd |= R(0)
        elif mn.startswith("ds_"):
            self.kind = "ds"
            if mn.startswith(("ds_read", "ds_bpermute", "ds_swizzle")):
                self.wr = R(0); self.rd = allr(1)
            else:
                self.wr = set(); self.rd = allr(0)
        elif mn.startswith("buffer_") or mn.startswith("global_"):
            self.kind = "vmem"
            lds = re.search(r'\blds\b', mods) is not None or "_lds_" in mn
            self.islds = lds
            if mn in ("buffer_wbl2", "buffer_inv"):
                self.wr = set(); self.rd = set()
            elif lds:
                self.wr = set(); self.rd = allr(0) | {"m0"}
            elif "load" in mn:
                self.wr = R(0); self.rd = allr(1)
            elif mn.startswith("buffer_store"):
                self.wr = set(); self.rd = allr(0)
                if "x4" in mn or "x3" in mn: self.store_data = R(0)
            elif mn.startswith("global_store"):
                self.wr = set(); self.rd = allr(0)
                if "x4" in mn or "x3" in mn: self.store_data = R(1)
            else:
                raise ValueError("unhandled vmem " + self.text)
        elif mn.startswith("s_"):
            self.kind = "salu"
            if mn.startswith(("s_load", "s_memtime", "s_memrealtime")):
                self.kind = "smem"; self.wr = R(0); self.rd = allr(1)
            elif mn.startswith(("s_cmp", "s_bitcmp", "s_cbranch", "s_branch", "s_barrier", "s_waitcnt", "s_nop", "s_endpgm", "s_sleep", "s_setprio")):
                self.wr = set(); self.rd = allr(0) if mn.startswith(("s_cmp", "s_bitcmp")) else set()
                if mn == "s_nop": self.nslots = int(ops[0]) + 1
            elif "saveexec" in mn:
                self.wr = R(0) | {"exec_lo", "exec_hi"}; self.rd = allr(1) | {"exec_lo", "exec_hi"}
            else:
                self.wr = R(0); self.rd = allr(1)
        else:
            raise ValueError("unknown instr: " + self.text)

class Pseudo:
    def __init__(self, kind, arg=None):
        self.kind = kind; self.arg = arg

class Prog:
    def __init__(self):
        self.items = []
        self.uid = 0
        self.stats = {}
    def __call__(self, s, tag=None):
        for l in s.split("\n"):
            l = l.strip()
            if not l or l.startswith(";"): continue
            if l.endswith(":"):
                self.items.append(Pseudo("label", l[:-1]))
            elif l.startswith("."):
                self.items.append(Pseudo("raw", l))
            elif l.startswith("@wv "):
                self.items.append(Pseudo("wv", l[4:].strip()))
            elif l.startswith("@seed "):
                self.items.append(Pseudo("seed", l[6:].split()))
            elif l.startswith("@wl "):
                self.items.append(Pseudo("wl", l[4:].strip()))
            else:
                t = tag
                if "@" in l:
                    l, t = l.rsplit("@", 1); t = t.strip()
                self.items.append(Ins(l, t))
    def new(self, p="L"):
        self.uid += 1
        return "%s%d" % (p, self.uid)
    def fresh(self):
        self.items.append(Pseudo("fresh"))
    def comment(self, s):
        self.items.append(Pseudo("raw", "; " + s))

    def finalize(self):
        out = []
        vm = []
        lg = []
        def count_after(lst, idx, pos):
            return sum(1 for (o, p) in lst[idx + 1:] if p < pos)
        def place_wait(kind, lst, idx):
            pos = len(out)
            tgt_pos = lst[idx][1]
            k = len(out) - 1; steps = 0
            while k >= 0 and steps < 3 and isinstance(out[k], Ins):
                if out[k].kind == "mfma":
                    if k + 1 > tgt_pos and k + 1 < len(out):
                        nxt = out[k + 1]
                        if nxt.kind in ("valu", "ds", "vmem"):
                            pos = k + 1
                        elif nxt.mn == "s_waitcnt":
                            pos = -(k + 1) - 1
                    break
                if out[k].mn in ("s_barrier",) or out[k].mn.startswith("s_cbranch"): break
                k -= 1; steps += 1
            merge = None
            if pos < 0:
                merge = -(pos + 1); pos = merge
            if kind == "lg" and any(o.kind == "smem" for (o, p) in lst if p < pos):
                n = 0
            else:
                n = count_after(lst, idx, pos)
            n = min(n, 63 if kind == "vm" else 15)
            name = "vmcnt" if kind == "vm" else "lgkmcnt"
            if merge is None and pos == len(out) and out and isinstance(out[-1], Ins) and out[-1].mn == "s_waitcnt":
                merge = len(out) - 1
            if merge is not None:
                w = out[merge]
                m = re.search(name + r'\((\d+)\)', w.text)
                if m:
                    n = min(n, int(m.group(1)))
                    txt = w.text.replace(m.group(0), "%s(%d)" % (name, n))
                else:
                    txt = w.text + " %s(%d)" % (name, n)
                out[merge] = Ins(txt)
            else:
                out.insert(pos, Ins("s_waitcnt %s(%d)" % (name, n)))
                for L in (vm, lg):
                    for i2, (o, p) in enumerate(L):
                        if p >= pos: L[i2] = (o, p + 1)
            before = [e for e in lst if e[1] < pos or (merge is None and e[1] < pos + 1 and e[1] < pos)]
            nb = len(before)
            del lst[:max(0, nb - n)]
        for it in self.items:
            if isinstance(it, Pseudo):
                if it.kind in ("label", "raw"):
                    out.append(it)
                elif it.kind == "fresh":
                    vm.clear(); lg.clear(); out.append(Pseudo("raw", "; --- fresh"))
                elif it.kind == "seed":
                    for _ in range(int(it.arg[1])):
                        vm.append((Ins("buffer_inv", it.arg[0]), len(out) - 1))
                elif it.kind in ("wv", "wl"):
                    lst = vm if it.kind == "wv" else lg
                    tags = it.arg.split(",")
                    idx = max([i for i, (o, p) in enumerate(lst) if o.tag in tags], default=-1)
                    if idx >= 0: place_wait("vm" if it.kind == "wv" else "lg", lst, idx)
                continue
            ins = it
            touched = ins.rd | ins.wr
            if ins.mn == "s_waitcnt":
                m = re.search(r'vmcnt\((\d+)\)', ins.text)
                if m: del vm[:max(0, len(vm) - int(m.group(1)))]
                m = re.search(r'lgkmcnt\((\d+)\)', ins.text)
                if m: del lg[:max(0, len(lg) - int(m.group(1)))]
                out.append(ins); continue
            idx = max([i for i, (o, p) in enumerate(vm) if o.wr & touched], default=-1)
            if idx >= 0: place_wait("vm", vm, idx)
            idx = max([i for i, (o, p) in enumerate(lg) if o.wr & touched], default=-1)
            if idx >= 0: place_wait("lg", lg, idx)
            if ins.kind == "vmem": vm.append((ins, len(out)))
            if ins.kind in ("ds", "smem"): lg.append((ins, len(out)))
            out.append(ins)
        res = []
        hist = []
        slot = 0
        nnop = 0
        for it in out:
            if isinstance(it, Pseudo):
                res.append(it.arg + (":" if it.kind == "label" else "")); continue
            need = 0
            for (p, ps) in reversed(hist):
                d = slot - ps - p.nslots
                if d >= 9: break
                need = max(need, hazard(p, it) - d)
            if need > 0:
                res.append("s_nop %d" % (need - 1)); slot += need; nnop += 1
            res.append(it.text)
            hist.append((it, slot)); slot += it.nslots
            if len(hist) > 16: hist.pop(0)
        self.stats = dict(nops=nnop, n=len(res))
        return res

def isv(s): return {r for r in s if r[0] in "va" and r[1:].isdigit()}
def iss(s): return {r for r in s if not (r[0] in "va" and r[1:].isdigit())}

def hazard(p, c):
    n = 0
    if p.kind == "valu":
        wv = isv(p.wr); ws = iss(p.wr)
        if c.kind == "mfma" and wv & c.rd: n = max(n, 2)
        if c.kind == "valu":
            if wv & c.rd:
                if c.mn.startswith("v_permlane") or c.dpp: n = max(n, 2)
                if c.mn.startswith(("v_readlane", "v_readfirstlane")): n = max(n, 1)
                if p.mn.startswith(TRANS) and not c.mn.startswith(TRANS): n = max(n, 1)
            if p.mn.startswith("v_dot") and wv & (c.rd | c.wr):
                same_acc = (c.mn == p.mn and not (wv & (regs_of(c.ops[1]) | regs_of(c.ops[2]))))
                if not same_acc: n = max(n, 3)
            if ws & c.rd: n = max(n, 2)
        if p.mn.startswith("v_dot") and c.kind in ("ds", "vmem", "mfma") and wv & (c.rd | c.wr): n = max(n, 3)
        if c.kind == "vmem" and ws & c.rd: n = max(n, 5)
    elif p.kind == "mfma":
        D = p.wr
        if c.kind == "mfma":
            ab = regs_of(c.ops[1]) | regs_of(c.ops[2])
            if D & ab: n = max(n, 8)
            if D & c.cC and D != c.cC: n = max(n, 6)
            if D & c.wr and not (D & c.cC): n = max(n, 6)
        elif c.kind in ("valu", "ds", "vmem"):
            if D & (c.rd | c.wr): n = max(n, 8)
            if c.kind == "valu" and p.cC & c.wr: n = max(n, 3)
    elif p.kind == "vmem":
        if p.store_data and c.kind == "valu" and p.store_data & c.wr: n = max(n, 2)
        elif p.store_data and p.store_data & c.wr: n = max(n, 1)
    elif p.kind == "salu":
        if "m0" in p.wr and c.kind == "vmem" and c.islds: n = max(n, 1)
    return n

def weave(mf, streams, cap=2, tail=True):
    out = []
    st = [list(s) for s in streams]
    def free(t): return t.startswith("@") or t.endswith(":")
    for g, m in enumerate(mf):
        out.append(m)
        nv = 0; used_s = False
        while True:
            placed = False
            for s in st:
                while s and s[0][0] <= g and free(s[0][1]):
                    out.append(s.pop(0)[1])
            if not used_s and nv == 0:
                for s in st:
                    if s and s[0][0] <= g and s[0][1].startswith("s_"):
                        out.append(s.pop(0)[1]); used_s = True; placed = True; break
                if placed: continue
            for s in st:
                if not s or s[0][0] > g: continue
                t = s[0][1]
                w = 2 if t.startswith("v_permlane") else 1
                if nv + w <= cap or nv == 0:
                    out.append(s.pop(0)[1]); nv += w; placed = True; break
            if not placed: break
    if tail:
        for s in st:
            out += [t for (_, t) in s]
        return out
    return out, st
```

```python
import sys
sys.path.insert(0, "tools")
from pg import Prog, weave

NAME = "interleave_layers__ssm_conv_h3__glu_gated_reglu__prompt_kernel"
HEADER = open("interleave_layers__ssm_conv_h3__glu_gated_reglu__prompt.s.ref").read().split("; Override")[0].rstrip()
S, D, F = 2048, 512, 1376

WS_EPOCH = 0x0
WS_FLAGS = 0x10000
WS_SG = (0x20000, 0x24000)
WS_ST = 0x40000
WS_KVG = 0x100000
WS_QN = 0x400000
WS_X1B = 0x800000
WS_YB = 0xA00000
WS_X3B = 0xC00000
WS_HF = (0x1000000, 0x1600000)
HF_PITCH = 180 * 256
WS_DBG = 0x1C00000
WS_SIZE = 0x2000000

L_TC = 0; TC_STRIDE = 4160; TC_CH = 4 * TC_STRIDE
L_RS = 0
L_U = 33280; U_CH = 4608
L_WST = 61408; WST_UP = 49152 + 16
L_XS = 0
L_A = 114688
L_SP = 147456
L_MISC = 159744
LDS_SIZE = 163840

sX, sJ, sW, sTAG, sC = 3, 4, 5, 6, 7
sQP, sSKP, sDP = 16, 18, 20
SRD_K, SRD_V, SRD_H, SRD_WG, SRD_WU, SRD_WD, SRD_WS, SRD_O = 24, 28, 32, 36, 40, 44, 48, 52
sD0, sD1 = 56, 57
sDEAD, sSPIN = 58, 59
sR0 = 60
sHB, sCT = 61, 62
sT = 64
sM = 80
sST = 90
SPIN_MAX = 400000

def srd(n): return "s[%d:%d]" % (n, n + 3)
def vr(a, n=1): return "v%d" % a if n == 1 else "v[%d:%d]" % (a, a + n - 1)
def ar(a, n=1): return "a%d" % a if n == 1 else "a[%d:%d]" % (a, a + n - 1)
def mfma(d, a, b, c=None):
    return "v_mfma_f32_16x16x32_bf16 %s, %s, %s, %s" % (vr(d, 4), a, b, vr(d, 4) if c is None else c)

class Gen:
    def __init__(self, stop=None, stamps=False, skip=()):
        self.skip = set(skip)
        self.p = Prog()
        self.fix = []
        self.stop = stop
        self.stamps = stamps
        self.nst = 0
        self.stnames = []
        self.extra = []

    def stamp(self, name):
        if not self.stamps: return
        p = self.p
        if name in self.skip: return
        assert self.nst < 12
        p("s_waitcnt lgkmcnt(0)\ns_memrealtime s[14:15]\ns_waitcnt lgkmcnt(0)\ns_mov_b32 s%d, s14" % (sST + self.nst))
        self.nst += 1; self.stnames.append(name)

    def spin_guard(self, lback):
        return ["s_cmp_lg_u32 s%d, 0" % sDEAD, "s_cbranch_scc1 %s" % lback,
                "s_add_u32 s%d, s%d, 1" % (sSPIN, sSPIN), "s_cmp_lt_u32 s%d, %d" % (sSPIN, SPIN_MAX),
                "s_cselect_b32 s%d, 0, 1" % sDEAD]

    def add_fix(self, body_reload, body_check):
        p = self.p
        lf = p.new("FIX"); lb = p.new("BACK")
        blk = [lf + ":"] + self.spin_guard(lb + "_x") + body_reload + ["s_waitcnt vmcnt(0) lgkmcnt(0)"] + body_check + \
              ["s_cbranch_vccnz %s" % lf, lb + "_x:", "s_waitcnt vmcnt(0) lgkmcnt(0)", "s_nop 7", "s_branch %s" % lb]
        self.fix.append(blk)
        return lf, lb

    def front(self):
        p = self.p
        if self.stamps:
            p("s_memrealtime s[14:15]\ns_waitcnt lgkmcnt(0)\ns_mov_b32 s%d, s14" % sST); self.nst = 1; self.stnames = ["start"]
        p("s_cmp_ge_u32 s2, 256\ns_cbranch_scc1 L_END")
        for reg, off in ((SRD_K, 8), (SRD_V, 16), (sSKP, 24), (SRD_WS, 96), (SRD_H, 32), (sQP, 0), (sDP, 40),
                         (SRD_WG, 56), (SRD_WU, 64), (SRD_WD, 72), (SRD_O, 80)):
            p("s_load_dwordx2 s[%d:%d], s[0:1], %d" % (reg, reg + 1, off))
        for reg, size in ((SRD_K, S*D*2), (SRD_V, S*D*2), (SRD_H, S*D*2), (SRD_WG, D*F*2), (SRD_WU, D*F*2), (SRD_WD, D*F*2),
                          (SRD_WS, WS_SIZE), (SRD_O, S*D*2)):
            p("s_mov_b32 s%d, 0x%x\ns_mov_b32 s%d, 0x00020000" % (reg + 2, size, reg + 3))
        p(f"""s_and_b32 s{sX}, s2, 7
s_lshr_b32 s{sJ}, s2, 3
v_lshrrev_b32 v2, 6, v0
v_and_b32 v1, 63, v0
v_readfirstlane_b32 s{sW}, v2
s_and_b32 s{sC}, s{sJ}, 7
s_and_b32 s{sHB}, s{sX}, 1
s_lshl_b32 s{sT}, s{sHB}, 3
s_add_u32 s{sC}, s{sC}, s{sT}
s_mov_b32 s{sDEAD}, 0
s_mov_b32 s{sSPIN}, 0""")
        p(f"""v_and_b32 v3, 15, v0
v_bfe_u32 v4, v0, 6, 1
v_lshl_add_u32 v3, v4, 4, v3
v_bfe_u32 v4, v0, 4, 2
v_lshrrev_b32 v5, 7, v0
v_lshl_add_u32 v4, v5, 2, v4
s_lshl_b32 s{sT}, s{sX}, 5
v_add_u32 v3, s{sT}, v3
s_lshl_b32 s{sT+1}, s{sJ}, 3
v_add_u32 v4, s{sT+1}, v4
v_lshlrev_b32 v5, 13, v4
v_lshl_add_u32 v5, v3, 2, v5
v_subrev_u32 v6, 3072, v5
v_add_u32 v7, 4096, v5
v_lshlrev_b32 v8, 4, v3""")
        p("s_waitcnt lgkmcnt(0)")
        KR, VR, SK = 24, 35, 44
        for i in range(3): p(f"buffer_load_dword v{KR+i}, v6, {srd(SRD_K)}, 0 offen offset:{1024*i}")
        for i in range(8): p(f"buffer_load_dword v{KR+3+i}, v{5 if i < 4 else 7}, {srd(SRD_K)}, 0 offen offset:{1024*(i%4)}")
        p(f"global_load_dwordx4 v[{SK}:{SK+3}], v8, s[{sSKP}:{sSKP+1}]")
        for i in range(8): p(f"buffer_load_dword v{VR+i}, v{5 if i < 4 else 7}, {srd(SRD_V)}, 0 offen offset:{1024*(i%4)}")
        p(f"""s_load_dword s{sTAG}, s[{SRD_WS}:{SRD_WS+1}], {WS_EPOCH}
s_lshl_b32 s{sT}, s{sX}, 5
s_add_u32 s{sT}, s{sT}, s{sJ}
s_lshl_b32 s{sT+1}, s{sT}, 2
s_load_dword s{sD0}, s[{sDP}:{sDP+1}], s{sT+1}""")
        QR = 48
        p(f"""v_and_b32 v9, 1, v0
v_lshlrev_b32 v9, 12, v9
v_lshrrev_b32 v10, 2, v0
v_lshl_add_u32 v9, v10, 4, v9
s_lshl_b32 s{sT+2}, s2, 13
v_add_u32 v9, s{sT+2}, v9""")
        for i in range(4): p(f"global_load_dwordx4 v[{QR+4*i}:{QR+4*i+3}], v9, s[{sQP}:{sQP+1}] offset:{1024*i}")
        HA, HB_ = 64, 74
        p(f"""s_lshl_b32 s{sT+2}, s{sT}, 13
v_lshlrev_b32 v11, 5, v0
v_add_u32 v11, s{sT+2}, v11
buffer_load_dwordx4 v[{HA}:{HA+3}], v11, {srd(SRD_H)}, 0 offen
buffer_load_dwordx4 v[{HA+4}:{HA+7}], v11, {srd(SRD_H)}, 0 offen offset:16
buffer_load_dwordx2 v[{HA+8}:{HA+9}], v11, {srd(SRD_H)}, 0 offen offset:32
buffer_load_dwordx4 v[{HB_}:{HB_+3}], v11, {srd(SRD_H)}, 0 offen offset:4
buffer_load_dwordx4 v[{HB_+4}:{HB_+7}], v11, {srd(SRD_H)}, 0 offen offset:20""")
        p(f"""s_getpc_b64 s[{sT+4}:{sT+5}]
v_lshlrev_b32 v12, 7, v0
global_load_dword v13, v12, s[{sT+4}:{sT+5}]""")
        if self.code_kb > 32:
            p(f"v_add_u32 v12, 0x8000, v12\nglobal_load_dword v14, v12, s[{sT+4}:{sT+5}]")
        p(f"s_cmp_eq_u32 s{sC}, 15\ns_cselect_b32 s{SRD_WG+2}, 0, s{SRD_WG+2}\ns_cselect_b32 s{SRD_WU+2}, 0, s{SRD_WU+2}")
        p(f"s_mul_i32 s{sT+2}, s{sC}, 192\ns_mov_b32 s{sT+3}, 2752")
        for ph in range(3):
            r = 16 + ph
            p(f"""v_add_u32 v19, {64*ph}, v1
v_mul_u32_u24 v20, 5462, v19
v_lshrrev_b32 v20, 16, v20
v_mul_u32_u24 v21, 12, v20
v_sub_u32 v21, v19, v21
v_bfe_u32 v22, v20, 2, 1
v_lshlrev_b32 v22, 1, v22
v_xor_b32 v21, v21, v22
v_mul_lo_u32 v20, v20, s{sT+3}
v_lshl_add_u32 v20, v21, 4, v20
v_add_u32 v{r}, s{sT+2}, v20""")
        for l in self.w_dma(0): p(l)
        self.stamp("issued")
        KU, VU, WU_, AC, KD = 96, 118, 134, 142, 160
        for t in range(4):
            s0, s1 = SK + t // 2, SK + 2 + t // 2
            if t % 2 == 0: p(f"v_lshlrev_b32 v{WU_+2*t}, 16, v{s0}\nv_lshlrev_b32 v{WU_+2*t+1}, 16, v{s1}")
            else: p(f"v_and_b32 v{WU_+2*t}, 0xffff0000, v{s0}\nv_and_b32 v{WU_+2*t+1}, 0xffff0000, v{s1}")
        for i in range(11): p(f"v_lshlrev_b32 v{KU+2*i}, 16, v{KR+i}\nv_and_b32 v{KU+2*i+1}, 0xffff0000, v{KR+i}")
        for s in range(8):
            p(f"v_pk_mul_f32 v[{AC+2*s}:{AC+2*s+1}], v[{KU+2*s}:{KU+2*s+1}], v[{WU_+6}:{WU_+7}]")
        for t in (2, 1, 0):
            for s in range(8):
                k = KU + 2 * (s + 3 - t)
                p(f"v_pk_fma_f32 v[{AC+2*s}:{AC+2*s+1}], v[{k}:{k+1}], v[{WU_+2*t}:{WU_+2*t+1}], v[{AC+2*s}:{AC+2*s+1}]")
        for i in range(8): p(f"v_lshlrev_b32 v{VU+2*i}, 16, v{VR+i}\nv_and_b32 v{VU+2*i+1}, 0xffff0000, v{VR+i}")
        p(f"""s_waitcnt lgkmcnt(0)
s_mul_i32 s{sTAG}, s{sTAG}, 0x9E3779B1
s_add_u32 s{sTAG}, s{sTAG}, 0x7F4A7C15
s_mov_b32 s{sT+2}, 12288
v_mul_lo_u32 v3, v3, s{sT+2}
v_lshl_add_u32 v3, v4, 4, v3
v_mov_b32 v{KD+3}, s{sTAG}
v_mov_b32 v{KD+7}, s{sTAG}
v_mov_b32 v{KD+10}, s{sTAG}
v_mov_b32 v{KD+11}, s{sTAG}""")
        for s in range(8): p(f"v_pk_mul_f32 v[{AC+2*s}:{AC+2*s+1}], v[{AC+2*s}:{AC+2*s+1}], v[{VU+2*s}:{VU+2*s+1}]")
        for pl in range(3):
            for s in range(3 * pl, min(8, 3 * pl + 3)):
                p(f"v_cvt_pk_bf16_f32 v{KD+4*pl+s-3*pl}, v{AC+2*s}, v{AC+2*s+1}")
            p(f"s_mov_b32 s{sT+2}, 0x{WS_KVG + 4096*pl:x}")
            p(f"buffer_store_dwordx4 v[{KD+4*pl}:{KD+4*pl+3}], v3, {srd(SRD_WS)}, s{sT+2} offen sc1")
        self.stamp("kvst")
        p(f"s_and_b32 s{sD1}, s{sD0}, 0xffff0000\ns_lshl_b32 s{sD0}, s{sD0}, 16")
        QA = 84
        p(f"v_mov_b32 v92, 0x3f803f80")
        for i in range(4):
            p(f"v_dot2_f32_bf16 v{QA+i}, v{QR+4*i}, v92, 0\nv_dot2_f32_bf16 v{QA+4+i}, v{QR+4*i}, v{QR+4*i}, 0")
        for k in range(1, 4):
            for i in range(4):
                p(f"v_dot2_f32_bf16 v{QA+i}, v{QR+4*i+k}, v92, v{QA+i}\nv_dot2_f32_bf16 v{QA+4+i}, v{QR+4*i+k}, v{QR+4*i+k}, v{QA+4+i}")
        for i in range(4): p(f"v_permlane32_swap_b32 v{QA+i}, v{QA+4+i}")
        for i in range(4): p(f"v_add_f32 v{QA+i}, v{QA+i}, v{QA+4+i}")
        p(f"v_permlane16_swap_b32 v{QA}, v{QA+1}\nv_permlane16_swap_b32 v{QA+2}, v{QA+3}")
        p(f"v_add_f32 v{QA}, v{QA}, v{QA+1}\nv_add_f32 v{QA+2}, v{QA+2}, v{QA+3}")
        for sh in (4, 8):
            p(f"v_add_f32 v{QA}, v{QA}, v{QA} row_ror:{sh} row_mask:0xf bank_mask:0xf\nv_add_f32 v{QA+2}, v{QA+2}, v{QA+2} row_ror:{sh} row_mask:0xf bank_mask:0xf")
        p(f"""v_and_b32 v19, 1, v0
v_lshlrev_b32 v19, 5, v19
v_add_u32 v19, {L_MISC}, v19
v_lshl_add_u32 v20, v2, 6, v19
v_bfe_u32 v21, v0, 4, 1
v_lshl_add_u32 v20, v21, 2, v20
v_bfe_u32 v21, v0, 5, 1
v_lshl_add_u32 v20, v21, 4, v20
ds_write2_b32 v20, v{QA}, v{QA+2} offset0:0 offset1:2""")
        E0, E1 = 96, 104
        for k in range(8): p(f"v_alignbit_b32 v{E0+k}, v{HA+k+1}, v{HA+k}, 16")
        for k in range(8): p(f"v_alignbit_b32 v{E1+k}, v{HA+k+2}, v{HA+k+1}, 16")
        p(f"""v_lshrrev_b32 v21, 7, v0
v_mul_u32_u24 v21, {TC_CH}, v21
v_and_b32 v22, 127, v0
v_lshl_add_u32 v21, v22, 5, v21""")
        for c, r in enumerate((HA, E0, HB_, E1)):
            p(f"ds_write_b128 v21, v[{r}:{r+3}] offset:{L_TC + c*TC_STRIDE + 32}\nds_write_b128 v21, v[{r+4}:{r+7}] offset:{L_TC + c*TC_STRIDE + 48}")
        Z = 112
        p(f"""v_mov_b32 v{Z}, 0
v_mov_b32 v{Z+1}, 0
v_mov_b32 v{Z+2}, 0
v_mov_b32 v{Z+3}, 0
v_lshlrev_b32 v{Z+7}, 16, v{HA}
v_mov_b32 v{Z+4}, 0
v_mov_b32 v{Z+5}, 0
v_mov_b32 v{Z+6}, 0
v_mov_b32 v{Z+8}, 0
v_mov_b32 v{Z+9}, 0
v_mov_b32 v{Z+10}, 0
v_mov_b32 v{Z+11}, v{HA}
v_mov_b32 v{Z+12}, 0
v_mov_b32 v{Z+13}, 0
v_mov_b32 v{Z+14}, v{Z+7}
v_mov_b32 v{Z+15}, v{E0}
v_cmp_eq_u32 vcc, 0, v22
s_and_saveexec_b64 s[{sM}:{sM+1}], vcc""")
        for c in range(4):
            p(f"ds_write_b128 v21, v[{Z}:{Z+3}] offset:{L_TC + c*TC_STRIDE}\nds_write_b128 v21, v[{Z+4*c}:{Z+4*c+3}] offset:{L_TC + c*TC_STRIDE + 16}")
        p(f"""s_mov_b64 exec, s[{sM}:{sM+1}]
v_bfe_u32 v21, v0, 5, 1
v_mul_u32_u24 v21, {U_CH}, v21
v_and_b32 v22, 31, v0
v_lshl_add_u32 v21, v22, 4, v21
ds_write_b128 v21, v[{Z}:{Z+3}] offset:{L_U}
s_waitcnt lgkmcnt(0)
s_barrier""")
        PR = 96
        for w in range(4):
            p(f"ds_read_b128 v[{PR+8*w}:{PR+8*w+3}], v19 offset:{64*w}\nds_read_b128 v[{PR+8*w+4}:{PR+8*w+7}], v19 offset:{64*w+16}")
        for k in range(8): p(f"v_add_f32 v{PR+k}, v{PR+k}, v{PR+8+k}")
        for k in range(8): p(f"v_add_f32 v{PR+16+k}, v{PR+16+k}, v{PR+24+k}")
        for k in range(8): p(f"v_add_f32 v{PR+k}, v{PR+k}, v{PR+16+k}")
        p(f"v_bfe_u32 v21, v0, 1, 1\nv_cmp_eq_u32 s[{sM}:{sM+1}], 1, v21\ns_mov_b32 s{sT+2}, 0x3b000000\ns_mov_b32 s{sT+3}, 0x3727c5ac")
        AL, BE = 128, 132
        for i in range(4): p(f"v_mul_f32 v{PR+i}, s{sT+2}, v{PR+i}")
        for i in range(4): p(f"v_fma_f32 v{PR+4+i}, v{PR+4+i}, s{sT+2}, 0")
        for i in range(4): p(f"v_fma_f32 v{PR+4+i}, -v{PR+i}, v{PR+i}, v{PR+4+i}")
        for i in range(4): p(f"v_max_f32 v{PR+4+i}, 0, v{PR+4+i}\nv_add_f32 v{PR+4+i}, s{sT+3}, v{PR+4+i}")
        for i in range(4): p(f"v_rsq_f32 v{PR+4+i}, v{PR+4+i}")
        for i in range(4): p(f"v_mul_f32 v{PR+i}, v{PR+i}, v{PR+4+i}")
        p("v_mov_b32 v21, 1.0\nv_mov_b32 v22, 0")
        for i in range(4): p(f"v_cndmask_b32 v{AL+i}, v21, v{PR+4+i}, s[{sM}:{sM+1}]\nv_cndmask_b32 v{BE+i}, v22, v{PR+i}, s[{sM}:{sM+1}]")
        QO, QT = 136, 152
        p(f"""v_lshlrev_b32 v10, 16, v10
v_and_b32 v21, 3, v0
v_lshl_add_u32 v10, v21, 4, v10
s_lshl_b32 s{sT+2}, s2, 6
s_add_u32 s{sT+2}, s{sT+2}, 0x{WS_QN:x}""")
        for k in range(4):
            for i in range(4):
                src = QR + 4 * i + k
                p(f"""v_lshlrev_b32 v{QT+2*i}, 16, v{src}
v_and_b32 v{QT+2*i+1}, 0xffff0000, v{src}""")
            for i in range(4):
                p(f"v_fma_f32 v{QT+2*i}, v{QT+2*i}, v{AL+i}, -v{BE+i}\nv_fma_f32 v{QT+2*i+1}, v{QT+2*i+1}, v{AL+i}, -v{BE+i}")
            for i in range(4):
                p(f"v_cvt_pk_bf16_f32 v{QO+4*k+i}, v{QT+2*i}, v{QT+2*i+1}")
            p(f"buffer_store_dwordx4 v[{QO+4*k}:{QO+4*k+3}], v10, {srd(SRD_WS)}, s{sT+2} offen sc1 @qn")
            p(f"s_add_u32 s{sT+2}, s{sT+2}, 16384")
        p(f"""v_and_b32 v21, 15, v0
v_lshl_add_u32 v21, v2, 5, v21
v_lshlrev_b32 v15, 14, v21
v_bfe_u32 v21, v0, 4, 1
v_lshl_add_u32 v15, v21, 5, v15
v_bfe_u32 v21, v0, 5, 1
v_lshl_add_u32 v15, v21, 4, v15
s_lshl_b32 s{sT+2}, s{sT}, 6
v_add_u32 v15, s{sT+2}, v15
v_mov_b32 v{Z}, -1
v_mov_b32 v{Z+1}, -1
v_mov_b32 v{Z+2}, -1
v_mov_b32 v{Z+3}, -1""")
        for base in (WS_X1B, WS_YB):
            for qq in range(2):
                p(f"s_mov_b32 s{sT+2}, 0x{base + qq*16*16384:x}\nbuffer_store_dwordx4 v[{Z}:{Z+3}], v15, {srd(SRD_WS)}, s{sT+2} offen sc1 @qn")
        p(f"""s_and_b32 s{sR0}, s{sJ}, 24
s_lshr_b32 s{sT+2}, s{sX}, 1
s_lshl_b32 s{sT+2}, s{sT+2}, 5
s_add_u32 s{sR0}, s{sR0}, s{sT+2}
s_and_b32 s{sCT}, s{sC}, 7
s_lshl_b32 s{sT+2}, s{sR0}, 7
s_add_u32 s{sT+2}, s{sT+2}, 0x{WS_SG[0]:x}
v_lshlrev_b32 v21, 2, v0
buffer_store_dword v{Z}, v21, {srd(SRD_WS)}, s{sT+2} offen sc1 @qn""")
        self.stamp("qn")
        self.w_addr()
        p("@wv w0\ns_barrier")
        self.w_consume(0)
        p("@wv qn\ns_waitcnt lgkmcnt(0)\ns_barrier")
        p(f"""s_lshl_b32 s{sT+2}, s{sJ}, 7
s_lshl_b32 s{sT+3}, s{sX}, 2
s_add_u32 s{sT+2}, s{sT+2}, s{sT+3}
s_add_u32 s{sT+2}, s{sT+2}, 0x{WS_FLAGS:x}
v_mov_b32 v21, 0
v_mov_b32 v22, s{sTAG}
s_mov_b64 exec, 1
buffer_store_dword v22, v21, {srd(SRD_WS)}, s{sT+2} offen sc1
s_mov_b64 exec, -1""")
        self.stamp("w0")
        G = 96
        p(f"s_mul_i32 s{sT+2}, s{sT}, 12288\ns_add_u32 s{sT+2}, s{sT+2}, 0x{WS_KVG:x}\ns_add_u32 s{sT+3}, s{sT+2}, 4096\ns_add_u32 s{sT+4}, s{sT+2}, 8192\nv_lshlrev_b32 v21, 4, v0")
        ld = [f"buffer_load_dwordx4 v[{G+4*pl}:{G+4*pl+3}], v21, {srd(SRD_WS)}, s{sT+2+pl} offen sc1" for pl in range(3)]
        chk = [f"v_xor_b32 v{G+12}, s{sTAG}, v{G+3}", f"v_xor_b32 v{G+13}, s{sTAG}, v{G+7}", f"v_xor_b32 v{G+14}, s{sTAG}, v{G+11}",
               f"v_or3_b32 v{G+12}, v{G+12}, v{G+13}, v{G+14}", f"v_cmp_ne_u32 vcc, 0, v{G+12}"]
        lf, lb = self.add_fix(ld, chk)
        for l in ld + chk: p(l)
        p(f"s_cbranch_vccnz {lf}\n{lb}:")
        dpos = lambda s: G + 4 * (s // 3) + s % 3
        p(f"s_mov_b32 s{sT+2}, 0x05040100\ns_mov_b32 s{sT+3}, 0x07060302")
        UO = 112
        for ch in range(2):
            for jj in range(4):
                p(f"v_perm_b32 v{UO+4*ch+jj}, v{dpos(6-2*jj)}, v{dpos(7-2*jj)}, s{sT+2+ch}")
        p(f"ds_write_b128 v21, v[{UO}:{UO+3}] offset:{L_U + 512}\nds_write_b128 v21, v[{UO+4}:{UO+7}] offset:{L_U + U_CH + 512}")
        p(f"""v_and_b32 v21, 15, v0
v_add_u32 v22, 1, v21
v_and_b32 v23, 3, v22
v_mul_u32_u24 v19, {TC_STRIDE}, v23
v_and_b32 v22, 28, v22
v_bfe_u32 v23, v0, 4, 2
v_lshlrev_b32 v20, 3, v23
v_sub_u32 v22, v22, v20
v_add_u32 v22, 8, v22
v_lshl_add_u32 v19, v22, 1, v19
v_lshl_add_u32 v20, v21, 1, v23
v_lshlrev_b32 v20, 4, v20
s_lshr_b32 s{sT+2}, s{sW}, 1
s_and_b32 s{sT+3}, s{sW}, 1
s_mul_i32 s{sT+4}, s{sT+2}, {TC_CH}
s_lshl_b32 s{sT+5}, s{sT+3}, 8
s_add_u32 s{sT+4}, s{sT+4}, s{sT+5}
v_add_u32 v19, s{sT+4}, v19
s_mul_i32 s{sT+4}, s{sT+2}, {U_CH}
s_sub_u32 s{sT+4}, s{sT+4}, s{sT+5}
s_add_u32 s{sT+4}, s{sT+4}, {L_U}
v_add_u32 v20, s{sT+4}, v20
s_waitcnt lgkmcnt(0)
s_barrier""")
        self.stamp("kvg")

    def w_dma(self, b):
        L = [f"s_mul_i32 s{sT+6}, s{sW}, {4*44032}", f"s_add_u32 s{sT+6}, s{sT+6}, {b*16*44032}",
             f"s_mul_i32 s{sT+7}, s{sW}, {4*3072}", f"s_add_u32 s{sT+7}, s{sT+7}, {L_WST}"]
        for blk in range(4):
            for (sr, lo) in ((SRD_WG, 0), (SRD_WU, WST_UP)):
                for ph in range(3):
                    L.append(f"s_add_u32 m0, s{sT+7}, {lo + blk*3072 + ph*1024}")
                    L.append(f"buffer_load_dwordx4 v{16+ph}, {srd(sr)}, s{sT+6} offen lds @w{b}")
            L.append(f"s_add_u32 s{sT+6}, s{sT+6}, 44032")
        return L

    def w_addr(self):
        p = self.p
        p(f"""v_bfe_u32 v21, v0, 2, 4
v_mul_u32_u24 v24, 192, v21
v_bfe_u32 v22, v0, 4, 1
v_xor_b32 v23, v22, v2
v_lshl_add_u32 v25, v23, 5, v24
v_and_b32 v23, 3, v0
v_lshl_add_u32 v25, v23, 3, v25
v_lshlrev_b32 v22, 1, v22
v_add_u32 v27, 8, v2
v_xor_b32 v27, v27, v22
v_lshl_add_u32 v26, v27, 4, v24
v_and_b32 v27, 1, v0
v_lshl_add_u32 v26, v27, 3, v26
v_bfe_u32 v27, v0, 1, 1
v_mul_u32_u24 v27, {WST_UP}, v27
v_add3_u32 v26, v26, v27, 0
v_add_u32 v26, {L_WST}, v26
v_add_u32 v24, {L_WST}, v25
v_add_u32 v25, {L_WST + WST_UP}, v25
v_mov_b32 v28, 0x3f803f80
v_mov_b32 v29, 0x3f803f80
v_mov_b32 v30, 0x3f803f80
v_mov_b32 v31, 0x3f803f80""")

    CS = 32
    def w_consume(self, b):
        p = self.p
        rd = []; mf = []
        for k in range(8):
            kk = 8 * b + k
            for t in range(3):
                for h in range(2):
                    rd.append(f"ds_read_b64_tr_b16 {ar(64*t + 4*kk + 2*h, 2)}, v{24+t} offset:{k*6144 + h*3072}")
                mf.append(mfma(self.CS + 4*t, ar(64*t + 4*kk, 4), "v[28:31]", "0" if kk == 0 else None))
        for l in rd[:12]: p(l)
        for l in weave(mf, [[(i // 2, t) for i, t in enumerate(rd[12:])]]): p(l)

    def conv(self):
        p = self.p
        ACC = 48
        FA = (80, 144); FB = (112, 176)
        QNR = 208
        def loads(it):
            eo = 2 * it + 1
            L = []
            for r in range(8):
                L.append(f"ds_read_b128 v[{FB[it%2]+4*r}:{FB[it%2]+4*r+3}], v20 offset:{512*r - 32*eo + 512}")
                L.append(f"ds_read_b64 v[{FA[it%2]+4*r}:{FA[it%2]+4*r+1}], v19 offset:{512*r + 32*eo}")
                L.append(f"ds_read_b64 v[{FA[it%2]+4*r+2}:{FA[it%2]+4*r+3}], v19 offset:{512*r + 32*eo + 8}")
            return L
        for l in loads(0)[:15]: p(l)
        p(f"v_mov_b32 v228, -1\nv_mov_b32 v229, -1\nv_mov_b32 v230, -1\nv_mov_b32 v231, -1")
        wd = self.w_dma(1)
        side = []
        side.append(f"s_mul_i32 s{sT+8}, s{sR0}, {HF_PITCH}")
        side.append(f"s_mul_i32 s{sT+9}, s{sC}, 3072")
        side.append(f"s_add_u32 s{sT+8}, s{sT+8}, s{sT+9}")
        side.append(f"s_add_u32 s{sT+8}, s{sT+8}, 0x{WS_HF[0]:x}")
        allm = []
        per_it = []
        for it in range(4):
            mf = []
            for q in range(8):
                for r in range(q + 1):
                    mf.append(mfma(ACC + 4*q, vr(FA[it%2] + 4*r, 4), vr(FB[it%2] + 4*(q - r), 4), "0" if (it == 0 and r == 0) else None))
            per_it.append(mf)
        pois = ["v_lshlrev_b32 v22, 4, v1", f"v_mul_u32_u24 v23, {2*HF_PITCH}, v2", "v_add_u32 v22, v22, v23"]
        for r in range(2):
            for i in range(3): pois.append(f"buffer_store_dwordx4 v[228:231], v22, {srd(SRD_WS)}, s{sT+8} offen offset:{1024*i} sc1 @hp")
            pois.append(f"s_add_u32 s{sT+8}, s{sT+8}, {HF_PITCH}")
        flg_ld = [f"buffer_load_dwordx4 v[224:227], v21, {srd(SRD_WS)}, s{sT+10} offen sc1"]
        flg_chk = [f"v_xor_b32 v{224+n}, s{sTAG}, v{224+n}" for n in range(4)] + \
                  ["v_or3_b32 v224, v224, v225, v226", "v_or_b32 v224, v224, v227", "v_cmp_ne_u32 vcc, 0, v224"]
        lf, lb = self.add_fix(flg_ld, flg_chk)
        qn_addr = ["v_and_b32 v22, 15, v0", "v_lshlrev_b32 v22, 7, v22", "v_bfe_u32 v23, v0, 5, 1", "v_lshl_add_u32 v22, v23, 6, v22",
                   "v_bfe_u32 v23, v0, 4, 1", "v_lshl_add_u32 v22, v23, 4, v22", "v_lshl_add_u32 v22, v2, 12, v22",
                   f"s_lshl_b32 s{sT+11}, s{sT}, 14", f"s_add_u32 s{sT+11}, s{sT+11}, 0x{WS_QN:x}"]
        qn_ld = [f"buffer_load_dwordx4 v[{QNR+8*qq+4*u}:{QNR+8*qq+4*u+3}], v22, {srd(SRD_WS)}, s{sT+11} offen offset:{2048*qq + 32*u} sc1"
                 for qq in range(2) for u in range(2)]
        rs_addr = ["v_lshlrev_b32 v14, 4, v1", "v_lshl_add_u32 v14, v2, 13, v14"]
        nw = len(wd)
        for it in range(4):
            st0 = []
            if it == 0:
                st0 += [(0, t) for t in loads(0)[15:]]
            if it < 3:
                st0 += [(6 + i, t) for i, t in enumerate(loads(it + 1))]
            st1 = []; st2 = []
            if it == 0:
                st1 = [(8, t) for t in side + pois]
                st2 = [(10 + i // 2, t) for i, t in enumerate(wd[:4 + 13 * 1])]
            elif it == 1:
                st1 = [(0, f"s_mov_b32 s{sT+10}, 0x{WS_FLAGS:x}"), (0, "v_lshrrev_b32 v21, 1, v1"), (0, "v_lshlrev_b32 v21, 7, v21"), (0, "v_and_b32 v23, 1, v1"), (0, "v_lshl_add_u32 v21, v23, 4, v21")] + [(1, t) for t in flg_ld] + [(4, t) for t in qn_addr + rs_addr]
                st2 = [(4 + i, t) for i, t in enumerate(wd[4 + 13:4 + 13 * 3])]
            elif it == 2:
                st1 = [(2, t) for t in flg_chk + [f"s_cbranch_vccnz {lf}", lb + ":"] + qn_ld]
                st2 = [(12 + i, t) for i, t in enumerate(wd[4 + 13 * 3:])]
            else:
                st1 = [(0, "s_waitcnt lgkmcnt(0)"), (1, "s_barrier")]
                g = 0
                for q in range(8):
                    g += q + 1
                    st1.append((g + 7, f"ds_write_b128 v14, v[{ACC+4*q}:{ACC+4*q+3}] offset:{L_RS + 1024*q}"))
            for l in weave(per_it[it], [st0, st1, st2]): p(l)
        self.stamp("convloop")
        p("@wv hp,w1\ns_waitcnt lgkmcnt(0)\ns_barrier")
        T = 80
        p("v_lshlrev_b32 v14, 4, v1\nv_lshl_add_u32 v14, v2, 11, v14")
        for qq in range(2):
            for sw in range(4):
                p(f"ds_read_b128 v[{T+16*qq+4*sw}:{T+16*qq+4*sw+3}], v14 offset:{L_RS + 8192*sw + 1024*qq}")
        p(f"""v_and_b32 v21, 15, v0
v_lshlrev_b32 v21, 5, v21
v_bfe_u32 v23, v0, 5, 1
v_lshl_add_u32 v21, v23, 4, v21
v_bfe_u32 v23, v0, 4, 1
v_xor_b32 v23, 1, v23
v_lshl_add_u32 v21, v23, 3, v21
v_lshl_add_u32 v21, v2, 10, v21""")
        KV = 112
        for qq in range(2):
            for ch in range(2):
                p(f"ds_read_b64 v[{KV+4*qq+2*ch}:{KV+4*qq+2*ch+1}], v21 offset:{L_U + ch*U_CH + 512 + 512*qq}")
        Y = 120; XO = 144; YO = 152; TM = 160
        for qq in range(2):
            for ch in range(2):
                a0 = T + 16*qq + 8*ch; y = Y + 8*qq + 4*ch; kv = KV + 4*qq + 2*ch
                for r in range(4): p(f"v_add_f32 v{y+r}, v{a0+r}, v{a0+4+r}")
                p(f"v_and_b32 v{TM}, 0xffff0000, v{kv+1}\nv_lshlrev_b32 v{TM+1}, 16, v{kv+1}\nv_and_b32 v{TM+2}, 0xffff0000, v{kv}\nv_lshlrev_b32 v{TM+3}, 16, v{kv}")
                for r in range(4): p(f"v_fmac_f32 v{y+r}, s{sD0+ch}, v{TM+r}")
        for qq in range(2):
            for ch in range(2):
                y = Y + 8*qq + 4*ch; qv = QNR + 8*qq
                for r in range(4):
                    if ch == 0: p(f"v_lshlrev_b32 v{TM+r}, 16, v{qv+r}\nv_lshlrev_b32 v{TM+4+r}, 16, v{qv+4+r}")
                    else: p(f"v_and_b32 v{TM+r}, 0xffff0000, v{qv+r}\nv_and_b32 v{TM+4+r}, 0xffff0000, v{qv+4+r}")
                for r in range(4): p(f"v_fmac_f32 v{TM+r}, v{TM+4+r}, v{y+r}")
                o = XO + 4*qq + 2*ch
                p(f"v_cvt_pk_bf16_f32 v{o}, v{TM}, v{TM+1}\nv_cvt_pk_bf16_f32 v{o+1}, v{TM+2}, v{TM+3}")
            o = XO + 4*qq
            p(f"v_permlane16_swap_b32 v{o}, v{o+2}\nv_permlane16_swap_b32 v{o+1}, v{o+3}")
            p(f"s_mov_b32 s{sT+2}, 0x{WS_X1B + qq*16*16384:x}\nbuffer_store_dwordx4 v[{o}:{o+3}], v15, {srd(SRD_WS)}, s{sT+2} offen sc1")
        for qq in range(2):
            for ch in range(2):
                y = Y + 8*qq + 4*ch; o = YO + 4*qq + 2*ch
                p(f"v_cvt_pk_bf16_f32 v{o}, v{y}, v{y+1}\nv_cvt_pk_bf16_f32 v{o+1}, v{y+2}, v{y+3}")
            o = YO + 4*qq
            p(f"v_permlane16_swap_b32 v{o}, v{o+2}\nv_permlane16_swap_b32 v{o+1}, v{o+3}")
            p(f"s_mov_b32 s{sT+2}, 0x{WS_YB + qq*16*16384:x}\nbuffer_store_dwordx4 v[{o}:{o+3}], v15, {srd(SRD_WS)}, s{sT+2} offen sc1")
        self.stamp("x1st")

    def finish(self):
        p = self.p
        p(f"""s_cmp_lg_u32 s2, 0
s_cbranch_scc1 L_NOEP
v_mov_b32 v21, 0
v_mov_b32 v22, s{sTAG}
s_mov_b64 exec, 1
buffer_store_dword v22, v21, {srd(SRD_WS)}, 0 offen sc1
s_mov_b64 exec, -1
L_NOEP:""")
        if self.stamps:
            p("s_waitcnt vmcnt(0)")
            self.stamp("end")
            p(f"s_cmp_lg_u32 s{sW}, 0\ns_cbranch_scc1 L_END")
            p(f"s_lshl_b32 s{sT}, s2, 6\ns_add_u32 s{sT}, s{sT}, 0x{WS_DBG:x}\nv_mov_b32 v21, 0\ns_mov_b64 exec, 1")
            for i in range(self.nst):
                p(f"v_mov_b32 v22, s{sST+i}\nbuffer_store_dword v22, v21, {srd(SRD_WS)}, s{sT} offen offset:{4*i}")
            p(f"v_mov_b32 v22, s{sSPIN}\nbuffer_store_dword v22, v21, {srd(SRD_WS)}, s{sT} offen offset:60")
        p("L_END:\ns_endpgm")
        for blk in self.fix:
            p.fresh()
            for l in blk: p(l)

    def build(self):
        self.code_kb = 64
        self.front()
        self.conv()
        if self.stop != "conv":
            from gen_mlp import mlp
            mlp(self)
        self.finish()
        body = self.p.finalize()
        for e in self.extra: body += e.finalize()
        txt = [HEADER, f"; @launch grid=(256,1,1) block=(256,1,1) lds={LDS_SIZE}", '.amdgcn_target "amdgcn-amd-amdhsa--gfx950"', ".text",
               f".globl {NAME}", ".p2align 8", f".type {NAME},@function", NAME + ":"] + body
        txt += [".p2align 8", f".fill (65536 + 2048 - (. - {NAME})) / 4, 4, 0xbf800000"]
        txt += ['.section .rodata,"a"', ".p2align 6", f".amdhsa_kernel {NAME}", "  .amdhsa_next_free_vgpr 512", "  .amdhsa_next_free_sgpr 102",
                "  .amdhsa_accum_offset 256", "  .amdhsa_group_segment_fixed_size 0", "  .amdhsa_kernarg_size 104", "  .amdhsa_user_sgpr_count 2",
                "  .amdhsa_user_sgpr_kernarg_segment_ptr 1", "  .amdhsa_system_sgpr_workgroup_id_x 1", ".end_amdhsa_kernel"]
        return "\n".join(txt) + "\n"

if __name__ == "__main__":
    import argparse
    ap = argparse.ArgumentParser()
    ap.add_argument("-o", default="k.s")
    ap.add_argument("--stop", default=None)
    ap.add_argument("--stamps", action="store_true")
    ap.add_argument("--skip", default="")
    a = ap.parse_args()
    g = Gen(stop=a.stop, stamps=a.stamps, skip=a.skip.split(','))
    t = g.build()
    open(a.o, "w").write(t)
    open(a.o + ".stamps", "w").write(" ".join(g.stnames))
    print("lines", g.p.stats, "stamps", g.stnames)
```

```python
import sys
sys.path.insert(0, "tools")
from pg import Prog, weave

NAME = "interleave_layers__ssm_conv_h3__glu_gated_reglu__prompt_kernel"
HEADER = open("interleave_layers__ssm_conv_h3__glu_gated_reglu__prompt.s.ref").read().split("; Override")[0].rstrip()
S, D, F = 2048, 512, 1376

WS_EPOCH = 0x0
WS_FLAGS = 0x10000
WS_SG = (0x20000, 0x24000)
WS_ST = 0x40000
WS_KVG = 0x100000
WS_QN = 0x400000
WS_X1B = 0x800000
WS_YB = 0xA00000
WS_X3B = 0xC00000
WS_HF = (0x1000000, 0x1600000)
HF_PITCH = 180 * 256
WS_DBG = 0x1C00000
WS_SIZE = 0x2000000

L_TC = 0; TC_STRIDE = 4160; TC_CH = 4 * TC_STRIDE
L_RS = 0
L_U = 33280; U_CH = 4608
L_WST = 61408; WST_UP = 49152 + 16
L_XS = 0
L_A = 114688
L_SP = 147456
L_MISC = 159744
LDS_SIZE = 163840

sX, sJ, sW, sTAG, sC = 3, 4, 5, 6, 7
sQP, sSKP, sDP = 16, 18, 20
SRD_K, SRD_V, SRD_H, SRD_WG, SRD_WU, SRD_WD, SRD_WS, SRD_O = 24, 28, 32, 36, 40, 44, 48, 52
sD0, sD1 = 56, 57
sDEAD, sSPIN = 58, 59
sR0 = 60
sHB, sCT = 61, 62
sT = 64
sM = 80
sST = 90
SPIN_MAX = 400000

def srd(n): return "s[%d:%d]" % (n, n + 3)
def vr(a, n=1): return "v%d" % a if n == 1 else "v[%d:%d]" % (a, a + n - 1)
def ar(a, n=1): return "a%d" % a if n == 1 else "a[%d:%d]" % (a, a + n - 1)
def mfma(d, a, b, c=None):
    return "v_mfma_f32_16x16x32_bf16 %s, %s, %s, %s" % (vr(d, 4), a, b, vr(d, 4) if c is None else c)

class Gen:
    def __init__(self, stop=None, stamps=False, skip=()):
        self.skip = set(skip)
        self.p = Prog()
        self.fix = []
        self.stop = stop
        self.stamps = stamps
        self.nst = 0
        self.stnames = []
        self.extra = []
        self.probe = None

    def stamp(self, name):
        if not self.stamps: return
        p = self.p
        if name in self.skip: return
        assert self.nst < 12
        p("s_waitcnt lgkmcnt(0)\ns_memrealtime s[14:15]\ns_waitcnt lgkmcnt(0)\ns_mov_b32 s%d, s14" % (sST + self.nst))
        self.nst += 1; self.stnames.append(name)

    def spin_guard(self, lback):
        return ["s_cmp_lg_u32 s%d, 0" % sDEAD, "s_cbranch_scc1 %s" % lback,
                "s_add_u32 s%d, s%d, 1" % (sSPIN, sSPIN), "s_cmp_lt_u32 s%d, %d" % (sSPIN, SPIN_MAX),
                "s_cselect_b32 s%d, 0, 1" % sDEAD]

    def add_fix(self, body_reload, body_check):
        p = self.p
        lf = p.new("FIX"); lb = p.new("BACK")
        blk = [lf + ":"] + self.spin_guard(lb + "_x") + body_reload + ["s_waitcnt vmcnt(0) lgkmcnt(0)"] + body_check + \
              ["s_cbranch_vccnz %s" % lf, lb + "_x:", "s_waitcnt vmcnt(0) lgkmcnt(0)", "s_nop 7", "s_branch %s" % lb]
        self.fix.append(blk)
        return lf, lb

    def front(self):
        p = self.p
        if self.stamps:
            p("s_memrealtime s[14:15]\ns_waitcnt lgkmcnt(0)\ns_mov_b32 s%d, s14" % sST); self.nst = 1; self.stnames = ["start"]
        p("s_cmp_ge_u32 s2, 256\ns_cbranch_scc1 L_END")
        for reg, off in ((SRD_K, 8), (SRD_V, 16), (sSKP, 24), (SRD_WS, 96), (SRD_H, 32), (sQP, 0), (sDP, 40),
                         (SRD_WG, 56), (SRD_WU, 64), (SRD_WD, 72), (SRD_O, 80)):
            p("s_load_dwordx2 s[%d:%d], s[0:1], %d" % (reg, reg + 1, off))
        for reg, size in ((SRD_K, S*D*2), (SRD_V, S*D*2), (SRD_H, S*D*2), (SRD_WG, D*F*2), (SRD_WU, D*F*2), (SRD_WD, D*F*2),
                          (SRD_WS, WS_SIZE), (SRD_O, S*D*2)):
            p("s_mov_b32 s%d, 0x%x\ns_mov_b32 s%d, 0x00020000" % (reg + 2, size, reg + 3))
        p(f"""s_and_b32 s{sX}, s2, 7
s_lshr_b32 s{sJ}, s2, 3
v_lshrrev_b32 v2, 6, v0
v_and_b32 v1, 63, v0
v_readfirstlane_b32 s{sW}, v2
s_and_b32 s{sC}, s{sJ}, 7
s_and_b32 s{sHB}, s{sX}, 1
s_lshl_b32 s{sT}, s{sHB}, 3
s_add_u32 s{sC}, s{sC}, s{sT}
s_mov_b32 s{sDEAD}, 0
s_mov_b32 s{sSPIN}, 0""")
        p(f"""v_and_b32 v3, 15, v0
v_bfe_u32 v4, v0, 6, 1
v_lshl_add_u32 v3, v4, 4, v3
v_bfe_u32 v4, v0, 4, 2
v_lshrrev_b32 v5, 7, v0
v_lshl_add_u32 v4, v5, 2, v4
s_lshl_b32 s{sT}, s{sX}, 5
v_add_u32 v3, s{sT}, v3
s_lshl_b32 s{sT+1}, s{sJ}, 3
v_add_u32 v4, s{sT+1}, v4
v_lshlrev_b32 v5, 13, v4
v_lshl_add_u32 v5, v3, 2, v5
v_subrev_u32 v6, 3072, v5
v_add_u32 v7, 4096, v5
v_lshlrev_b32 v8, 4, v3""")
        p("s_waitcnt lgkmcnt(0)")
        KR, VR, SK = 24, 35, 44
        for i in range(3): p(f"buffer_load_dword v{KR+i}, v6, {srd(SRD_K)}, 0 offen offset:{1024*i}")
        for i in range(8): p(f"buffer_load_dword v{KR+3+i}, v{5 if i < 4 else 7}, {srd(SRD_K)}, 0 offen offset:{1024*(i%4)}")
        p(f"global_load_dwordx4 v[{SK}:{SK+3}], v8, s[{sSKP}:{sSKP+1}]")
        for i in range(8): p(f"buffer_load_dword v{VR+i}, v{5 if i < 4 else 7}, {srd(SRD_V)}, 0 offen offset:{1024*(i%4)}")
        p(f"""s_load_dword s{sTAG}, s[{SRD_WS}:{SRD_WS+1}], {WS_EPOCH}
s_lshl_b32 s{sT}, s{sX}, 5
s_add_u32 s{sT}, s{sT}, s{sJ}
s_lshl_b32 s{sT+1}, s{sT}, 2
s_load_dword s{sD0}, s[{sDP}:{sDP+1}], s{sT+1}""")
        QR = 48
        p(f"""v_and_b32 v9, 1, v0
v_lshlrev_b32 v9, 12, v9
v_lshrrev_b32 v10, 2, v0
v_lshl_add_u32 v9, v10, 4, v9
s_lshl_b32 s{sT+2}, s2, 13
v_add_u32 v9, s{sT+2}, v9""")
        for i in range(4): p(f"global_load_dwordx4 v[{QR+4*i}:{QR+4*i+3}], v9, s[{sQP}:{sQP+1}] offset:{1024*i}")
        HA, HB_ = 64, 74
        p(f"""s_lshl_b32 s{sT+2}, s{sT}, 13
v_lshlrev_b32 v11, 5, v0
v_add_u32 v11, s{sT+2}, v11
buffer_load_dwordx4 v[{HA}:{HA+3}], v11, {srd(SRD_H)}, 0 offen
buffer_load_dwordx4 v[{HA+4}:{HA+7}], v11, {srd(SRD_H)}, 0 offen offset:16
buffer_load_dwordx2 v[{HA+8}:{HA+9}], v11, {srd(SRD_H)}, 0 offen offset:32
buffer_load_dwordx4 v[{HB_}:{HB_+3}], v11, {srd(SRD_H)}, 0 offen offset:4
buffer_load_dwordx4 v[{HB_+4}:{HB_+7}], v11, {srd(SRD_H)}, 0 offen offset:20""")
        p(f"""s_getpc_b64 s[{sT+4}:{sT+5}]
v_lshlrev_b32 v12, 7, v0
global_load_dword v13, v12, s[{sT+4}:{sT+5}]""")
        if self.code_kb > 32:
            p(f"v_add_u32 v12, 0x8000, v12\nglobal_load_dword v14, v12, s[{sT+4}:{sT+5}]")
        p(f"s_cmp_eq_u32 s{sC}, 15\ns_cselect_b32 s{SRD_WG+2}, 0, s{SRD_WG+2}\ns_cselect_b32 s{SRD_WU+2}, 0, s{SRD_WU+2}")
        p(f"s_mul_i32 s{sT+2}, s{sC}, 192\ns_mov_b32 s{sT+3}, 2752")
        for ph in range(3):
            r = 16 + ph
            p(f"""v_add_u32 v19, {64*ph}, v1
v_mul_u32_u24 v20, 5462, v19
v_lshrrev_b32 v20, 16, v20
v_mul_u32_u24 v21, 12, v20
v_sub_u32 v21, v19, v21
v_bfe_u32 v22, v20, 2, 1
v_lshlrev_b32 v22, 1, v22
v_xor_b32 v21, v21, v22
v_mul_lo_u32 v20, v20, s{sT+3}
v_lshl_add_u32 v20, v21, 4, v20
v_add_u32 v{r}, s{sT+2}, v20""")
        for l in self.w_dma(0): p(l)
        self.stamp("issued")
        KU, VU, WU_, AC, KD = 96, 118, 134, 142, 160
        for t in range(4):
            s0, s1 = SK + t // 2, SK + 2 + t // 2
            if t % 2 == 0: p(f"v_lshlrev_b32 v{WU_+2*t}, 16, v{s0}\nv_lshlrev_b32 v{WU_+2*t+1}, 16, v{s1}")
            else: p(f"v_and_b32 v{WU_+2*t}, 0xffff0000, v{s0}\nv_and_b32 v{WU_+2*t+1}, 0xffff0000, v{s1}")
        for i in range(11): p(f"v_lshlrev_b32 v{KU+2*i}, 16, v{KR+i}\nv_and_b32 v{KU+2*i+1}, 0xffff0000, v{KR+i}")
        for s in range(8):
            p(f"v_pk_mul_f32 v[{AC+2*s}:{AC+2*s+1}], v[{KU+2*s}:{KU+2*s+1}], v[{WU_+6}:{WU_+7}]")
        for t in (2, 1, 0):
            for s in range(8):
                k = KU + 2 * (s + 3 - t)
                p(f"v_pk_fma_f32 v[{AC+2*s}:{AC+2*s+1}], v[{k}:{k+1}], v[{WU_+2*t}:{WU_+2*t+1}], v[{AC+2*s}:{AC+2*s+1}]")
        for i in range(8): p(f"v_lshlrev_b32 v{VU+2*i}, 16, v{VR+i}\nv_and_b32 v{VU+2*i+1}, 0xffff0000, v{VR+i}")
        p(f"""s_waitcnt lgkmcnt(0)
s_mul_i32 s{sTAG}, s{sTAG}, 0x9E3779B1
s_add_u32 s{sTAG}, s{sTAG}, 0x7F4A7C15
s_mov_b32 s{sT+2}, 12288
v_mul_lo_u32 v3, v3, s{sT+2}
v_lshl_add_u32 v3, v4, 4, v3
v_mov_b32 v{KD+3}, s{sTAG}
v_mov_b32 v{KD+7}, s{sTAG}
v_mov_b32 v{KD+10}, s{sTAG}
v_mov_b32 v{KD+11}, s{sTAG}""")
        for s in range(8): p(f"v_pk_mul_f32 v[{AC+2*s}:{AC+2*s+1}], v[{AC+2*s}:{AC+2*s+1}], v[{VU+2*s}:{VU+2*s+1}]")
        for pl in range(3):
            for s in range(3 * pl, min(8, 3 * pl + 3)):
                p(f"v_cvt_pk_bf16_f32 v{KD+4*pl+s-3*pl}, v{AC+2*s}, v{AC+2*s+1}")
            p(f"s_mov_b32 s{sT+2}, 0x{WS_KVG + 4096*pl:x}")
            p(f"buffer_store_dwordx4 v[{KD+4*pl}:{KD+4*pl+3}], v3, {srd(SRD_WS)}, s{sT+2} offen sc1")
        self.stamp("kvst")
        p(f"s_and_b32 s{sD1}, s{sD0}, 0xffff0000\ns_lshl_b32 s{sD0}, s{sD0}, 16")
        QA = 84
        p(f"v_mov_b32 v92, 0x3f803f80")
        for i in range(4):
            p(f"v_dot2_f32_bf16 v{QA+i}, v{QR+4*i}, v92, 0\nv_dot2_f32_bf16 v{QA+4+i}, v{QR+4*i}, v{QR+4*i}, 0")
        for k in range(1, 4):
            for i in range(4):
                p(f"v_dot2_f32_bf16 v{QA+i}, v{QR+4*i+k}, v92, v{QA+i}\nv_dot2_f32_bf16 v{QA+4+i}, v{QR+4*i+k}, v{QR+4*i+k}, v{QA+4+i}")
        for i in range(4): p(f"v_permlane32_swap_b32 v{QA+i}, v{QA+4+i}")
        for i in range(4): p(f"v_add_f32 v{QA+i}, v{QA+i}, v{QA+4+i}")
        p(f"v_permlane16_swap_b32 v{QA}, v{QA+1}\nv_permlane16_swap_b32 v{QA+2}, v{QA+3}")
        p(f"v_add_f32 v{QA}, v{QA}, v{QA+1}\nv_add_f32 v{QA+2}, v{QA+2}, v{QA+3}")
        for sh in (4, 8):
            p(f"v_add_f32 v{QA}, v{QA}, v{QA} row_ror:{sh} row_mask:0xf bank_mask:0xf\nv_add_f32 v{QA+2}, v{QA+2}, v{QA+2} row_ror:{sh} row_mask:0xf bank_mask:0xf")
        p(f"""v_and_b32 v19, 1, v0
v_lshlrev_b32 v19, 5, v19
v_add_u32 v19, {L_MISC}, v19
v_lshl_add_u32 v20, v2, 6, v19
v_bfe_u32 v21, v0, 4, 1
v_lshl_add_u32 v20, v21, 2, v20
v_bfe_u32 v21, v0, 5, 1
v_lshl_add_u32 v20, v21, 4, v20
ds_write2_b32 v20, v{QA}, v{QA+2} offset0:0 offset1:2""")
        E0, E1 = 96, 104
        for k in range(8): p(f"v_alignbit_b32 v{E0+k}, v{HA+k+1}, v{HA+k}, 16")
        for k in range(8): p(f"v_alignbit_b32 v{E1+k}, v{HA+k+2}, v{HA+k+1}, 16")
        p(f"""v_lshrrev_b32 v21, 7, v0
v_mul_u32_u24 v21, {TC_CH}, v21
v_and_b32 v22, 127, v0
v_lshl_add_u32 v21, v22, 5, v21""")
        for c, r in enumerate((HA, E0, HB_, E1)):
            p(f"ds_write_b128 v21, v[{r}:{r+3}] offset:{L_TC + c*TC_STRIDE + 32}\nds_write_b128 v21, v[{r+4}:{r+7}] offset:{L_TC + c*TC_STRIDE + 48}")
        Z = 112
        p(f"""v_mov_b32 v{Z}, 0
v_mov_b32 v{Z+1}, 0
v_mov_b32 v{Z+2}, 0
v_mov_b32 v{Z+3}, 0
v_lshlrev_b32 v{Z+7}, 16, v{HA}
v_mov_b32 v{Z+4}, 0
v_mov_b32 v{Z+5}, 0
v_mov_b32 v{Z+6}, 0
v_mov_b32 v{Z+8}, 0
v_mov_b32 v{Z+9}, 0
v_mov_b32 v{Z+10}, 0
v_mov_b32 v{Z+11}, v{HA}
v_mov_b32 v{Z+12}, 0
v_mov_b32 v{Z+13}, 0
v_mov_b32 v{Z+14}, v{Z+7}
v_mov_b32 v{Z+15}, v{E0}
v_cmp_eq_u32 vcc, 0, v22
s_and_saveexec_b64 s[{sM}:{sM+1}], vcc""")
        for c in range(4):
            p(f"ds_write_b128 v21, v[{Z}:{Z+3}] offset:{L_TC + c*TC_STRIDE}\nds_write_b128 v21, v[{Z+4*c}:{Z+4*c+3}] offset:{L_TC + c*TC_STRIDE + 16}")
        p(f"""s_mov_b64 exec, s[{sM}:{sM+1}]
v_bfe_u32 v21, v0, 5, 1
v_mul_u32_u24 v21, {U_CH}, v21
v_and_b32 v22, 31, v0
v_lshl_add_u32 v21, v22, 4, v21
ds_write_b128 v21, v[{Z}:{Z+3}] offset:{L_U}
s_waitcnt lgkmcnt(0)
s_barrier""")
        PR = 96
        for w in range(4):
            p(f"ds_read_b128 v[{PR+8*w}:{PR+8*w+3}], v19 offset:{64*w}\nds_read_b128 v[{PR+8*w+4}:{PR+8*w+7}], v19 offset:{64*w+16}")
        for k in range(8): p(f"v_add_f32 v{PR+k}, v{PR+k}, v{PR+8+k}")
        for k in range(8): p(f"v_add_f32 v{PR+16+k}, v{PR+16+k}, v{PR+24+k}")
        for k in range(8): p(f"v_add_f32 v{PR+k}, v{PR+k}, v{PR+16+k}")
        p(f"v_bfe_u32 v21, v0, 1, 1\nv_cmp_eq_u32 s[{sM}:{sM+1}], 1, v21\ns_mov_b32 s{sT+2}, 0x3b000000\ns_mov_b32 s{sT+3}, 0x3727c5ac")
        AL, BE = 128, 132
        for i in range(4): p(f"v_mul_f32 v{PR+i}, s{sT+2}, v{PR+i}")
        for i in range(4): p(f"v_fma_f32 v{PR+4+i}, v{PR+4+i}, s{sT+2}, 0")
        for i in range(4): p(f"v_fma_f32 v{PR+4+i}, -v{PR+i}, v{PR+i}, v{PR+4+i}")
        for i in range(4): p(f"v_max_f32 v{PR+4+i}, 0, v{PR+4+i}\nv_add_f32 v{PR+4+i}, s{sT+3}, v{PR+4+i}")
        for i in range(4): p(f"v_rsq_f32 v{PR+4+i}, v{PR+4+i}")
        for i in range(4): p(f"v_mul_f32 v{PR+i}, v{PR+i}, v{PR+4+i}")
        p("v_mov_b32 v21, 1.0\nv_mov_b32 v22, 0")
        for i in range(4): p(f"v_cndmask_b32 v{AL+i}, v21, v{PR+4+i}, s[{sM}:{sM+1}]\nv_cndmask_b32 v{BE+i}, v22, v{PR+i}, s[{sM}:{sM+1}]")
        QO, QT = 136, 152
        p(f"""v_lshlrev_b32 v10, 16, v10
v_and_b32 v21, 3, v0
v_lshl_add_u32 v10, v21, 4, v10
s_lshl_b32 s{sT+2}, s2, 6
s_add_u32 s{sT+2}, s{sT+2}, 0x{WS_QN:x}""")
        for k in range(4):
            for i in range(4):
                src = QR + 4 * i + k
                p(f"""v_lshlrev_b32 v{QT+2*i}, 16, v{src}
v_and_b32 v{QT+2*i+1}, 0xffff0000, v{src}""")
            for i in range(4):
                p(f"v_fma_f32 v{QT+2*i}, v{QT+2*i}, v{AL+i}, -v{BE+i}\nv_fma_f32 v{QT+2*i+1}, v{QT+2*i+1}, v{AL+i}, -v{BE+i}")
            for i in range(4):
                p(f"v_cvt_pk_bf16_f32 v{QO+4*k+i}, v{QT+2*i}, v{QT+2*i+1}")
            p(f"buffer_store_dwordx4 v[{QO+4*k}:{QO+4*k+3}], v10, {srd(SRD_WS)}, s{sT+2} offen sc1 @qn")
            p(f"s_add_u32 s{sT+2}, s{sT+2}, 16384")
        p(f"""v_and_b32 v21, 15, v0
v_lshl_add_u32 v21, v2, 5, v21
v_lshlrev_b32 v15, 14, v21
v_bfe_u32 v21, v0, 4, 1
v_lshl_add_u32 v15, v21, 5, v15
v_bfe_u32 v21, v0, 5, 1
v_lshl_add_u32 v15, v21, 4, v15
s_lshl_b32 s{sT+2}, s{sT}, 6
v_add_u32 v15, s{sT+2}, v15
v_mov_b32 v{Z}, -1
v_mov_b32 v{Z+1}, -1
v_mov_b32 v{Z+2}, -1
v_mov_b32 v{Z+3}, -1""")
        for base in (WS_X1B, WS_YB):
            for qq in range(2):
                p(f"s_mov_b32 s{sT+2}, 0x{base + qq*16*16384:x}\nbuffer_store_dwordx4 v[{Z}:{Z+3}], v15, {srd(SRD_WS)}, s{sT+2} offen sc1 @qn")
        p(f"""s_and_b32 s{sR0}, s{sJ}, 24
s_lshr_b32 s{sT+2}, s{sX}, 1
s_lshl_b32 s{sT+2}, s{sT+2}, 5
s_add_u32 s{sR0}, s{sR0}, s{sT+2}
s_and_b32 s{sCT}, s{sC}, 7
s_lshl_b32 s{sT+2}, s{sR0}, 7
s_add_u32 s{sT+2}, s{sT+2}, 0x{WS_SG[0]:x}
v_lshlrev_b32 v21, 2, v0
buffer_store_dword v{Z}, v21, {srd(SRD_WS)}, s{sT+2} offen sc1 @qn""")
        self.stamp("qn")
        self.w_addr()
        p("@wv w0\ns_barrier")
        self.w_consume(0)
        p("@wv qn\ns_waitcnt lgkmcnt(0)\ns_barrier")
        p(f"""s_lshl_b32 s{sT+2}, s{sJ}, 7
s_lshl_b32 s{sT+3}, s{sX}, 2
s_add_u32 s{sT+2}, s{sT+2}, s{sT+3}
s_add_u32 s{sT+2}, s{sT+2}, 0x{WS_FLAGS:x}
v_mov_b32 v21, 0
v_mov_b32 v22, s{sTAG}
s_mov_b64 exec, 1
buffer_store_dword v22, v21, {srd(SRD_WS)}, s{sT+2} offen sc1
s_mov_b64 exec, -1""")
        self.stamp("w0")
        G = 96
        p(f"s_mul_i32 s{sT+2}, s{sT}, 12288\ns_add_u32 s{sT+2}, s{sT+2}, 0x{WS_KVG:x}\ns_add_u32 s{sT+3}, s{sT+2}, 4096\ns_add_u32 s{sT+4}, s{sT+2}, 8192\nv_lshlrev_b32 v21, 4, v0")
        ld = [f"buffer_load_dwordx4 v[{G+4*pl}:{G+4*pl+3}], v21, {srd(SRD_WS)}, s{sT+2+pl} offen sc1" for pl in range(3)]
        chk = [f"v_xor_b32 v{G+12}, s{sTAG}, v{G+3}", f"v_xor_b32 v{G+13}, s{sTAG}, v{G+7}", f"v_xor_b32 v{G+14}, s{sTAG}, v{G+11}",
               f"v_or3_b32 v{G+12}, v{G+12}, v{G+13}, v{G+14}", f"v_cmp_ne_u32 vcc, 0, v{G+12}"]
        lf, lb = self.add_fix(ld, chk)
        for l in ld + chk: p(l)
        p(f"s_cbranch_vccnz {lf}\n{lb}:")
        dpos = lambda s: G + 4 * (s // 3) + s % 3
        p(f"s_mov_b32 s{sT+2}, 0x05040100\ns_mov_b32 s{sT+3}, 0x07060302")
        UO = 112
        for ch in range(2):
            for jj in range(4):
                p(f"v_perm_b32 v{UO+4*ch+jj}, v{dpos(6-2*jj)}, v{dpos(7-2*jj)}, s{sT+2+ch}")
        p(f"ds_write_b128 v21, v[{UO}:{UO+3}] offset:{L_U + 512}\nds_write_b128 v21, v[{UO+4}:{UO+7}] offset:{L_U + U_CH + 512}")
        p(f"""v_and_b32 v21, 15, v0
v_add_u32 v22, 1, v21
v_and_b32 v23, 3, v22
v_mul_u32_u24 v19, {TC_STRIDE}, v23
v_and_b32 v22, 28, v22
v_bfe_u32 v23, v0, 4, 2
v_lshlrev_b32 v20, 3, v23
v_sub_u32 v22, v22, v20
v_add_u32 v22, 8, v22
v_lshl_add_u32 v19, v22, 1, v19
v_lshl_add_u32 v20, v21, 1, v23
v_lshlrev_b32 v20, 4, v20
s_lshr_b32 s{sT+2}, s{sW}, 1
s_and_b32 s{sT+3}, s{sW}, 1
s_mul_i32 s{sT+4}, s{sT+2}, {TC_CH}
s_lshl_b32 s{sT+5}, s{sT+3}, 8
s_add_u32 s{sT+4}, s{sT+4}, s{sT+5}
v_add_u32 v19, s{sT+4}, v19
s_mul_i32 s{sT+4}, s{sT+2}, {U_CH}
s_sub_u32 s{sT+4}, s{sT+4}, s{sT+5}
s_add_u32 s{sT+4}, s{sT+4}, {L_U}
v_add_u32 v20, s{sT+4}, v20
s_waitcnt lgkmcnt(0)
s_barrier""")
        self.stamp("kvg")

    def w_dma(self, b):
        L = [f"s_mul_i32 s{sT+6}, s{sW}, {4*44032}", f"s_add_u32 s{sT+6}, s{sT+6}, {b*16*44032}",
             f"s_mul_i32 s{sT+7}, s{sW}, {4*3072}", f"s_add_u32 s{sT+7}, s{sT+7}, {L_WST}"]
        for blk in range(4):
            for (sr, lo) in ((SRD_WG, 0), (SRD_WU, WST_UP)):
                for ph in range(3):
                    L.append(f"s_add_u32 m0, s{sT+7}, {lo + blk*3072 + ph*1024}")
                    L.append(f"buffer_load_dwordx4 v{16+ph}, {srd(sr)}, s{sT+6} offen lds @w{b}")
            L.append(f"s_add_u32 s{sT+6}, s{sT+6}, 44032")
        return L

    def w_addr(self):
        p = self.p
        p(f"""v_bfe_u32 v21, v0, 2, 4
v_mul_u32_u24 v24, 192, v21
v_bfe_u32 v22, v0, 4, 1
v_xor_b32 v23, v22, v2
v_lshl_add_u32 v25, v23, 5, v24
v_and_b32 v23, 3, v0
v_lshl_add_u32 v25, v23, 3, v25
v_lshlrev_b32 v22, 1, v22
v_add_u32 v27, 8, v2
v_xor_b32 v27, v27, v22
v_lshl_add_u32 v26, v27, 4, v24
v_and_b32 v27, 1, v0
v_lshl_add_u32 v26, v27, 3, v26
v_bfe_u32 v27, v0, 1, 1
v_mul_u32_u24 v27, {WST_UP}, v27
v_add3_u32 v26, v26, v27, 0
v_add_u32 v26, {L_WST}, v26
v_add_u32 v24, {L_WST}, v25
v_add_u32 v25, {L_WST + WST_UP}, v25
v_mov_b32 v28, 0x3f803f80
v_mov_b32 v29, 0x3f803f80
v_mov_b32 v30, 0x3f803f80
v_mov_b32 v31, 0x3f803f80""")

    CS = 32
    def w_consume(self, b):
        p = self.p
        rd = []; mf = []
        for k in range(8):
            kk = 8 * b + k
            for t in range(3):
                for h in range(2):
                    rd.append(f"ds_read_b64_tr_b16 {ar(64*t + 4*kk + 2*h, 2)}, v{24+t} offset:{k*6144 + h*3072}")
                mf.append(mfma(self.CS + 4*t, ar(64*t + 4*kk, 4), "v[28:31]", "0" if kk == 0 else None))
        for l in rd[:12]: p(l)
        for l in weave(mf, [[(i // 2, t) for i, t in enumerate(rd[12:])]]): p(l)

    def conv(self):
        p = self.p
        ACC = 48
        FA = (80, 144); FB = (112, 176)
        QNR = 208
        def loads(it):
            eo = 2 * it + 1
            L = []
            for r in range(8):
                L.append(f"ds_read_b128 v[{FB[it%2]+4*r}:{FB[it%2]+4*r+3}], v20 offset:{512*r - 32*eo + 512}")
                L.append(f"ds_read_b64 v[{FA[it%2]+4*r}:{FA[it%2]+4*r+1}], v19 offset:{512*r + 32*eo}")
                L.append(f"ds_read_b64 v[{FA[it%2]+4*r+2}:{FA[it%2]+4*r+3}], v19 offset:{512*r + 32*eo + 8}")
            return L
        for l in loads(0)[:15]: p(l)
        p(f"v_mov_b32 v228, -1\nv_mov_b32 v229, -1\nv_mov_b32 v230, -1\nv_mov_b32 v231, -1")
        wd = self.w_dma(1)
        side = []
        side.append(f"s_mul_i32 s{sT+8}, s{sR0}, {HF_PITCH}")
        side.append(f"s_mul_i32 s{sT+9}, s{sC}, 3072")
        side.append(f"s_add_u32 s{sT+8}, s{sT+8}, s{sT+9}")
        side.append(f"s_add_u32 s{sT+8}, s{sT+8}, 0x{WS_HF[0]:x}")
        allm = []
        per_it = []
        for it in range(4):
            mf = []
            for q in range(8):
                for r in range(q + 1):
                    mf.append(mfma(ACC + 4*q, vr(FA[it%2] + 4*r, 4), vr(FB[it%2] + 4*(q - r), 4), "0" if (it == 0 and r == 0) else None))
            per_it.append(mf)
        pois = ["v_lshlrev_b32 v22, 4, v1", f"v_mul_u32_u24 v23, {2*HF_PITCH}, v2", "v_add_u32 v22, v22, v23"]
        for r in range(2):
            for i in range(3): pois.append(f"buffer_store_dwordx4 v[228:231], v22, {srd(SRD_WS)}, s{sT+8} offen offset:{1024*i} sc1 @hp")
            pois.append(f"s_add_u32 s{sT+8}, s{sT+8}, {HF_PITCH}")
        flg_ld = [f"buffer_load_dwordx4 v[224:227], v21, {srd(SRD_WS)}, s{sT+10} offen sc1"]
        flg_chk = [f"v_xor_b32 v{224+n}, s{sTAG}, v{224+n}" for n in range(4)] + \
                  ["v_or3_b32 v224, v224, v225, v226", "v_or_b32 v224, v224, v227", "v_cmp_ne_u32 vcc, 0, v224"]
        lf, lb = self.add_fix(flg_ld, flg_chk)
        qn_addr = ["v_and_b32 v22, 15, v0", "v_lshlrev_b32 v22, 7, v22", "v_bfe_u32 v23, v0, 5, 1", "v_lshl_add_u32 v22, v23, 6, v22",
                   "v_bfe_u32 v23, v0, 4, 1", "v_lshl_add_u32 v22, v23, 4, v22", "v_lshl_add_u32 v22, v2, 12, v22",
                   f"s_lshl_b32 s{sT+11}, s{sT}, 14", f"s_add_u32 s{sT+11}, s{sT+11}, 0x{WS_QN:x}"]
        qn_ld = [f"buffer_load_dwordx4 v[{QNR+8*qq+4*u}:{QNR+8*qq+4*u+3}], v22, {srd(SRD_WS)}, s{sT+11} offen offset:{2048*qq + 32*u} sc1"
                 for qq in range(2) for u in range(2)]
        rs_addr = ["v_lshlrev_b32 v14, 4, v1", "v_lshl_add_u32 v14, v2, 13, v14"]
        nw = len(wd)
        for it in range(4):
            st0 = []
            if it == 0:
                st0 += [(0, t) for t in loads(0)[15:]]
            if it < 3:
                st0 += [(6 + i, t) for i, t in enumerate(loads(it + 1))]
            st1 = []; st2 = []
            if it == 0:
                st1 = [(8, t) for t in side + pois]
                st2 = [(10 + i // 2, t) for i, t in enumerate(wd[:4 + 13 * 1])]
            elif it == 1:
                st1 = [(0, f"s_mov_b32 s{sT+10}, 0x{WS_FLAGS:x}"), (0, "v_lshrrev_b32 v21, 1, v1"), (0, "v_lshlrev_b32 v21, 7, v21"), (0, "v_and_b32 v23, 1, v1"), (0, "v_lshl_add_u32 v21, v23, 4, v21")] + [(1, t) for t in flg_ld] + [(4, t) for t in qn_addr + rs_addr]
                st2 = [(4 + i, t) for i, t in enumerate(wd[4 + 13:4 + 13 * 3])]
            elif it == 2:
                st1 = [(2, t) for t in flg_chk + [f"s_cbranch_vccnz {lf}", lb + ":"] + qn_ld]
                st2 = [(12 + i, t) for i, t in enumerate(wd[4 + 13 * 3:])]
            else:
                st1 = [(0, "s_waitcnt lgkmcnt(0)"), (1, "s_barrier")]
                g = 0
                for q in range(8):
                    g += q + 1
                    st1.append((g + 7, f"ds_write_b128 v14, v[{ACC+4*q}:{ACC+4*q+3}] offset:{L_RS + 1024*q}"))
            for l in weave(per_it[it], [st0, st1, st2]): p(l)
        self.stamp("convloop")
        p("@wv hp,w1\ns_waitcnt lgkmcnt(0)\ns_barrier")
        T = 80
        p("v_lshlrev_b32 v14, 4, v1\nv_lshl_add_u32 v14, v2, 11, v14")
        for qq in range(2):
            for sw in range(4):
                p(f"ds_read_b128 v[{T+16*qq+4*sw}:{T+16*qq+4*sw+3}], v14 offset:{L_RS + 8192*sw + 1024*qq}")
        p(f"""v_and_b32 v21, 15, v0
v_lshlrev_b32 v21, 5, v21
v_bfe_u32 v23, v0, 5, 1
v_lshl_add_u32 v21, v23, 4, v21
v_bfe_u32 v23, v0, 4, 1
v_xor_b32 v23, 1, v23
v_lshl_add_u32 v21, v23, 3, v21
v_lshl_add_u32 v21, v2, 10, v21""")
        KV = 112
        for qq in range(2):
            for ch in range(2):
                p(f"ds_read_b64 v[{KV+4*qq+2*ch}:{KV+4*qq+2*ch+1}], v21 offset:{L_U + ch*U_CH + 512 + 512*qq}")
        Y = 120; XO = 144; YO = 152; TM = 160
        for qq in range(2):
            for ch in range(2):
                a0 = T + 16*qq + 8*ch; y = Y + 8*qq + 4*ch; kv = KV + 4*qq + 2*ch
                for r in range(4): p(f"v_add_f32 v{y+r}, v{a0+r}, v{a0+4+r}")
                p(f"v_and_b32 v{TM}, 0xffff0000, v{kv+1}\nv_lshlrev_b32 v{TM+1}, 16, v{kv+1}\nv_and_b32 v{TM+2}, 0xffff0000, v{kv}\nv_lshlrev_b32 v{TM+3}, 16, v{kv}")
                for r in range(4): p(f"v_fmac_f32 v{y+r}, s{sD0+ch}, v{TM+r}")
        for qq in range(2):
            for ch in range(2):
                y = Y + 8*qq + 4*ch; qv = QNR + 8*qq
                for r in range(4):
                    if ch == 0: p(f"v_lshlrev_b32 v{TM+r}, 16, v{qv+r}\nv_lshlrev_b32 v{TM+4+r}, 16, v{qv+4+r}")
                    else: p(f"v_and_b32 v{TM+r}, 0xffff0000, v{qv+r}\nv_and_b32 v{TM+4+r}, 0xffff0000, v{qv+4+r}")
                for r in range(4): p(f"v_fmac_f32 v{TM+r}, v{TM+4+r}, v{y+r}")
                o = XO + 4*qq + 2*ch
                p(f"v_cvt_pk_bf16_f32 v{o}, v{TM}, v{TM+1}\nv_cvt_pk_bf16_f32 v{o+1}, v{TM+2}, v{TM+3}")
            o = XO + 4*qq
            p(f"v_permlane16_swap_b32 v{o}, v{o+2}\nv_permlane16_swap_b32 v{o+1}, v{o+3}")
            p(f"s_mov_b32 s{sT+2}, 0x{WS_X1B + qq*16*16384:x}\nbuffer_store_dwordx4 v[{o}:{o+3}], v15, {srd(SRD_WS)}, s{sT+2} offen sc1")
        for qq in range(2):
            for ch in range(2):
                y = Y + 8*qq + 4*ch; o = YO + 4*qq + 2*ch
                p(f"v_cvt_pk_bf16_f32 v{o}, v{y}, v{y+1}\nv_cvt_pk_bf16_f32 v{o+1}, v{y+2}, v{y+3}")
            o = YO + 4*qq
            p(f"v_permlane16_swap_b32 v{o}, v{o+2}\nv_permlane16_swap_b32 v{o+1}, v{o+3}")
            p(f"s_mov_b32 s{sT+2}, 0x{WS_YB + qq*16*16384:x}\nbuffer_store_dwordx4 v[{o}:{o+3}], v15, {srd(SRD_WS)}, s{sT+2} offen sc1")
        self.stamp("x1st")

    def finish(self):
        p = self.p
        p(f"""s_cmp_lg_u32 s2, 0
s_cbranch_scc1 L_NOEP
v_mov_b32 v21, 0
v_mov_b32 v22, s{sTAG}
s_mov_b64 exec, 1
buffer_store_dword v22, v21, {srd(SRD_WS)}, 0 offen sc1
s_mov_b64 exec, -1
L_NOEP:""")
        if self.stamps:
            p("s_waitcnt vmcnt(0)")
            self.stamp("end")
            p(f"s_cmp_lg_u32 s{sW}, 0\ns_cbranch_scc1 L_END")
            p(f"s_lshl_b32 s{sT}, s2, 6\ns_add_u32 s{sT}, s{sT}, 0x{WS_DBG:x}\nv_mov_b32 v21, 0\ns_mov_b64 exec, 1")
            for i in range(self.nst):
                p(f"v_mov_b32 v22, s{sST+i}\nbuffer_store_dword v22, v21, {srd(SRD_WS)}, s{sT} offen offset:{4*i}")
            p(f"v_mov_b32 v22, s{sSPIN}\nbuffer_store_dword v22, v21, {srd(SRD_WS)}, s{sT} offen offset:60")
        p("L_END:\ns_endpgm")
        for blk in self.fix:
            p.fresh()
            for l in blk: p(l)

    def build(self):
        self.code_kb = 64
        self.front()
        self.conv()
        if self.stop != "conv":
            from gen_mlp import mlp
            mlp(self)
        self.finish()
        body = self.p.finalize()
        for e in self.extra: body += e.finalize()
        txt = [HEADER, f"; @launch grid=(256,1,1) block=(256,1,1) lds={LDS_SIZE}", '.amdgcn_target "amdgcn-amd-amdhsa--gfx950"', ".text",
               f".globl {NAME}", ".p2align 8", f".type {NAME},@function", NAME + ":"] + body
        txt += [".p2align 8", f".fill (65536 + 2048 - (. - {NAME})) / 4, 4, 0xbf800000"]
        txt += ['.section .rodata,"a"', ".p2align 6", f".amdhsa_kernel {NAME}", "  .amdhsa_next_free_vgpr 512", "  .amdhsa_next_free_sgpr 102",
                "  .amdhsa_accum_offset 256", "  .amdhsa_group_segment_fixed_size 0", "  .amdhsa_kernarg_size 104", "  .amdhsa_user_sgpr_count 2",
                "  .amdhsa_user_sgpr_kernarg_segment_ptr 1", "  .amdhsa_system_sgpr_workgroup_id_x 1", ".end_amdhsa_kernel"]
        t = "\n".join(txt) + "\n"
        if self.probe is not None: t = add_probe(t, *self.probe)
        return t

def add_probe(t, col, K, mode="max"):
    t = t.replace(f"; @launch grid=(256,1,1) block=(256,1,1) lds={LDS_SIZE}",
                  f"; @launch kernel={NAME} grid=(256,1,1) block=(256,1,1) lds={LDS_SIZE}\n; @launch kernel=probe_kernel grid=(1,1,1) block=(64,1,1) lds=0")
    red = "v_max_u32" if mode == "max" else "v_add_u32"
    code = [".text", ".globl probe_kernel", ".p2align 8", ".type probe_kernel,@function", "probe_kernel:",
            "s_cmp_ge_u32 s2, 1", "s_cbranch_scc1 PR_END", "s_load_dwordx2 s[4:5], s[0:1], 96", "s_waitcnt lgkmcnt(0)",
            f"s_add_u32 s4, s4, 0x{WS_DBG:x}", "s_addc_u32 s5, s5, 0", "v_lshlrev_b32 v1, 8, v0"]
    for i in range(4):
        code += [f"global_load_dword v{2+i}, v1, s[4:5] offset:{64*i}", f"global_load_dword v{6+i}, v1, s[4:5] offset:{64*i + 4*col}"]
    code += ["s_waitcnt vmcnt(0)", "v_min_u32 v2, v2, v3", "v_min_u32 v4, v4, v5", "v_min_u32 v2, v2, v4"]
    code += ["s_mov_b32 s10, -1", "s_nop 2"]
    for l in range(64): code += [f"v_readlane_b32 s11, v2, {l}", "s_nop 0", "s_min_u32 s10, s10, s11"]
    for i in range(4): code += [f"v_subrev_u32 v{6+i}, s10, v{6+i}"]
    code += [f"{red} v6, v6, v7", f"{red} v8, v8, v9", f"{red} v6, v6, v8", "s_mov_b32 s12, 0", "s_nop 2"]
    for l in range(64): code += [f"v_readlane_b32 s11, v6, {l}", "s_nop 0", ("s_max_u32" if mode == "max" else "s_add_u32") + " s12, s12, s11"]
    if mode != "max": code += ["s_lshr_b32 s12, s12, 8"]
    code += [f"s_mul_i32 s12, s12, {K}", "s_min_u32 s12, s12, 200000", "s_memrealtime s[14:15]", "s_waitcnt lgkmcnt(0)",
             "PR_LOOP:", "s_memrealtime s[16:17]", "s_waitcnt lgkmcnt(0)", "s_sub_u32 s16, s16, s14", "s_cmp_lt_u32 s16, s12", "s_cbranch_scc1 PR_LOOP",
             "PR_END:", "s_endpgm"]
    kd = [".p2align 6", ".amdhsa_kernel probe_kernel", "  .amdhsa_next_free_vgpr 32", "  .amdhsa_next_free_sgpr 32", "  .amdhsa_accum_offset 32",
          "  .amdhsa_group_segment_fixed_size 0", "  .amdhsa_kernarg_size 104", "  .amdhsa_user_sgpr_count 2",
          "  .amdhsa_user_sgpr_kernarg_segment_ptr 1", "  .amdhsa_system_sgpr_workgroup_id_x 1", ".end_amdhsa_kernel"]
    t = t.replace('.section .rodata,"a"', "\n".join(code) + '\n.section .rodata,"a"')
    return t + "\n".join(kd) + "\n"

if __name__ == "__main__":
    import argparse
    ap = argparse.ArgumentParser()
    ap.add_argument("-o", default="k.s")
    ap.add_argument("--stop", default=None)
    ap.add_argument("--stamps", action="store_true")
    ap.add_argument("--skip", default="")
    ap.add_argument("--probe", default="")
    a = ap.parse_args()
    g = Gen(stop=a.stop, stamps=a.stamps, skip=a.skip.split(','))
    if a.probe:
        q = a.probe.split(","); g.probe = (int(q[0]), int(q[1]), q[2] if len(q) > 2 else "max")
    t = g.build()
    open(a.o, "w").write(t)
    open(a.o + ".stamps", "w").write(" ".join(g.stnames))
    print("lines", g.p.stats, "stamps", g.stnames)
```

```python
import sys
sys.path.insert(0, "tools")
from pg import weave, Weaver
from gen import *

WS = srd(SRD_WS)
fTW, fUZ, fRSW, fRSR, fKVR, fHP, fFA, fFB = range(220, 228)
QT8 = 228
fK, fKh, fK4, fSK, fKVG, fH, fPF = range(236, 243)
fWD = 243
fWT = 246
fCO, fCA, fCB, fT16 = 252, 253, 254, 255
ONE = 212
POI = 236
GR = 208
CS = 32
WH = (61376, 110560); WUP = 24576 + 16
sP = sT
sWs, sWm = sT + 6, sT + 7

NOW = [0]; ASC = [0]
def w_round(r):
    if NOW[0] == 2: return []
    o = [f"s_mul_i32 s{sWs}, s{sW}, {2*44032}", f"s_add_u32 s{sWs}, s{sWs}, {r*8*44032}"]
    for blk in range(2):
        for (sr, lo) in ((SRD_WG, 0), (SRD_WU, WUP)):
            for ph in range(3):
                o.append(f"s_add_u32 m0, s{sWm}, {WH[r % 2] + lo + blk*3072 + ph*1024}\nbuffer_load_dwordx4 v{fWD+ph}, {srd(sr)}, s{sWs} offen lds @w{r}")
        if blk == 0: o.append(f"s_add_u32 s{sWs}, s{sWs}, 44032")
    return o

def w_tr(r):
    return [f"ds_read_b64_tr_b16 {ar(64*t + 4*(4*r + k) + 2*h, 2)}, v{fWT + 3*(r % 2) + t} offset:{k*6144 + h*3072} @t{r}"
            for k in range(4) for t in range(3) for h in range(2)]

def w_cs(r):
    return [mfma(CS + 4*t, ar(64*t + 4*(4*r + k), 4), vr(ONE, 4), "0" if (r == 0 and k == 0) else None) for k in range(4) for t in range(3)]

def sprinkle(lines, extra, every, start=0):
    out = []; due = 0
    for i, l in enumerate(lines):
        out.append(l)
        if i >= start and (i - start) % every == 0: due = 1
        if due and not (i + 1 < len(lines) and lines[i + 1].startswith(("s_cselect", "s_cbranch", "s_addc"))):
            due = 0
            while extra and "\n" not in extra[0] and not extra[0].startswith(("buffer", "global")): out.append(extra.pop(0))
            if extra: out.append(extra.pop(0))
    return out

def front(G):
    import gen_mlp as M
    p = G.p
    NOW[0] = G.opt.get("nw", 0); ASC[0] = G.opt.get("asc", 0)
    if G.stamps:
        p("s_memrealtime s[14:15]\ns_waitcnt lgkmcnt(0)\ns_mov_b32 s%d, s14" % sST); G.nst = 1; G.stnames = ["start"]
    p("s_cmp_ge_u32 s2, 256\ns_cbranch_scc1 L_END")
    for reg, off in ((SRD_K, 8), (SRD_V, 16), (sSKP, 24), (SRD_WS, 96), (SRD_H, 32), (sQP, 0), (sDP, 40),
                     (SRD_WG, 56), (SRD_WU, 64), (SRD_WD, 72), (SRD_O, 80)):
        p("s_load_dwordx2 s[%d:%d], s[0:1], %d" % (reg, reg + 1, off))
    p(f"""s_and_b32 s{sX}, s2, 7
s_lshr_b32 s{sJ}, s2, 3
v_lshrrev_b32 v2, 6, v0
v_and_b32 v1, 63, v0
v_and_b32 v21, 15, v0
v_bfe_u32 v22, v0, 6, 1
v_lshl_add_u32 v21, v22, 4, v21
v_bfe_u32 v22, v0, 4, 2
v_lshrrev_b32 v23, 7, v0
v_lshl_add_u32 v22, v23, 2, v22
s_lshl_b32 s{sT+1}, s{sX}, 5
v_add_u32 v21, s{sT+1}, v21
s_lshl_b32 s{sT+2}, s{sJ}, 3
v_add_u32 v22, s{sT+2}, v22
v_lshlrev_b32 v{fK}, 13, v22
v_lshl_add_u32 v{fK}, v21, 2, v{fK}
v_subrev_u32 v{fKh}, 3072, v{fK}
v_add_u32 v{fK4}, 4096, v{fK}
v_lshlrev_b32 v{fSK}, 4, v21
v_mul_u32_u24 v{fKVG}, 12288, v21
v_lshl_add_u32 v{fKVG}, v22, 4, v{fKVG}
s_add_u32 s{sP}, s{sT+1}, s{sJ}""")
    for reg, size in ((SRD_K, S*D*2), (SRD_V, S*D*2), (SRD_H, S*D*2), (SRD_WG, D*F*2), (SRD_WU, D*F*2), (SRD_WD, D*F*2),
                      (SRD_WS, WS_SIZE), (SRD_O, S*D*2)):
        p("s_mov_b32 s%d, 0x%x\ns_mov_b32 s%d, 0x00020000" % (reg + 2, size, reg + 3))
    p(f"""v_readfirstlane_b32 s{sW}, v2
s_lshl_b32 s{sT+2}, s{sP}, 13
v_lshlrev_b32 v{fH}, 5, v0
v_add_u32 v{fH}, s{sT+2}, v{fH}
s_and_b32 s{sCT}, s{sJ}, 7
s_and_b32 s{sHB}, s{sX}, 1
s_lshl_b32 s{sC}, s{sHB}, 3
s_add_u32 s{sC}, s{sC}, s{sCT}
s_and_b32 s{sR0}, s{sJ}, 24
s_lshr_b32 s{sT+2}, s{sX}, 1
s_lshl_b32 s{sT+2}, s{sT+2}, 5
s_add_u32 s{sR0}, s{sR0}, s{sT+2}
s_waitcnt lgkmcnt(0)""")
    KR, VR, SK, HA, HB_ = 48, 59, 68, 88, 98
    for i in range(3): p(f"buffer_load_dword v{KR+i}, v{fKh}, {srd(SRD_K)}, 0 offen offset:{1024*i}")
    for i in range(8): p(f"buffer_load_dword v{KR+3+i}, v{fK if i < 4 else fK4}, {srd(SRD_K)}, 0 offen offset:{1024*(i%4)}")
    p(f"global_load_dwordx4 v[{SK}:{SK+3}], v{fSK}, s[{sSKP}:{sSKP+1}]")
    for i in range(8): p(f"buffer_load_dword v{VR+i}, v{fK if i < 4 else fK4}, {srd(SRD_V)}, 0 offen offset:{1024*(i%4)}")
    p(f"""s_load_dword s{sTAG}, s[{SRD_WS}:{SRD_WS+1}], {WS_EPOCH}
s_lshl_b32 s{sT+1}, s{sP}, 2
s_load_dword s{sD0}, s[{sDP}:{sDP+1}], s{sT+1}""")
    p(f"""s_getpc_b64 s[{sT+4}:{sT+5}]
s_lshl_b32 s{sT+2}, s{sJ}, 11
v_and_b32 v{fPF}, 15, v0
v_lshlrev_b32 v{fPF}, 7, v{fPF}
v_add_u32 v{fPF}, s{sT+2}, v{fPF}
global_load_dword v{fPF}, v{fPF}, s[{sT+4}:{sT+5}]""")
    LD = f"""buffer_load_dwordx4 v[{HA}:{HA+3}], v{fH}, {srd(SRD_H)}, 0 offen
buffer_load_dwordx4 v[{HA+4}:{HA+7}], v{fH}, {srd(SRD_H)}, 0 offen offset:16
buffer_load_dwordx2 v[{HA+8}:{HA+9}], v{fH}, {srd(SRD_H)}, 0 offen offset:32
buffer_load_dwordx4 v[{HB_}:{HB_+3}], v{fH}, {srd(SRD_H)}, 0 offen offset:4
buffer_load_dwordx4 v[{HB_+4}:{HB_+7}], v{fH}, {srd(SRD_H)}, 0 offen offset:20""".split("\n")
    A0 = M.early_lines() + [f"v_add_u32 v23, s{M.sOB}, v{M.vOA}", "v_add_u32 v22, 0x10000, v23"]
    for l in sprinkle(A0, LD, 4) + LD: p(l)
    p(f"global_load_dwordx4 v[{QT8}:{QT8+3}], v23, s[{sQP}:{sQP+1}]\nglobal_load_dwordx4 v[{QT8+4}:{QT8+7}], v22, s[{sQP}:{sQP+1}]")
    A = f"""s_mov_b32 s{sDEAD}, 0
s_mov_b32 s{sSPIN}, 0
s_cmp_ge_u32 s{sC}, {0 if NOW[0] else 15}
s_cselect_b32 s{SRD_WG+2}, 0, s{SRD_WG+2}
s_cselect_b32 s{SRD_WU+2}, 0, s{SRD_WU+2}
s_mul_i32 s{sT+2}, s{sC}, 192
s_mul_i32 s{sWm}, s{sW}, {2*3072}""".split("\n")
    if G.stamps: A += ["s_mov_b32 s88, 0", "s_mov_b32 s89, 0"]
    for ph in range(3):
        A += f"""v_add_u32 v21, {64*ph}, v1
v_mul_u32_u24 v22, 5462, v21
v_lshrrev_b32 v22, 16, v22
v_mul_u32_u24 v23, 12, v22
v_sub_u32 v21, v21, v23
v_bfe_u32 v23, v22, 2, 1
v_lshlrev_b32 v23, 1, v23
v_xor_b32 v21, v21, v23
v_mul_u32_u24 v22, 2752, v22
v_lshl_add_u32 v22, v21, 4, v22
v_add_u32 v{fWD+ph}, s{sT+2}, v22""".split("\n")
    nA = len(A)
    A += [f"v_mov_b32 v{POI+i}, -1" for i in range(4)]
    A += f"""v_bfe_u32 v21, v0, 4, 1
v_bfe_u32 v22, v0, 5, 1
v_and_b32 v23, 15, v0
v_lshl_add_u32 v{fCO}, v2, 5, v23
v_mul_u32_u24 v{fCO}, {XP}, v{fCO}
v_lshl_add_u32 v{fCO}, v21, 5, v{fCO}
v_lshl_add_u32 v{fCO}, v22, 4, v{fCO}
s_lshl_b32 s{sT+2}, s{sP}, 6
v_add_u32 v{fCO}, s{sT+2}, v{fCO}
v_lshlrev_b32 v{fKVR}, 5, v23
v_lshl_add_u32 v{fKVR}, v22, 4, v{fKVR}
v_xor_b32 v21, 1, v21
v_lshl_add_u32 v{fKVR}, v21, 3, v{fKVR}
v_lshl_add_u32 v{fKVR}, v2, 10, v{fKVR}
v_lshrrev_b32 v21, 7, v0
v_mul_u32_u24 v{fTW}, {TC_CH}, v21
v_and_b32 v22, 127, v0
v_lshl_add_u32 v{fTW}, v22, 5, v{fTW}
v_cmp_eq_u32 s[{sM}:{sM+1}], 0, v22
v_bfe_u32 v21, v0, 5, 1
v_mul_u32_u24 v{fUZ}, {U_CH}, v21
v_and_b32 v22, 31, v0
v_lshl_add_u32 v{fUZ}, v22, 4, v{fUZ}
v_lshlrev_b32 v{fT16}, 4, v0""".split("\n")
    A += M.setup_early()
    G.late = M.setup_late()
    A2 = f"""v_bfe_u32 v21, v0, 2, 4
v_mul_u32_u24 v{fWT}, 192, v21
v_bfe_u32 v22, v0, 4, 1
v_xor_b32 v23, v22, v2
v_lshl_add_u32 v{fWT+1}, v23, 5, v{fWT}
v_and_b32 v23, 3, v0
v_lshl_add_u32 v{fWT+1}, v23, 3, v{fWT+1}
v_lshlrev_b32 v22, 1, v22
v_add_u32 v23, 8, v2
v_xor_b32 v23, v23, v22
v_lshl_add_u32 v{fWT+2}, v23, 4, v{fWT}
v_and_b32 v23, 1, v0
v_lshl_add_u32 v{fWT+2}, v23, 3, v{fWT+2}
v_bfe_u32 v23, v0, 1, 1
v_mul_u32_u24 v23, {WUP}, v23
v_add_u32 v{fWT+2}, v{fWT+2}, v23
v_add_u32 v{fWT+2}, {WH[0]}, v{fWT+2}
v_add_u32 v{fWT}, {WH[0]}, v{fWT+1}
v_add_u32 v{fWT+1}, {WH[0] + WUP}, v{fWT+1}""".split("\n")
    A2 += [f"v_add_u32 v{fWT+3+t}, {WH[1]-WH[0]}, v{fWT+t}" for t in range(3)]
    A2 += f"""v_lshl_add_u32 v{fRSW}, v2, 13, v{M.vL16}
v_lshl_add_u32 v{fRSR}, v2, 11, v{M.vL16}
v_mul_u32_u24 v22, {HF_PITCH}, v2
v_add_u32 v{fHP}, v{M.vL16}, v22
v_and_b32 v23, 15, v0
v_add_u32 v22, 1, v23
v_and_b32 v21, 3, v22
v_mul_u32_u24 v{fCA}, {TC_STRIDE}, v21
v_and_b32 v22, 28, v22
v_bfe_u32 v21, v0, 4, 2
v_lshl_add_u32 v{fCB}, v23, 1, v21
v_lshlrev_b32 v{fCB}, 4, v{fCB}
v_lshlrev_b32 v21, 3, v21
v_sub_u32 v22, v22, v21
v_add_u32 v22, 8, v22
v_lshl_add_u32 v{fCA}, v22, 1, v{fCA}
s_lshr_b32 s{sT+2}, s{sW}, 1
s_and_b32 s{sT+3}, s{sW}, 1
s_mul_i32 s{sT+4}, s{sT+2}, {TC_CH}
s_lshl_b32 s{sT+5}, s{sT+3}, 8
s_add_u32 s{sT+4}, s{sT+4}, s{sT+5}
v_add_u32 v{fCA}, s{sT+4}, v{fCA}
s_mul_i32 s{sT+4}, s{sT+2}, {U_CH}
s_sub_u32 s{sT+4}, s{sT+4}, s{sT+5}
s_add_u32 s{sT+4}, s{sT+4}, {L_U}
v_add_u32 v{fCB}, s{sT+4}, v{fCB}
v_and_b32 v21, 31, v0
v_lshlrev_b32 v{fFA}, 7, v21
s_lshr_b32 s{sT+2}, s{sX}, 1
s_lshl_b32 s{sT+2}, s{sT+2}, 12
s_lshl_b32 s{sT+3}, s{sCT}, 2
s_add_u32 s{sT+2}, s{sT+2}, s{sT+3}
v_add_u32 v{fFA}, s{sT+2}, v{fFA}
v_bfe_u32 v21, v0, 4, 2
v_lshlrev_b32 v{fFB}, 12, v21
v_and_b32 v21, 7, v0
v_lshl_add_u32 v{fFB}, v21, 7, v{fFB}
v_bfe_u32 v21, v0, 3, 1
v_lshl_add_u32 v{fFB}, v21, 2, v{fFB}
s_and_b32 s{sT+2}, s{sJ}, 24
s_lshl_b32 s{sT+2}, s{sT+2}, 7
s_and_b32 s{sT+3}, s{sX}, 6
s_lshl_b32 s{sT+3}, s{sT+3}, 2
s_add_u32 s{sT+2}, s{sT+2}, s{sT+3}
v_add_u32 v{fFB}, s{sT+2}, v{fFB}""".split("\n")
    WQ = w_round(0) + w_round(1)
    def take(n):
        o = []
        while WQ and (n > 0 or "\n" not in WQ[0]):
            if "\n" in WQ[0]: n -= 1
            o.append(WQ.pop(0))
        return o
    u = take(G.opt.get("n0", 0))
    for l in sprinkle(A, u, G.opt.get("n0e", 14), nA) + u: p(l)
    print("front: A", len(A), "A2", len(A2))
    G.stamp("issued")
    if G.stamps and "kvin" in G.skip:
        p(f"v_mov_b32 v21, v{VR+7}"); G.stamp("kvin")
    KU, VU, WU_, AC, KD = 108, 130, 146, 154, 172
    for t in range(4):
        s0, s1 = SK + t // 2, SK + 2 + t // 2
        if t % 2 == 0: p(f"v_lshlrev_b32 v{WU_+2*t}, 16, v{s0}\nv_lshlrev_b32 v{WU_+2*t+1}, 16, v{s1}")
        else: p(f"v_and_b32 v{WU_+2*t}, 0xffff0000, v{s0}\nv_and_b32 v{WU_+2*t+1}, 0xffff0000, v{s1}")
    for i in range(11): p(f"v_lshlrev_b32 v{KU+2*i}, 16, v{KR+i}\nv_and_b32 v{KU+2*i+1}, 0xffff0000, v{KR+i}")
    for s in range(8):
        p(f"v_pk_mul_f32 v[{AC+2*s}:{AC+2*s+1}], v[{KU+2*s}:{KU+2*s+1}], v[{WU_+6}:{WU_+7}]")
    for t in (2, 1, 0):
        for s in range(8):
            k = KU + 2 * (s + 3 - t)
            p(f"v_pk_fma_f32 v[{AC+2*s}:{AC+2*s+1}], v[{k}:{k+1}], v[{WU_+2*t}:{WU_+2*t+1}], v[{AC+2*s}:{AC+2*s+1}]")
    p(f"""s_waitcnt lgkmcnt(0)
s_mul_i32 s{sTAG}, s{sTAG}, 0x9E3779B1
s_add_u32 s{sTAG}, s{sTAG}, 0x7F4A7C15
v_mov_b32 v{KD+3}, s{sTAG}
v_mov_b32 v{KD+7}, s{sTAG}
v_mov_b32 v{KD+10}, s{sTAG}
v_mov_b32 v{KD+11}, s{sTAG}""")
    for pl in range(3):
        for s in range(3 * pl, min(8, 3 * pl + 3)):
            p(f"v_lshlrev_b32 v{VU+2*s}, 16, v{VR+s}\nv_and_b32 v{VU+2*s+1}, 0xffff0000, v{VR+s}")
        for s in range(3 * pl, min(8, 3 * pl + 3)):
            p(f"v_pk_mul_f32 v[{AC+2*s}:{AC+2*s+1}], v[{AC+2*s}:{AC+2*s+1}], v[{VU+2*s}:{VU+2*s+1}]")
        for s in range(3 * pl, min(8, 3 * pl + 3)):
            p(f"v_cvt_pk_bf16_f32 v{KD+4*pl+s-3*pl}, v{AC+2*s}, v{AC+2*s+1}")
        p(f"s_mov_b32 s{sT+2}, 0x{WS_KVG + 4096*pl:x}")
        p(f"buffer_store_dwordx4 v[{KD+4*pl}:{KD+4*pl+3}], v{fKVG}, {WS}, s{sT+2} offen sc1")
    G.stamp("kvst")
    if G.stamps and "kvack" in G.skip:
        p("s_waitcnt vmcnt(0)"); G.stamp("kvack")
    E0, E1, Z = 140, 148, 156
    X = (72, 80); QS = 240
    B = [f"v_permlane16_swap_b32 v{QT8+4*P}, v{QT8+4*P+2}" for P in range(2)] + [f"v_permlane16_swap_b32 v{QT8+4*P+1}, v{QT8+4*P+3}" for P in range(2)]
    B += M.unpack(X[0], QT8, 8) + M.publish(X, 0)[:-1] + [f"v_mov_b32 v{QS}, v{M.SS}"]
    B += [f"s_and_b32 s{sD1}, s{sD0}, 0xffff0000", f"s_lshl_b32 s{sD0}, s{sD0}, 16"]
    ES = []
    for qq in range(2):
        ES += [f"s_mov_b32 s{sT+2}, 0x{WS_YB + qq*16*XP:x}", f"buffer_store_dwordx4 v[{POI}:{POI+3}], v{fCO}, {WS}, s{sT+2} offen sc1 @es"]
    ES += M.xtile_base(sT + 2, WS_X1B) + [f"buffer_store_dwordx4 v[{POI}:{POI+3}], v{M.vFO}, {WS}, s{sT+2+P} offen sc1 @es" for P in range(2)]
    ES += M.st_base(sT + 2, WS_STQ) + [f"buffer_store_dword v{QS}, v{M.vSTW}, {WS}, s{sT+2} offen sc1 @es",
           f"s_add_u32 s{sT+2}, s{sT+2}, 0x{WS_STA[0]-WS_STQ:x}", f"buffer_store_dword v{POI}, v{M.vSTW}, {WS}, s{sT+2} offen sc1 @es"]
    G.es = ES
    G.flag = [f"s_lshl_b32 s{sT+2}, s{sW}, 12", f"s_lshl_b32 s{sT+3}, s{sJ}, 7", f"s_add_u32 s{sT+2}, s{sT+2}, s{sT+3}", f"s_lshl_b32 s{sT+3}, s{sX}, 2",
              f"s_add_u32 s{sT+2}, s{sT+2}, s{sT+3}", f"s_add_u32 s{sT+2}, s{sT+2}, 0x{WS_FLAGS:x}", f"v_mov_b32 v{QS}, s{sTAG}", "@wv es",
              f"s_mov_b64 exec, 1\nbuffer_store_dword v{QS}, off, {WS}, s{sT+2} sc1\ns_mov_b64 exec, -1"]
    C = [f"v_alignbit_b32 v{E0+k}, v{HA+k+1}, v{HA+k}, 16" for k in range(8)] + [f"v_alignbit_b32 v{E1+k}, v{HA+k+2}, v{HA+k+1}, 16" for k in range(8)]
    for c, r in enumerate((HA, E0, HB_, E1)):
        C += [f"ds_write_b128 v{fTW}, v[{r}:{r+3}] offset:{L_TC + c*TC_STRIDE + 32}", f"ds_write_b128 v{fTW}, v[{r+4}:{r+7}] offset:{L_TC + c*TC_STRIDE + 48}"]
    C += [f"v_mov_b32 v{Z+i}, 0" for i in (0, 1, 2, 3, 4, 5, 6, 8, 9, 10, 12, 13)]
    C += [f"v_lshlrev_b32 v{Z+7}, 16, v{HA}", f"v_mov_b32 v{Z+11}, v{HA}", f"v_lshlrev_b32 v{Z+14}, 16, v{HA}", f"v_mov_b32 v{Z+15}, v{E0}",
          f"ds_write_b128 v{fUZ}, v[{Z}:{Z+3}] offset:{L_U}", f"s_mov_b64 exec, s[{sM}:{sM+1}]"]
    for c in range(4):
        C += [f"ds_write_b128 v{fTW}, v[{Z}:{Z+3}] offset:{L_TC + c*TC_STRIDE}", f"ds_write_b128 v{fTW}, v[{Z+4*c}:{Z+4*c+3}] offset:{L_TC + c*TC_STRIDE + 16}"]
    C += ["s_mov_b64 exec, -1"]
    if G.opt.get("esearly"):
        for l in B + ES: p(l)
        B = []; G.es = []
    ie = C.index(f"s_mov_b64 exec, s[{sM}:{sM+1}]")
    u = take(G.opt.get("nc", 3))
    for l in sprinkle(C[:ie], u, 12) + u + C[ie:]: p(l)
    G.stamp("cdone")
    p(f"s_mul_i32 s{sT+13}, s{sP}, 12288\ns_add_u32 s{sT+13}, s{sT+13}, 0x{WS_KVG:x}\ns_add_u32 s{sT+14}, s{sT+13}, 4096\ns_add_u32 s{sT+15}, s{sT+13}, 8192")
    ld = [f"buffer_load_dwordx4 v[{GR+4*pl}:{GR+4*pl+3}], v{fT16}, {WS}, s{sT+13+pl} offen sc1" for pl in range(3)]
    chk = [f"v_xor_b32 v21, s{sTAG}, v{GR+3}", f"v_xor_b32 v22, s{sTAG}, v{GR+7}", f"v_xor_b32 v23, s{sTAG}, v{GR+11}",
           f"v_or3_b32 v21, v21, v22, v23", f"v_cmp_ne_u32 vcc, 0, v21"]
    work = B + A2 + [f"s_mov_b32 s{sT+9}, 0x05040100", f"s_mov_b32 s{sT+10}, 0x07060302"]
    npre = G.opt.get("kpre", 200)
    pre, mid = work[:npre], work[npre:]
    while mid and mid[0].startswith(("s_cselect", "s_addc")): pre.append(mid.pop(0))
    u0 = take(G.opt.get("n1a", 4))
    for l in sprinkle(pre, u0, max(1, len(pre) // max(1, G.opt.get("n1a", 4)))) + u0: p(l)
    u = take(G.opt.get("n1", 2))
    G.stamp("att")
    if G.opt.get("esmid", 1):
        mid = mid + G.es; G.es = []
    mid = sprinkle(mid, u, max(1, len(mid) // max(1, G.opt.get("n1", 2)))) + u
    G.w_left = WQ
    G.poll(ld, [], chk, "kvg", mid)
    G.stamp("kvret")
    if G.opt.get("esearly"):
        for l in G.flag: p(l)
        G.flag = []
    dpos = lambda s: GR + 4 * (s // 3) + s % 3
    UO = 124
    for ch in range(2):
        for jj in range(4):
            p(f"v_perm_b32 v{UO+4*ch+jj}, v{dpos(6-2*jj)}, v{dpos(7-2*jj)}, s{sT+9+ch}")
        p(f"ds_write_b128 v{fT16}, v[{UO+4*ch}:{UO+4*ch+3}] offset:{L_U + ch*U_CH + 512}")
    p("s_waitcnt lgkmcnt(0)\ns_barrier")
    G.esv = G.opt.get("esv", 2)
    G.stamp("kvg")

def conv_order(it):
    if it == 3 or ASC[0]: return [(q, r) for q in range(8) for r in range(q + 1)]
    left = {q: list(range(q + 1)) for q in range(8)}
    out = []
    while any(left.values()):
        recent = [q for (q, _) in out[-2:]]
        n = 36 - len(out)
        cand = [q for q in left if left[q] and q not in recent] or [q for q in left if left[q] and q != out[-1][0]] or [q for q in left if left[q]]
        urgent = [q for q in cand if 3*len(left[q]) - 2 >= n]
        if urgent: q = max(urgent, key=lambda q: len(left[q]))
        elif it == 0: q = min(cand, key=lambda q: (min(max(r, q - r) for r in left[q]), -len(left[q])))
        elif it == 3: q = min(cand, key=lambda q: len(left[q])) if len(out) % 3 == 2 else max(cand, key=lambda q: len(left[q]))
        else: q = max(cand, key=lambda q: len(left[q]))
        r = min(left[q], key=lambda r: max(r, q - r))
        left[q].remove(r); out.append((q, r))
    return out

def conv(G):
    p = G.p
    ACC = 48
    FA = (80, 144); FB = (112, 176)
    FLG = 208
    def loads(it):
        eo = 2 * it + 1
        L = []
        for r in range(8):
            L.append(f"ds_read_b128 v[{FB[it%2]+4*r}:{FB[it%2]+4*r+3}], v{fCB} offset:{512*r - 32*eo + 512}")
            L.append(f"ds_read_b64 v[{FA[it%2]+4*r}:{FA[it%2]+4*r+1}], v{fCA} offset:{512*r + 32*eo}")
            L.append(f"ds_read_b64 v[{FA[it%2]+4*r+2}:{FA[it%2]+4*r+3}], v{fCA} offset:{512*r + 32*eo + 8}")
        return L
    for l in loads(0)[:12]: p(l)
    G.fl_ld = [f"!buffer_load_dword v{FLG}, v{fFA}, {WS}, s{sT+10} offen sc1", f"!buffer_load_dword v{FLG+1}, v{fFB}, {WS}, s{sT+10} offen sc1"]
    G.fl_chk = [f"v_xor_b32 v{FLG}, s{sTAG}, v{FLG}", f"v_xor_b32 v{FLG+1}, s{sTAG}, v{FLG+1}", f"v_or_b32 v{FLG}, v{FLG}, v{FLG+1}", f"v_cmp_ne_u32 vcc, 0, v{FLG}"]
    pois = [f"s_mul_i32 s{sT+8}, s{sR0}, {HF_PITCH}", f"s_mul_i32 s{sT+12}, s{sC}, 3072",
            f"s_add_u32 s{sT+8}, s{sT+8}, s{sT+12}", f"s_add_u32 s{sT+8}, s{sT+8}, 0x{WS_HF[0]:x}",
            f"s_cmp_eq_u32 s{sC}, 15\ns_cselect_b32 s{sT+8}, 0x{WS_SIZE:x}, s{sT+8}\ns_nop 0"]
    for h in range(2):
        pois += [f"buffer_store_dwordx4 v[{POI}:{POI+3}], v{fHP}, {WS}, s{sT+8} offen offset:{1024*i} sc1 @hp" for i in range(3)]
        pois += [f"s_add_u32 s{sT+8}, s{sT+8}, {4*HF_PITCH}"]
    W = Weaver(vm_space=G.opt.get("vsc", 5))
    sw = [(0, t) for t in G.w_left]
    sq = []; st = []
    for it in range(4):
        order = conv_order(it); seen = set(); mf = []
        for (q, r) in order:
            mf.append(mfma(ACC + 4*q, vr(FA[it%2] + 4*r, 4), vr(FB[it%2] + 4*(q - r), 4), "0" if (it == 0 and q not in seen) else None))
            seen.add(q)
        s0 = []
        if it == 0: s0 += [(i // 2, t) for i, t in enumerate(loads(0)[12:])]
        if it < 3: s0 += [(8 + i, t) for i, t in enumerate(loads(it + 1))]
        if it == 0:
            n = 0
            for t in G.es:
                if t.startswith("buffer"): sq.append((2 + G.esv*n, "!" + t)); n += 1
                else: sq.append((0, t))
        flg = G.opt.get("flg", 20)
        if it == flg // 36: sq += [(flg % 36, t) for t in G.flag]
        if it == 3: sq += [(8, f"s_mov_b32 s{sT+10}, 0x{WS_FLAGS:x}")] + [(G.opt.get("fll", 20), t) for t in G.fl_ld]
        if it == 3:
            out = W.run(mf[:1], [s0, st, sq, sw])
            while any("@w0" in t for (_, t) in sw): out.append(sw.pop(0)[1]); print("forced w0")
            out += ["@wv w0", "s_waitcnt lgkmcnt(0)", "s_barrier"]
            sT1 = [(i, t) for i, t in enumerate(w_tr(0))]
            for g, q in sorted((max(i for i, (qq, _) in enumerate(order) if qq == q), q) for q in range(8)):
                st.append((g + 7, f"ds_write_b128 v{fRSW}, v[{ACC+4*q}:{ACC+4*q+3}] offset:{L_RS + 1024*q}"))
            out += W.run(mf[1:], [st, sT1, sq, sw], flush=[1, 0, 2])
        else:
            out = W.run(mf, [s0, st, sq, sw], flush=[0])
        if G.opt.get("cnot"): out = [l for l in out if "_tr_b16" not in l]
        if G.opt.get("cnob"): out = [l for l in out if l != "s_barrier"]
        if G.opt.get("cnow"): out = [l for l in out if not l.startswith("ds_write")]
        if G.opt.get("cnoa"): out = [l for l in out if not l.startswith("ds_read_b64 ")]
        if G.opt.get("cnod"): out = [l for l in out if not l.startswith("ds_read_b128")]
        for l in out: p(l)
        G.stamp(f"it{it}")
    for (_, t) in sw: p(t); print("forced w1")
    rest = w_round(2)
    print("conv: W units left", sum("\n" in t for t in rest))
    G.stamp("convloop")
    p("@wv w1\ns_waitcnt lgkmcnt(0)\ns_barrier")
    T = 80; KV = 112; Y = 136; YO = 160; TM = 168
    E = []
    for qq in range(2):
        for sw_ in range(4):
            E.append(f"ds_read_b128 v[{T+16*qq+4*sw_}:{T+16*qq+4*sw_+3}], v{fRSR} offset:{L_RS + 8192*sw_ + 1024*qq}")
        for ch in range(2):
            E.append(f"ds_read_b64 v[{KV+4*qq+2*ch}:{KV+4*qq+2*ch+1}], v{fKVR} offset:{L_U + ch*U_CH + 512 + 512*qq}")
    for qq in range(2):
        for ch in range(2):
            a0 = T + 16*qq + 8*ch; y = Y + 8*qq + 4*ch; kv = KV + 4*qq + 2*ch; o = YO + 4*qq + 2*ch
            E += [f"v_pk_add_f32 v[{y+r}:{y+r+1}], v[{a0+r}:{a0+r+1}], v[{a0+4+r}:{a0+5+r}]" for r in (0, 2)]
            E += [f"v_and_b32 v{TM}, 0xffff0000, v{kv+1}", f"v_lshlrev_b32 v{TM+1}, 16, v{kv+1}", f"v_and_b32 v{TM+2}, 0xffff0000, v{kv}", f"v_lshlrev_b32 v{TM+3}, 16, v{kv}"]
            E += [f"v_pk_fma_f32 v[{y+r}:{y+r+1}], v[{TM+r}:{TM+r+1}], s[{sD0}:{sD1}], v[{y+r}:{y+r+1}] op_sel:[0,{ch},0] op_sel_hi:[1,{ch},1]" for r in (0, 2)]
            E += [f"v_cvt_pk_bf16_f32 v{o}, v{y}, v{y+1}", f"v_cvt_pk_bf16_f32 v{o+1}, v{y+2}, v{y+3}"]
        o = YO + 4*qq
        E += [f"s_mov_b32 s{sT+2}, 0x{WS_YB + qq*16*XP:x}", f"v_permlane16_swap_b32 v{o}, v{o+2}", f"v_permlane16_swap_b32 v{o+1}, v{o+3}",
              f"buffer_store_dwordx4 v[{o}:{o+3}], v{fCO}, {WS}, s{sT+2} offen sc1"]
    for l in E: p(l)
    G.stamp("yst")
    if G.stamps and "yack" in G.skip:
        p("s_waitcnt vmcnt(0)"); G.stamp("yack")
    G.w_rest = rest
    G.pois = pois

def handover(G):
    import gen_mlp as M
    p = G.p
    rest = G.w_rest
    lf, lb = G.add_fix(G.fl_ld, G.fl_chk, "st")
    for l in G.fl_chk: p(l)
    p(f"s_cbranch_vccnz {lf}\n{lb}:")
    X, TT, PT, YU, VY = (72, 80), (88, 96), 104, 144, 160
    G.stamp("flok")
    for l in M.st_base(sT + 2, WS_STQ) + M.st_ld(PT, M.vSTR, sT + 2): p(l)
    for l in w_tr(1): p(l)
    ydma = [f"s_add_u32 m0, s{sT+9}, {M.L_Y + 1024*P}\nbuffer_load_dwordx4 v{M.vFO}, {WS}, s{sT+4+P} offen sc1 lds @yr" for P in range(2)]
    H = M.xtile_base(sT + 4, WS_YB) + [f"s_lshl_b32 s{sT+9}, s{sW}, 11"] + M.layer_scalars(0) + M.unpack(X[0], QT8, 8)
    H += f"""v_mov_b32 v{M.vTG}, s{sTAG}
s_cmp_eq_u32 s{sW}, 0
s_cselect_b32 s{M.sLM}, 1, 0
s_mov_b32 s{M.sLM+1}, 0
v_bfe_u32 v21, v0, 2, 4
v_lshlrev_b32 v21, 5, v21
v_and_b32 v22, 3, v0
v_lshl_add_u32 v21, v22, 3, v21
v_lshl_add_u32 v21, v2, 11, v21
v_lshl_add_u32 v22, v2, 11, v{M.vL16}""".split("\n")
    H = G.late + [f"v_mov_b32 v{ONE+i}, 0x3f803f80" for i in range(4)] + M.xtile_base(sT + 2, WS_X1B) + H + M.ln_coef(PT) + M.ln_norm(X[0], TT[0], 0) + M.ln_norm(X[1], TT[1], 1)
    ny = G.opt.get("ny", 12)
    u = []
    while rest and (ny > 0 or "\n" not in rest[0]):
        if "\n" in rest[0]: ny -= 1
        u.append(rest.pop(0))
    ps = [x for t in G.pois for x in t.split("\n")]
    k0 = min(i for i, t in enumerate(ps) if t.startswith("buffer"))
    H = ps[:k0] + H
    u = ps[k0:] + u
    for l in sprinkle(H, u, G.opt.get("he", 10), k0) + u: p(l)
    p("s_waitcnt lgkmcnt(0)\ns_barrier")
    G.stamp("ydma")
    rest = rest + w_round(3)
    nr = G.opt.get("nr", 8); u = []
    while rest and (nr > 0 or "\n" not in rest[0]):
        if "\n" in rest[0]: nr -= 1
        u.append(rest.pop(0))
    W = Weaver(vm_space=3)
    mid = W.run(w_cs(0) + w_cs(1), [[(0, t) for t in u]], flush=[0])
    ytr = [f"ds_read_b64_tr_b16 v[{M.vY+4*P+2*t}:{M.vY+4*P+2*t+1}], v21 offset:{M.L_Y + 1024*P + 512*t}" for P in range(2) for t in range(2)]
    yrd = [f"ds_read_b128 v[{VY+4*P}:{VY+4*P+3}], v22 offset:{M.L_Y + 1024*P}" for P in range(2)]
    yck = [f"v_max_u32 v23, v{VY+3}, v{VY+7}", "v_cmp_eq_u32 vcc, -1, v23"]
    ytag = G.poll(ydma, yrd + ytr, yck, "y", mid)
    G.stamp("yret")
    for P in range(2):
        for l in M.unpack(YU + 8*P, M.vY + 4*P, 4) + M.gate_out(X[P], TT[P], YU + 8*P, P, sT + 2 + P): p(l)
    G.stamp("x1st")
    if G.stamps and "xack" in G.skip:
        p("s_waitcnt vmcnt(0)"); G.stamp("xack")
    for l in M.st_base(sT + 2, WS_STA[0]) + M.publish(X, sT + 2) + rest: p(l)
    t2, t3 = w_tr(2), w_tr(3)
    p("@wv w2" + ("," + ytag if G.nf[0] > 2 else "") + "\ns_waitcnt lgkmcnt(0)\ns_barrier")
    a_ = t2[:12] + weave(w_cs(2), [[(i // 2, t) for i, t in enumerate(t2[12:])]])
    b_ = ["@wv w3", "s_barrier"] + t3[:12] + weave(w_cs(3), [[(i // 2, t) for i, t in enumerate(t3[12:])]])
    xat = G.opt.get("xat", 1)
    if xat == 0: return a_ + b_
    for l in a_: p(l)
    if xat == 2:
        for l in b_: p(l)
        b_ = []
    G.stamp("xdma")
    return b_
```

```python
import sys
sys.path.insert(0, "tools")
from pg import weave, Weaver
import pg
from gen import *

WS = srd(SRD_WS)
vMS, vL16, vVF, vSTG, vSG, vFO = 3, 4, 5, 6, 7, 8
vWT = 9
vWG = 24
vH2, vH1, vHA, vHB = 28, 29, 30, 31
vCS = 32
vSTW, vSTR, vOA, vMR = 44, 45, 46, 47
vXR = 48
vY = 56
vR2 = 64
vTG = 71
vFL, vFA = 221, 222
sLM = 16
sFL = 22
RING = 72
def ACC(g): return 72 + 12 * g if g < 6 else 160 + 12 * (g - 6)
vVER = 144
XF = 184
vTM = 208
vM = 212
vPOI = 140
vVA = 220
AP = (224, 160)
WF = 192
sXB, sHF, sSA, sWD, sM0X, sOB = 8, 9, 10, 11, 12, 63
sHL = 82
sXO, sWO, sHS, sHC = sT + 12, sT + 13, sT + 14, sT + 15
WID = {4: 4, 5: 5, 6: 6, 7: 7, 8: 8, 9: 0, 10: 1}
L_Y = 43008

def dma_unit(m0off, ins): return f"s_add_u32 m0, s{sM0X}, {m0off}\n{ins}"

def x_dma(g, L):
    o = [f"s_add_u32 s{sXO}, s{sXB}, {g*XP}"]
    for i in range(4): o.append(dma_unit((g % 4)*16384, f"buffer_load_dwordx4 v{vVF}, {WS}, s{sXO} offen offset:{1024*i} sc1 lds @x{L}_{g}"))
    return o

def x_verify(G, g, L, also=()):
    rd = [f"ds_read_b128 v[{vVER+4*i}:{vVER+4*i+3}], v{vVF} offset:{(g % 4)*16384 + 1024*i}" for i in range(4)]
    ck = [f"v_max3_u32 v{vVA}, v{vVER+3}, v{vVER+7}, v{vVER+11}", f"v_max_u32 v{vVA}, v{vVA}, v{vVER+15}", f"v_cmp_eq_u32 vcc, -1, v{vVA}"]
    rl = []
    for gg in (g,) + tuple(also):
        rl += [l.split(" @")[0].replace(f"s{sXO},", "s13,").replace(f"s{sXO} ", "s13 ") for l in x_dma(gg, L)]
    lf, lb = G.add_fix(["s_mov_b32 s14, m0"] + rl + ["s_waitcnt vmcnt(0)", "s_mov_b32 m0, s14"] + rd, ck, "x0" if g == 0 else "x")
    return [f"@wv x{L}_{g}"] + rd, ck + [f"s_cbranch_vccnz {lf}", lb + ":"]

def wd_dma(k, slot, so=sWO):
    o = [f"s_add_u32 s{so}, s{sWD}, {k*32768}"]
    for b in range(4): o.append(dma_unit(slot*16384, f"buffer_load_dwordx4 v{vWG+b}, {srd(SRD_WD)}, s{so} offen offset:{1024*b} lds @wd{k}"))
    return o

def wd_tr(slot, dst, agpr, tag=""):
    o = []
    for cs in range(4):
        for t in range(2):
            a = slot*16384 + t*2048
            d = (ar if agpr else vr)(dst + 4*cs + 2*t, 2)
            o.append(f"ds_read_b64_tr_b16 {d}, v{vWT + 4*(a // 65536) + cs} offset:{a % 65536}" + (f" @{tag}" if tag else ""))
    return o

def x_rd(n, L):
    g, kk = n // 16, n % 16
    return [f"ds_read_b128 {vr(XF + 4*(n % 6), 4)}, v{vL16} offset:{(g % 4)*16384 + kk*1024}"]

def setup_early():
    out = []
    def p(t): out.extend(t.split("\n"))
    p("v_and_b32 v21, 15, v0\nv_lshlrev_b32 v21, 4, v21")
    p(f"""v_lshrrev_b32 v22, 1, v2
v_lshl_add_u32 v21, v22, 12, v21
v_bfe_u32 v23, v0, 4, 2
v_lshl_add_u32 v{vSTR}, v23, 10, v21
v_lshl_add_u32 v21, v23, 2, v21
v_and_b32 v23, 1, v2
v_lshl_add_u32 v21, v23, 8, v21
s_lshl_b32 s{sT+2}, s{sCT}, 9
v_add_u32 v{vSTW}, s{sT+2}, v21""")
    p(f"""v_mul_u32_u24 v21, {2*XP}, v22
v_add_u32 v21, v21, v{vL16}
v_lshl_add_u32 v21, v23, 10, v21
s_lshl_b32 s{sT+2}, s{sCT}, 11
v_add_u32 v{vFO}, s{sT+2}, v21""")
    return out

def setup_late():
    out = []
    def p(t): out.extend(t.split("\n"))
    p(f"v_lshlrev_b32 v{vVF}, 4, v1\nv_lshl_add_u32 v{vVF}, v2, 12, v{vVF}")
    p(f"""v_bfe_u32 v21, v0, 5, 1
v_bfe_u32 v22, v0, 3, 2
v_lshl_add_u32 v21, v21, 3, v22
v_lshlrev_b32 v21, 10, v21
v_bfe_u32 v22, v0, 1, 2
v_bfe_u32 v23, v0, 4, 2
v_xor_b32 v22, v22, v23
v_lshl_add_u32 v21, v22, 5, v21
v_and_b32 v22, 1, v0
v_lshl_add_u32 v21, v22, 4, v21
s_lshl_b32 s{sT+2}, s{sCT}, 7
v_add_u32 v{vWG}, s{sT+2}, v21
v_add_u32 v{vWG+1}, 15360, v{vWG}
v_add_u32 v{vWG+2}, 2048, v{vWG}
v_add_u32 v{vWG+3}, 17408, v{vWG}
s_mul_i32 s{sWD}, s{sW}, {11*32768}""")
    p(f"""v_bfe_u32 v21, v0, 2, 3
v_lshlrev_b32 v22, 7, v21
v_bfe_u32 v23, v0, 5, 1
v_lshl_add_u32 v22, v23, 10, v22
v_and_b32 v23, 3, v0
v_lshl_add_u32 v22, v23, 3, v22
v_lshl_add_u32 v22, v2, 12, v22
v_lshrrev_b32 v21, 1, v21
v_and_b32 v23, 1, v2
v_lshlrev_b32 v23, 1, v23
v_xor_b32 v21, v21, v23""")
    for cs in range(4):
        p(f"v_xor_b32 v23, {cs}, v21\nv_lshl_add_u32 v{vWT+cs}, v23, 5, v22\nv_add_u32 v{vWT+4+cs}, 0x10000, v{vWT+cs}\nv_add_u32 v{vWT+8+cs}, 0x20000, v{vWT+cs}")
    p(f"""v_and_b32 v21, 15, v0
v_lshlrev_b32 v{vSG}, 3, v21
v_lshlrev_b32 v21, 4, v21
v_bfe_u32 v22, v0, 4, 1
v_bfe_u32 v23, v0, 5, 1
v_lshl_add_u32 v{vH2}, v22, 3, v21
v_lshl_add_u32 v{vH2}, v23, 8, v{vH2}
v_lshl_add_u32 v{vH2}, v2, 9, v{vH2}
v_lshl_add_u32 v{vH1}, v22, 3, v21
v_lshl_add_u32 v{vH1}, v23, 2, v{vH1}
v_lshl_add_u32 v{vH1}, v2, 8, v{vH1}
v_add_u32 v{vH1}, 2048, v{vH1}""")
    p("v_lshrrev_b32 v22, 1, v2\nv_and_b32 v23, 1, v2")
    p(f"""v_and_b32 v21, 15, v0
v_lshlrev_b32 v{vSTG}, 4, v21
v_bfe_u32 v{vMS}, v0, 4, 2
v_lshl_add_u32 v{vSTG}, v{vMS}, 10, v{vSTG}
v_lshl_add_u32 v{vSTG}, v2, 12, v{vSTG}
v_lshlrev_b32 v21, 6, v21
v_add_u32 v21, {L_MISC}, v21
v_lshl_add_u32 v{vMR}, v22, 3, v21
s_lshl_b32 s{sT+2}, s{sHB}, 2
v_add_u32 v{vMR}, s{sT+2}, v{vMR}
v_lshl_add_u32 v21, v22, 2, v21
v_lshl_add_u32 v21, v23, 3, v21
v_bfe_u32 v{vMS}, v0, 4, 1
v_lshl_add_u32 v21, v{vMS}, 5, v21
v_bfe_u32 v{vMS}, v0, 5, 1
v_lshl_add_u32 v{vMS}, v{vMS}, 4, v21""")
    p(f"""v_mul_u32_u24 v21, 11264, v2
v_add_u32 v21, v21, v{vL16}
v_mul_u32_u24 v{vHA}, {2*HF_PITCH}, v22
v_add_u32 v{vHA}, v21, v{vHA}
v_xor_b32 v{vHB}, 1, v22
v_mul_u32_u24 v{vHB}, {2*HF_PITCH}, v{vHB}
v_add_u32 v{vHB}, v21, v{vHB}""")
    return out

def early_lines():
    return f"""v_lshlrev_b32 v{vL16}, 4, v1
v_and_b32 v21, 15, v0
v_lshrrev_b32 v22, 1, v2
v_lshl_add_u32 v21, v22, 5, v21
v_lshlrev_b32 v21, 10, v21
v_bfe_u32 v22, v0, 4, 1
v_lshl_add_u32 v21, v22, 5, v21
v_bfe_u32 v22, v0, 5, 1
v_lshl_add_u32 v21, v22, 4, v21
v_and_b32 v22, 1, v2
v_lshl_add_u32 v{vOA}, v22, 6, v21
s_add_u32 s{sOB}, s{sR0}, s{sHB}
s_lshl_b32 s{sOB}, s{sOB}, 14
s_lshl_b32 s{sT+3}, s{sCT}, 7
s_add_u32 s{sOB}, s{sOB}, s{sT+3}""".split("\n")

def layer_scalars(L):
    xb = WS_X1B if L == 0 else WS_X3B
    return f"""s_mul_i32 s{sXB}, s{sR0}, {XP}
s_add_u32 s{sXB}, s{sXB}, 0x{xb:x}
s_mul_i32 s{sHF}, s{sR0}, {HF_PITCH}
s_add_u32 s{sHF}, s{sHF}, 0x{WS_HF[L]:x}
s_lshl_b32 s{sSA}, s{sR0}, 11
s_add_u32 s{sSA}, s{sSA}, 0x{WS_STA[L]:x}
s_lshl_b32 s{sM0X}, s{sW}, 12
s_lshl_b32 s{sFL}, s{sR0}, 5
s_add_u32 s{sFL}, s{sFL}, 0x{WS_HFL + L*4096:x}
s_lshl_b32 s{sFL+1}, s{sC}, 2
s_add_u32 s{sFL+1}, s{sFL+1}, s{sFL}
s_mul_i32 s{sHC}, s{sC}, 3072
s_add_u32 s{sHC}, s{sHC}, s{sHF}
s_cmp_eq_u32 s{sC}, 15
s_cselect_b32 s{sHC}, 0x{WS_SIZE:x}, s{sHC}""".split("\n")

def st_base(r, region):
    return [f"s_lshl_b32 s{r}, s{sR0}, 11", f"s_lshl_b32 s13, s{sHB}, 13", f"s_add_u32 s{r}, s{r}, s13", f"s_add_u32 s{r}, s{r}, 0x{region:x}"]

def xtile_base(r, region):
    return [f"s_add_u32 s{r}, s{sR0}, s{sHB}", f"s_mul_i32 s{r}, s{r}, {XP}", f"s_add_u32 s{r}, s{r}, 0x{region:x}", f"s_add_u32 s{r+1}, s{r}, {4*XP}"]

def poison_l2():
    o = [f"v_mov_b32 v{vPOI+i}, -1" for i in range(4)]
    o += [f"v_mul_u32_u24 v21, {HF_PITCH}, v2", f"v_add_u32 v22, v21, v{vL16}"]
    for h in range(2):
        o.append(f"s_add_u32 s{sT+2}, s{sHC}, 0x{WS_HF[1]-WS_HF[0] + 4*h*HF_PITCH:x}")
        for i in range(3): o.append(f"buffer_store_dwordx4 v[{vPOI}:{vPOI+3}], v22, {WS}, s{sT+2} offen offset:{1024*i} sc1 @poi")
    o += xtile_base(sT + 2, WS_X3B) + [f"buffer_store_dwordx4 v[{vPOI}:{vPOI+3}], v{vFO}, {WS}, s{sT+2+P} offen sc1 @poi" for P in range(2)]
    o += st_base(sT + 2, WS_STX) + [f"buffer_store_dword v{vPOI}, v{vSTW}, {WS}, s{sT+2} offen sc1 @poi",
          f"s_add_u32 s{sT+2}, s{sT+2}, 0x{WS_STA[1]-WS_STX:x}", f"buffer_store_dword v{vPOI}, v{vSTW}, {WS}, s{sT+2} offen sc1 @poi"]
    return o

SS = 128
def psum(x, P):
    return [f"v_pk_add_f32 v[132:133], v[{x}:{x+1}], v[{x+2}:{x+3}]", f"v_pk_add_f32 v[134:135], v[{x+4}:{x+5}], v[{x+6}:{x+7}]",
            f"v_pk_mul_f32 v[136:137], v[{x}:{x+1}], v[{x}:{x+1}]", f"v_pk_mul_f32 v[138:139], v[{x+2}:{x+3}], v[{x+2}:{x+3}]",
            f"v_pk_add_f32 v[132:133], v[132:133], v[134:135]",
            f"v_pk_fma_f32 v[136:137], v[{x+4}:{x+5}], v[{x+4}:{x+5}], v[136:137]", f"v_pk_fma_f32 v[138:139], v[{x+6}:{x+7}], v[{x+6}:{x+7}], v[138:139]",
            f"v_add_f32 v{SS+2*P}, v132, v133", "v_pk_add_f32 v[136:137], v[136:137], v[138:139]", f"v_add_f32 v{SS+2*P+1}, v136, v137"]
def fold(r, pk=True):
    add = [f"v_pk_add_f32 v[{r}:{r+1}], v[{r}:{r+1}], v[{r+2}:{r+3}]"] if pk else [f"v_add_f32 v{r}, v{r}, v{r+2}", f"v_add_f32 v{r+1}, v{r+1}, v{r+3}"]
    return [f"v_permlane32_swap_b32 v{r}, v{r+2}", f"v_permlane32_swap_b32 v{r+1}, v{r+3}"] + add + \
           [f"v_permlane16_swap_b32 v{r}, v{r+1}", f"v_add_f32 v{r}, v{r}, v{r+1}"]
def st_ld(PT, va, so): return [f"buffer_load_dwordx4 v[{PT+4*i}:{PT+4*i+3}], v{va}, {WS}, s{so} offen offset:{256*i} sc1" for i in range(4)]
def st_ck(PT, acc):
    return [f"v_max3_u32 v{acc}, v{PT}, v{PT+1}, v{PT+2}"] + [f"v_max3_u32 v{acc}, v{acc}, v{PT+k}, v{PT+k+1}" for k in range(3, 15, 2)] + \
           [f"v_max_u32 v{acc}, v{acc}, v{PT+15}", f"v_cmp_eq_u32 vcc, -1, v{acc}"]
def ln_coef(PT):
    o = []
    for h in range(2):
        o += [f"v_pk_add_f32 v[{SS+2*h}:{SS+2*h+1}], v[{PT+2*h}:{PT+2*h+1}], v[{PT+4+2*h}:{PT+4+2*h+1}]",
              f"v_pk_add_f32 v[{132+2*h}:{133+2*h}], v[{PT+8+2*h}:{PT+8+2*h+1}], v[{PT+12+2*h}:{PT+12+2*h+1}]"]
    o += [f"v_pk_add_f32 v[{SS+2*h}:{SS+2*h+1}], v[{SS+2*h}:{SS+2*h+1}], v[{132+2*h}:{133+2*h}]" for h in range(2)]
    o += fold(SS)
    o += f"""v_mul_f32 v{SS}, 0x3b000000, v{SS}
v_mov_b32 v{SS+2}, v{SS}
v_permlane16_swap_b32 v{SS}, v{SS+2}
v_mov_b32 v{SS+1}, v{SS}
v_mov_b32 v{SS+3}, v{SS+2}
v_permlane32_swap_b32 v{SS}, v{SS+1}
v_permlane32_swap_b32 v{SS+2}, v{SS+3}
v_pk_fma_f32 v[{SS+2}:{SS+3}], v[{SS}:{SS+1}], v[{SS}:{SS+1}], v[{SS+2}:{SS+3}] neg_lo:[1,0,0] neg_hi:[1,0,0]
v_max_f32 v{SS+2}, 0, v{SS+2}
v_max_f32 v{SS+3}, 0, v{SS+3}
v_add_f32 v{SS+2}, 0x3727c5ac, v{SS+2}
v_add_f32 v{SS+3}, 0x3727c5ac, v{SS+3}
v_rsq_f32 v{SS+2}, v{SS+2}
v_rsq_f32 v{SS+3}, v{SS+3}
s_nop 0
v_pk_mul_f32 v[{SS}:{SS+1}], v[{SS}:{SS+1}], v[{SS+2}:{SS+3}]""".split("\n")
    return o
def ln_norm(x, t, P):
    return [f"v_pk_fma_f32 v[{t+i}:{t+i+1}], v[{x+i}:{x+i+1}], v[{SS+2}:{SS+3}], v[{SS}:{SS+1}] op_sel:[0,{P},{P}] op_sel_hi:[1,{P},{P}] neg_lo:[0,0,1] neg_hi:[0,0,1]" for i in range(0, 8, 2)]
def unpack(dst, src, n):
    return [l for k in range(n) for l in (f"v_lshlrev_b32 v{dst+2*k}, 16, v{src+k}", f"v_and_b32 v{dst+2*k+1}, 0xffff0000, v{src+k}")]
def gate_out(x, t, y, P, so):
    return [f"v_pk_fma_f32 v[{x+i}:{x+i+1}], v[{t+i}:{t+i+1}], v[{y+i}:{y+i+1}], v[{x+i}:{x+i+1}]" for i in range(0, 8, 2)] + \
           [f"v_cvt_pk_bf16_f32 v{vXR+4*P+i}, v{x+2*i}, v{x+2*i+1}" for i in range(4)] + \
           [f"buffer_store_dwordx4 v[{vXR+4*P}:{vXR+4*P+3}], v{vFO}, {WS}, s{so} offen sc1"]
def publish(X, so):
    return psum(X[0], 0) + psum(X[1], 1) + fold(SS) + [f"buffer_store_dword v{SS}, v{vSTW}, {WS}, s{so} offen sc1"]

PTG = 160
def mean_stream(G):
    ck = st_ck(PTG, vTM + 3)
    lf, lb = G.add_fix(st_ld(PTG, vSTG, sSA), ck, "m")
    a = ck + [f"s_cbranch_vccnz {lf}", lb + ":"]
    for i in range(4): a += [f"v_add_f32 v{PTG+i}, v{PTG+i}, v{PTG+4+i}", f"v_add_f32 v{PTG+8+i}, v{PTG+8+i}, v{PTG+12+i}"]
    a += [f"v_add_f32 v{PTG+i}, v{PTG+i}, v{PTG+8+i}" for i in range(4)]
    a += fold(PTG, False) + [f"v_mul_f32 v{PTG}, 0x3b000000, v{PTG}", f"ds_write_b32 v{vMS}, v{PTG} @msw", "@wl msw"]
    b = [f"v_lshlrev_b32 v{vTM+3}, 3, v{vSG}"] + [f"ds_read_b128 v[{vM+4*h}:{vM+4*h+3}], v{vTM+3} offset:{L_MISC % 65536 + 16*h}" for h in range(2)]
    b[0:1] = [f"v_lshlrev_b32 v{vTM+3}, 3, v{vSG}", f"v_add_u32 v{vTM+3}, {L_MISC - L_MISC % 65536}, v{vTM+3}"]
    b += [f"ds_read2_b32 v[{vR2+2*P}:{vR2+2*P+1}], v{vMR} offset0:{4*P} offset1:{8+4*P}" for P in range(2)]
    for P in range(2):
        r = vR2 + 2*P
        b += [f"v_fma_f32 v{r+1}, -v{r}, v{r}, v{r+1}", f"v_max_f32 v{r+1}, 0, v{r+1}", f"v_add_f32 v{r+1}, 0x3727c5ac, v{r+1}", f"v_rcp_f32 v{r+1}, v{r+1}"]
    return a, b

def epi(G, g, L):
    a = ACC(g); r = vM + g
    o = []
    for t in (2, 0, 1):
        for i in range(4): o.append(f"v_fma_f32 v{a+4*t+i}, -v{r}, v{vCS+4*t+i}, v{a+4*t+i}")
    m = a + 8
    o += [f"v_permlane32_swap_b32 v{m}, v{m+2}", f"v_permlane32_swap_b32 v{m+1}, v{m+3}"]
    for i in range(4): o.append(f"v_max_f32 v{a+i}, 0, v{a+i}")
    for i in range(4): o.append(f"v_mul_f32 v{a+i}, v{a+i}, v{a+4+i}")
    o += [f"v_cvt_pk_bf16_f32 v{vTM}, v{a}, v{a+1}", f"v_cvt_pk_bf16_f32 v{vTM+1}, v{a+2}, v{a+3}",
          f"s_add_u32 s{sHS}, s{sHC}, {g*HF_PITCH}",
          f"!buffer_store_dwordx2 v[{vTM}:{vTM+1}], v{vH2}, {WS}, s{sHS} offen sc1 @hs{g}"]
    o += [f"v_max_f32 v{m}, 0, v{m}", f"v_max_f32 v{m+1}, 0, v{m+1}", f"v_mul_f32 v{m}, v{m}, v{m+2}", f"v_mul_f32 v{m+1}, v{m+1}, v{m+3}",
          f"v_cvt_pk_bf16_f32 v{vTM+2}, v{m}, v{m+1}", f"!buffer_store_dword v{vTM+2}, v{vH1}, {WS}, s{sHS} offen sc1 @hs{g}"]
    return o

EPI_AT = {3: [0], 4: [1, 2], 5: [3], 6: [4, 5], 7: [6]}

class WdFeed:
    def __init__(self, L, tlag):
        self.sw = []; self.st = []; self.nt = 0; self.nd = 0; self.on = (L == 0); self.tlag = tlag; self.done_at = {}
        if self.on:
            for k in range(4): self.sw += [(0, t) for t in wd_dma(k, 4 + k)]
            self.sw += [(0, t) for t in poison_l2() + wd_dma(8, 8)]
    def update(self, g):
        if not self.on: return
        for k in range(4):
            if k not in self.done_at and not any(f"@wd{k}" in t for (_, t) in self.sw): self.done_at[k] = g
        while self.nt < 4 and self.nt in self.done_at and g - self.done_at[self.nt] >= self.tlag:
            k = self.nt; self.nt += 1
            self.st += [(0, f"@wv wd{k}")] + [(0, t) for t in wd_tr(4 + k, 192 + 16*k, True, f"ta{k}")]
        while self.nd < self.nt and not any(f"@ta{self.nd}" in t for (_, t) in self.st):
            k = self.nd; self.nd += 1
            self.sw += [(0, f"@wl ta{k}")] + [(0, t) for t in wd_dma(4 + k, 4 + k)]
    def rest(self):
        o = []
        while True:
            o += [t for (_, t) in self.st + self.sw]; self.sw.clear(); self.st.clear()
            self.update(10**6)
            if not (self.st or self.sw): return o

def h_ld(P, k, rs):
    e = RING + 8*k + 4*rs
    return f"buffer_load_dwordx4 v[{e}:{e+3}], v{vHA if rs == 0 else vHB}, {WS}, s{sHL + 3*P + k//4} offen offset:{1024*(k%4)} sc1"

def h_scalars():
    o = [f"s_mul_i32 s{sHL+1}, s{sHB}, {HF_PITCH}", f"s_add_u32 s{sHL}, s{sHF}, s{sHL+1}", f"s_add_u32 s{sHL+1}, s{sHL}, 4096", f"s_add_u32 s{sHL+2}, s{sHL}, 8192"]
    return o + [f"s_add_u32 s{sHL+3+i}, s{sHL+i}, {4*HF_PITCH}" for i in range(3)]

def one_lane(ins): return f"s_mov_b64 exec, s[{sLM}:{sLM+1}]\n{ins}\ns_mov_b64 exec, -1"
def hflag_st(b): return one_lane(f"buffer_store_dword v{vTG}, off, {WS}, s{sFL+1} offset:{128*b} sc1")
def hflag_ld(b): return [f"v_lshrrev_b32 v{vFA}, 1, v{vSG}", f"!buffer_load_dword v{vFL}, v{vFA}, {WS}, s{sFL} offen offset:{128*b} sc1"]
def hflag_chk(G, b):
    ck = [f"v_cmp_ne_u32 vcc, s{sTAG}, v{vFL}"]
    lf, lb = G.add_fix(hflag_ld(b), ck, "h0")
    return ck + [f"s_cbranch_vccnz {lf}", lb + ":"]

def gemm1_normal(G, L):
    p = G.p
    W = Weaver(vm_space=G.opt.get("vs1", 4), no_s=lambda g: g % 3 == 2)
    for n in range(4):
        for l in x_rd(n, L): p(l)
    feed = WdFeed(L, G.opt.get('tlag', 48)); allout = []
    fa = 6 if L == 0 else -1
    pf = G.opt.get(f"pf{L}", 6*48); ml = G.opt.get("ml", 8); mc = G.opt.get("mc", 50)
    sx = [(0, t) for g in range(G.nf[L], 4) for t in x_dma(g, L)]; sw = feed.sw; stt = feed.st; s2 = []; spf = []
    for g in range(8):
        mf = []
        for kk in range(16):
            n = 16*g + kk
            for t in range(3):
                mf.append(mfma(ACC(g) + 4*t, ar(64*t + 4*kk, 4), vr(XF + 4*(n % 6), 4), "0" if kk == 0 else None))
        s0 = []
        for kk in range(16):
            n = 16*g + kk + 4
            if n < 128: s0 += [(3*kk + i, t) for i, t in enumerate(x_rd(n, L))]
        s1 = []
        if g < 7 or g == fa:
            if g < 7 and g + 1 >= G.nf[L]:
                rd, ck = x_verify(G, g + 1, L)
                s1 += [(6, t) for t in rd] + [(16, t) for t in ck]
            if g == fa:
                assert not any("@poi" in t for (_, t) in sw)
                s1 += [(23, "@wv poi")]
            if g == 1: s1 = list(sm) + s1; sm.clear()
            s1 += [(24, "s_barrier")]
            if g == fa: s1 += [(24, hflag_st(0))]
        post = []
        if 1 <= g <= 4: post = x_dma(g + 3, L)
        if g == 5: post = wd_dma(9, 0, sXO)
        if g == 6: post = wd_dma(10, 1, sXO)
        if g == 0:
            ma, mb = mean_stream(G)
            sm = [(ml, "!" + t) for t in st_ld(PTG, vSTG, sSA)] + [(mc, t) for t in ma]
        if g >= 2: s2 += [(6, t) for t in epi(G, g - 1, L)]
        if g == pf // 48: spf += [(0, t) for t in h_scalars()] + [(pf % 48, h_ld(0, k, rs)) for k in range(9) for rs in range(2)]
        if g == 7: spf += [(0, h_ld(0, k, rs)) for k in range(9, 11) for rs in range(2)]
        cut = 35 if g == 1 else 30
        out = []
        for lo in range(0, cut, 6):
            feed.update(W.g)
            out += W.run(mf[lo:min(cut, lo + 6)], [s0, sx, spf, s1, sw, s2, stt] if g else [s0, sm, sx, s1, sw, stt])
        if s1: print("slot", g, "barrier stream flushed:", len(s1)); out += [t for (_, t) in s1]; s1.clear()
        sx += [(0, t) for t in post]
        if g == 1: s2 += [(0, t) for t in mb + epi(G, 0, L)]
        for lo in range(cut, 48, 6):
            feed.update(W.g)
            out += W.run(mf[lo:lo + 6], [s0, sm, sx, sw, stt] if g == 0 else [s0, sx, spf, sw, s2, stt])
        if g == 7: out += [t for (_, t) in s2]; s2.clear()
        assert not s0
        for l in out: p(l)
        allout += out
        G.stamp(f"s{L}{g}")
    tail = epi(G, 7, L) + [t for (_, t) in sx] + feed.rest()
    for l in tail: p(l)
    allout += tail
    ins = [pg.Ins(x.split(" @")[0].lstrip("!")) for l in allout for x in l.split("\n") if not (x.startswith("@") or x.endswith(":"))]
    pfs = {h_ld(0, k, rs) for k in range(11) for rs in range(2)}
    txt = [a0.text for a0 in ins]
    i5 = min(i for i, t in enumerate(txt) if t.startswith(f"v_mfma_f32_16x16x32_bf16 v[{ACC(5)}:"))
    assert not any(t.startswith("buffer_store") and (f"v{vPOI}," in t or f"v[{vPOI}:" in t) for t in txt[i5:])
    for i, a0 in enumerate(ins):
        if a0.text in pfs:
            for b0 in ins[i+1:]: assert not (a0.wr & (b0.rd | b0.wr)), (a0.text, b0.text)
    gi = 0; pos = {}
    for l in allout:
        if l.startswith("v_mfma"): gi += 1
        if "@hs" in l: pos[l.split("@")[-1]] = "%.1f" % (gi/48)
        if "@wd" in l: pos[l.split("@")[-1]] = "%.1f" % (gi/48)
    print("leftover L%d positions" % L, pos)
    print("L%d leftover: tail %d, prefetch left %d" % (L, len(tail), len(spf)))
    return [t for (_, t) in spf]

def h_verify(G, P, k):
    e = RING + 8*k
    ck = [f"v_max3_u32 v23, v{e}, v{e+1}, v{e+2}", f"v_max3_u32 v23, v23, v{e+3}, v{e+4}",
          f"v_max3_u32 v23, v23, v{e+5}, v{e+6}", f"v_max_u32 v23, v23, v{e+7}", f"v_cmp_eq_u32 vcc, -1, v23"]
    lf, lb = G.add_fix([h_ld(P, k, 0), h_ld(P, k, 1)], ck, f'h{P}')
    return ck + [f"s_cbranch_vccnz {lf}", lb + ":"]

def red_imm(P, j):
    b = 32768 if P == 0 else 0
    return b + 1024*j if j < 4 else b + 16384 + 1024*(j - 4)

def red_writes(P):
    o = []
    for rel in (1, 2, 3):
        for tl in range(2):
            a = AP[P] + 16*(rel >> 1) + 4*(2*(rel & 1) + tl)
            o.append(f"ds_write_b128 v{vVF}, v[{a}:{a+3}] offset:{red_imm(P, 2*(rel - 1) + tl)}")
    return o

RA = 68
def red_reads(P, RD):
    return [f"ds_read_b128 v[{RD+4*j}:{RD+4*j+3}], v{RA + j//2} offset:{red_imm(P, j)}" for j in range(6)]

def red_adds(P, RD, pk, mid=()):
    o = []
    a = AP[P]
    if pk:
        for base in (0, 8, 16):
            for i in range(0, 8, 2): o.append(f"v_pk_add_f32 v[{a+i}:{a+i+1}], v[{a+i}:{a+i+1}], v[{RD+base+i}:{RD+base+i+1}]")
    else:
        for base in (0, 8, 16):
            for i in range(8): o.append(f"v_add_f32 v{a+i}, v{a+i}, v{RD+base+i}")
    o += list(mid)
    for i in range(4): o += [f"v_lshlrev_b32 v{RD+2*i}, 16, v{vXR+4*P+i}", f"v_and_b32 v{RD+2*i+1}, 0xffff0000, v{vXR+4*P+i}"]
    if pk:
        for i in range(0, 8, 2): o.append(f"v_pk_fma_f32 v[{RD+i}:{RD+i+1}], v[{a+i}:{a+i+1}], v[{vR2+2*P}:{vR2+2*P+1}], v[{RD+i}:{RD+i+1}] op_sel:[0,1,0] op_sel_hi:[1,1,1]")
    else:
        for i in range(8): o.append(f"v_fmac_f32 v{RD+i}, v{a+i}, v{vR2+2*P+1}")
    return o

def gemm2(G, L, left):
    p = G.p
    p("s_barrier")
    G.stamp(f"g1end{L}")
    W = Weaver(vm_space=G.opt.get("vs2", 4))
    sv = [(0, t) for t in left]
    side = []
    for rel in (1, 2, 3): side += [f"v_xor_b32 v22, {rel}, v2", f"v_lshl_add_u32 v{RA+rel-1}, v22, 12, v{vL16}"]
    if L == 0: side += st_base(sT + 2, WS_STX) + xtile_base(sT + 4, WS_X3B) + [f"s_add_u32 s{sT+3}, s{sT+2}, 0x{WS_STA[1]-WS_STX:x}"]
    else: side += [f"s_add_u32 s{sT+2}, s{sOB}, {4*16384}"]
    RD0, RD1 = 72, 96
    for P in range(2):
        while any(t in (h_ld(P, 0, 0), h_ld(P, 0, 1)) for (_, t) in sv): p(sv.pop(0)[1])
        for l in h_verify(G, P, 0): p(l)
        s3 = []
        for k in range(11):
            mf = []
            for cs in range(4):
                for rs in range(2):
                    w = ar(192 + 16*k + 4*cs, 4) if k < 4 else vr(WF + 16*(k % 2) + 4*cs, 4)
                    mf.append(mfma(AP[P] + 16*rs + 4*cs, w, vr(RING + 8*k + 4*rs, 4), "0" if k == 0 else None))
            s0 = []
            if 3 <= k < 10:
                if P == 0: s0.append((0, f"@wv wd{k+1}"))
                s0 += [(i // 2, t) for i, t in enumerate(wd_tr(WID[k + 1], WF + 16*((k + 1) % 2), False))]
            s1 = [(3, t) for t in h_verify(G, P, k + 1)] if k < 10 else []
            if P == 0:
                if k >= 1: sv += [(0, h_ld(1, k - 1, 0)), (0, h_ld(1, k - 1, 1))]
                if k == 0: s3 += [(0, t) for t in side]
                if L == 0 and k == 0: s1 = [(0, t) for t in hflag_ld(0)] + s1
                if L == 0 and k == 3: s1 = [(0, t) for t in hflag_chk(G, 0)] + s1
                W.vm_space = G.opt.get("vsb", 2) if any(" s%d " % (sHL + i) in t for (_, t) in sv for i in range(3)) else G.opt.get("vs2", 3)
            else:
                if k == 0: sv += [(0, h_ld(1, 10, 0)), (0, h_ld(1, 10, 1))]; s3 += [(2, t) for t in red_writes(0)]
                if k == 2: s3 += [(0, "s_waitcnt lgkmcnt(0)"), (1, "s_barrier")]
                if k == 3: s3 += [(0, t) for t in red_reads(0, RD0)] + [(0, t) for t in red_adds(0, RD0, False)]
            need = (h_ld(P, k + 1, 0), h_ld(P, k + 1, 1)) if k < 10 else ((h_ld(1, 0, 0), h_ld(1, 0, 1)) if P == 0 else ())
            while any(t in need for (_, t) in sv): p(sv.pop(0)[1])
            for l in W.run(mf, [sv, s0, s1, s3], flush=[1, 2]): p(l)
        if P == 0:
            for (_, t) in s3: p(t)
    G.stamp(f"g2mm{L}")
    for l in red_writes(1): p(l)
    for (_, t) in s3: p(t)
    p("s_waitcnt lgkmcnt(0)\ns_barrier")
    for l in red_reads(1, RD1) : p(l)
    X = (RD0, RD1)
    if L == 1:
        for P in range(2):
            if P == 1:
                for l in red_adds(1, RD1, True): p(l)
            x = X[P]; o = 128 + 4*P
            for i in range(4): p(f"v_cvt_pk_bf16_f32 v{o+i}, v{x+2*i}, v{x+2*i+1}")
            p(f"v_permlane16_swap_b32 v{o}, v{o+2}\nv_permlane16_swap_b32 v{o+1}, v{o+3}")
            p(f"buffer_store_dwordx4 v[{o}:{o+3}], v{vOA}, {srd(SRD_O)}, s{sOB if P == 0 else sT+2} offen")
        return
    for l in psum(X[0], 0) + red_adds(1, RD1, True) + psum(X[1], 1) + fold(SS): p(l)
    p(f"buffer_store_dword v{SS}, v{vSTW}, {WS}, s{sT+2} offen sc1")
    G.stamp("stpub")
    PT, YU = 104, 144
    pre = unpack(YU, vY, 8) + layer_scalars(1)
    nb = G.opt.get("stb", 16)
    for l in pre[:nb]: p(l)
    G.poll(st_ld(PT, vSTR, sT + 2), [], st_ck(PT, 23), "st", pre[nb:])
    for l in ln_coef(PT): p(l)
    for P in range(2):
        for l in ln_norm(X[P], 132, P) + gate_out(X[P], 132, YU + 8*P, P, sT + 4 + P): p(l)
    G.stamp("x3st")
    for l in publish(X, sT + 3): p(l)
    G.between = []

def x_start(G, L, between):
    n = G.nf[L]
    att = [l for g in range(n) for l in x_dma(g, L)]
    VR2 = 72
    rd = [f"ds_read_b128 v[{VR2+16*g+4*i}:{VR2+16*g+4*i+3}], v{vVF} offset:{g*16384 + 1024*i}" for g in range(n) for i in range(4)]
    rs = [VR2 + 4*k + 3 for k in range(4*n)]
    ck = [f"v_max3_u32 v{vVA}, v{rs[0]}, v{rs[1]}, v{rs[2]}"]
    k = 3
    while k + 1 < len(rs): ck.append(f"v_max3_u32 v{vVA}, v{vVA}, v{rs[k]}, v{rs[k+1]}"); k += 2
    if k < len(rs): ck.append(f"v_max_u32 v{vVA}, v{vVA}, v{rs[k]}")
    ck.append(f"v_cmp_eq_u32 vcc, -1, v{vVA}")
    G.poll(att, rd, ck, "x0", between)

def mlp(G):
    p = G.p
    G.nf = (G.opt.get("nf0", 2), G.opt.get("nf1", 2))
    for L in range(2):
        if L == 0:
            from gen_front import handover
            between = handover(G)
        else:
            p("s_waitcnt lgkmcnt(0)\ns_barrier")
            between = G.between
        x_start(G, L, between)
        p("s_waitcnt lgkmcnt(0)\ns_barrier")
        G.stamp(f"g1go{L}")
        left = gemm1_normal(G, L)
        if G.stop == "g1" or (G.stop == "g1b" and L == 1): return
        gemm2(G, L, left)
        if G.stop == "g2": return
```

```python
import re

REG = re.compile(r'^(-|\|)?(abs\()?([vas])(\d+|\[(\d+):(\d+)\])\)?\|?$')

def regs_of(tok):
    tok = tok.strip()
    if tok in ("vcc", "exec"):
        return {tok + "_lo", tok + "_hi"}
    if tok in ("vcc_lo", "vcc_hi", "exec_lo", "exec_hi", "m0"):
        return {tok}
    m = REG.match(tok)
    if not m:
        return set()
    k = m.group(3)
    if m.group(5) is not None:
        return {"%s%d" % (k, i) for i in range(int(m.group(5)), int(m.group(6)) + 1)}
    return {"%s%d" % (k, int(m.group(4)))}

TRANS = ("v_exp_f32", "v_log_f32", "v_rcp_f32", "v_rsq_f32", "v_sqrt_f32", "v_sin_f32", "v_cos_f32")

class Ins:
    __slots__ = ("text", "mn", "ops", "mods", "rd", "wr", "kind", "tag", "dpp", "nslots", "cC", "store_data", "islds")
    def __init__(self, text, tag=None):
        self.text = text.strip()
        self.tag = tag
        t = self.text.split(";")[0].strip()
        p = t.split(None, 1)
        self.mn = p[0]
        rest = p[1] if len(p) > 1 else ""
        ops = []; depth = 0; cur = ""
        for ch in rest:
            if ch in "[(": depth += 1
            if ch in "])": depth -= 1
            if ch == "," and depth == 0:
                ops.append(cur.strip()); cur = ""
            else:
                cur += ch
        if cur.strip(): ops.append(cur.strip())
        mods = ""
        if ops:
            q = ops[-1].split(None, 1)
            if len(q) > 1 and not ops[-1].startswith("hwreg"):
                ops[-1] = q[0]; mods = q[1]
        self.ops = ops; self.mods = mods
        self.dpp = ("row_" in mods or "quad_perm" in mods or "_dpp" in self.mn)
        self.nslots = 1
        self.cC = set(); self.store_data = set(); self.islds = False
        mn = self.mn
        R = lambda i: regs_of(ops[i]) if i < len(ops) else set()
        allr = lambda a: set().union(*[R(i) for i in range(a, len(ops))]) if a < len(ops) else set()
        if mn.startswith("v_mfma"):
            self.kind = "mfma"; self.wr = R(0); self.rd = allr(1); self.cC = R(3)
        elif mn.startswith("v_"):
            self.kind = "valu"
            if mn.startswith("v_cmp"):
                self.wr = R(0); self.rd = allr(1)
            elif mn.startswith("v_permlane") and "swap" in mn:
                self.wr = R(0) | R(1); self.rd = R(0) | R(1)
            elif mn.startswith(("v_fmac", "v_dot2c", "v_pk_fmac")):
                self.wr = R(0); self.rd = allr(0)
            elif mn.startswith(("v_add_co", "v_sub_co", "v_addc_co")):
                self.wr = R(0) | R(1); self.rd = allr(2)
            else:
                self.wr = R(0); self.rd = allr(1)
                if mn.startswith("v_cndmask") and len(ops) == 3: self.rd |= {"vcc_lo", "vcc_hi"}
            if self.dpp and "bound_ctrl" not in mods and mn.startswith("v_mov"): self.rd |= R(0)
        elif mn.startswith("ds_"):
            self.kind = "ds"
            if mn.startswith(("ds_read", "ds_bpermute", "ds_swizzle")):
                self.wr = R(0); self.rd = allr(1)
            else:
                self.wr = set(); self.rd = allr(0)
        elif mn.startswith("buffer_") or mn.startswith("global_"):
            self.kind = "vmem"
            lds = re.search(r'\blds\b', mods) is not None or "_lds_" in mn
            self.islds = lds
            if mn in ("buffer_wbl2", "buffer_inv"):
                self.wr = set(); self.rd = set()
            elif lds:
                self.wr = set(); self.rd = allr(0) | {"m0"}
            elif "load" in mn:
                self.wr = R(0); self.rd = allr(1)
            elif mn.startswith("buffer_store"):
                self.wr = set(); self.rd = allr(0)
                if "x4" in mn or "x3" in mn: self.store_data = R(0)
            elif mn.startswith("global_store"):
                self.wr = set(); self.rd = allr(0)
                if "x4" in mn or "x3" in mn: self.store_data = R(1)
            else:
                raise ValueError("unhandled vmem " + self.text)
        elif mn.startswith("s_"):
            self.kind = "salu"
            if mn.startswith(("s_load", "s_memtime", "s_memrealtime")):
                self.kind = "smem"; self.wr = R(0); self.rd = allr(1)
            elif mn.startswith(("s_cmp", "s_bitcmp", "s_cbranch", "s_branch", "s_barrier", "s_waitcnt", "s_nop", "s_endpgm", "s_sleep", "s_setprio")):
                self.wr = set(); self.rd = allr(0) if mn.startswith(("s_cmp", "s_bitcmp")) else set()
                if mn == "s_nop": self.nslots = int(ops[0]) + 1
            elif "saveexec" in mn:
                self.wr = R(0) | {"exec_lo", "exec_hi"}; self.rd = allr(1) | {"exec_lo", "exec_hi"}
            else:
                self.wr = R(0); self.rd = allr(1)
        else:
            raise ValueError("unknown instr: " + self.text)

class Pseudo:
    def __init__(self, kind, arg=None):
        self.kind = kind; self.arg = arg

class Prog:
    def __init__(self):
        self.items = []
        self.uid = 0
        self.stats = {}
    def __call__(self, s, tag=None):
        for l in s.split("\n"):
            l = l.strip().lstrip("!")
            if not l or l.startswith(";"): continue
            if l.endswith(":"):
                self.items.append(Pseudo("label", l[:-1]))
            elif l.startswith("."):
                self.items.append(Pseudo("raw", l))
            elif l.startswith("@wv "):
                self.items.append(Pseudo("wv", l[4:].strip()))
            elif l.startswith("@seed "):
                self.items.append(Pseudo("seed", l[6:].split()))
            elif l.startswith("@wl "):
                self.items.append(Pseudo("wl", l[4:].strip()))
            else:
                t = tag
                if "@" in l:
                    l, t = l.rsplit("@", 1); t = t.strip()
                self.items.append(Ins(l, t))
    def new(self, p="L"):
        self.uid += 1
        return "%s%d" % (p, self.uid)
    def fresh(self):
        self.items.append(Pseudo("fresh"))
    def comment(self, s):
        self.items.append(Pseudo("raw", "; " + s))

    def finalize(self):
        out = []
        vm = []
        lg = []
        def count_after(lst, idx, pos):
            return sum(1 for (o, p) in lst[idx + 1:] if p < pos)
        def place_wait(kind, lst, idx):
            pos = len(out)
            tgt_pos = lst[idx][1]
            k = len(out) - 1; steps = 0
            while k >= 0 and steps < 3 and isinstance(out[k], Ins):
                if out[k].kind == "mfma":
                    if k + 1 > tgt_pos and k + 1 < len(out):
                        nxt = out[k + 1]
                        if nxt.kind in ("valu", "ds", "vmem"):
                            pos = k + 1
                        elif nxt.mn == "s_waitcnt":
                            pos = -(k + 1) - 1
                    break
                if out[k].mn in ("s_barrier",) or out[k].mn.startswith("s_cbranch"): break
                k -= 1; steps += 1
            merge = None
            if pos < 0:
                merge = -(pos + 1); pos = merge
            if kind == "lg" and any(o.kind == "smem" for (o, p) in lst if p < pos):
                n = 0
            else:
                n = count_after(lst, idx, pos)
            n = min(n, 63 if kind == "vm" else 15)
            name = "vmcnt" if kind == "vm" else "lgkmcnt"
            if merge is None and pos == len(out) and out and isinstance(out[-1], Ins) and out[-1].mn == "s_waitcnt":
                merge = len(out) - 1
            if merge is not None:
                w = out[merge]
                m = re.search(name + r'\((\d+)\)', w.text)
                if m:
                    n = min(n, int(m.group(1)))
                    txt = w.text.replace(m.group(0), "%s(%d)" % (name, n))
                else:
                    txt = w.text + " %s(%d)" % (name, n)
                out[merge] = Ins(txt)
            else:
                out.insert(pos, Ins("s_waitcnt %s(%d)" % (name, n)))
                for L in (vm, lg):
                    for i2, (o, p) in enumerate(L):
                        if p >= pos: L[i2] = (o, p + 1)
            before = [e for e in lst if e[1] < pos or (merge is None and e[1] < pos + 1 and e[1] < pos)]
            nb = len(before)
            del lst[:max(0, nb - n)]
        for it in self.items:
            if isinstance(it, Pseudo):
                if it.kind in ("label", "raw"):
                    out.append(it)
                elif it.kind == "fresh":
                    vm.clear(); lg.clear(); out.append(Pseudo("raw", "; --- fresh"))
                elif it.kind == "seed":
                    for _ in range(int(it.arg[1])):
                        vm.append((Ins("buffer_inv", it.arg[0]), len(out) - 1))
                elif it.kind in ("wv", "wl"):
                    lst = vm if it.kind == "wv" else lg
                    tags = it.arg.split(",")
                    idx = max([i for i, (o, p) in enumerate(lst) if o.tag in tags], default=-1)
                    if idx >= 0: place_wait("vm" if it.kind == "wv" else "lg", lst, idx)
                continue
            ins = it
            touched = ins.rd | ins.wr
            if ins.mn == "s_waitcnt":
                m = re.search(r'vmcnt\((\d+)\)', ins.text)
                if m: del vm[:max(0, len(vm) - int(m.group(1)))]
                m = re.search(r'lgkmcnt\((\d+)\)', ins.text)
                if m: del lg[:max(0, len(lg) - int(m.group(1)))]
                out.append(ins); continue
            idx = max([i for i, (o, p) in enumerate(vm) if o.wr & (ins.wr if (o.tag or "").endswith("~") else touched) and not ((o.tag or "").endswith("~") and (ins.tag or "").endswith("~"))], default=-1)
            if (ins.tag or "").endswith("~"): idx = -1
            if idx >= 0: place_wait("vm", vm, idx)
            idx = max([i for i, (o, p) in enumerate(lg) if o.wr & touched], default=-1)
            if idx >= 0: place_wait("lg", lg, idx)
            if ins.kind == "vmem": vm.append((ins, len(out)))
            if ins.kind in ("ds", "smem"): lg.append((ins, len(out)))
            out.append(ins)
        res = []
        hist = []
        slot = 0
        nnop = 0
        for it in out:
            if isinstance(it, Pseudo):
                res.append(it.arg + (":" if it.kind == "label" else "")); continue
            need = 0
            for (p, ps) in reversed(hist):
                d = slot - ps - p.nslots
                if d >= 9: break
                need = max(need, hazard(p, it) - d)
            if need > 0:
                res.append("s_nop %d" % (need - 1)); slot += need; nnop += 1
            res.append(it.text)
            hist.append((it, slot)); slot += it.nslots
            if len(hist) > 16: hist.pop(0)
        self.stats = dict(nops=nnop, n=len(res))
        return res

def isv(s): return {r for r in s if r[0] in "va" and r[1:].isdigit()}
def iss(s): return {r for r in s if not (r[0] in "va" and r[1:].isdigit())}

def hazard(p, c):
    n = 0
    if p.kind == "valu":
        wv = isv(p.wr); ws = iss(p.wr)
        if c.kind == "mfma" and wv & c.rd: n = max(n, 2)
        if c.kind == "valu":
            if wv & c.rd:
                if c.mn.startswith("v_permlane") or c.dpp: n = max(n, 2)
                if c.mn.startswith(("v_readlane", "v_readfirstlane")): n = max(n, 1)
                if p.mn.startswith(TRANS) and not c.mn.startswith(TRANS): n = max(n, 1)
            if p.mn.startswith("v_dot") and wv & (c.rd | c.wr):
                same_acc = (c.mn == p.mn and not (wv & (regs_of(c.ops[1]) | regs_of(c.ops[2]))))
                if not same_acc: n = max(n, 3)
            if ws & c.rd: n = max(n, 2)
        if p.mn.startswith("v_dot") and c.kind in ("ds", "vmem", "mfma") and wv & (c.rd | c.wr): n = max(n, 3)
        if c.kind == "vmem" and ws & c.rd: n = max(n, 5)
    elif p.kind == "mfma":
        D = p.wr
        if c.kind == "mfma":
            ab = regs_of(c.ops[1]) | regs_of(c.ops[2])
            if D & ab: n = max(n, 8)
            if D & c.cC and D != c.cC: n = max(n, 6)
            if D & c.wr and not (D & c.cC): n = max(n, 6)
        elif c.kind in ("valu", "ds", "vmem"):
            if D & (c.rd | c.wr): n = max(n, 8)
            if c.kind == "valu" and p.cC & c.wr: n = max(n, 3)
    elif p.kind == "vmem":
        if p.store_data and c.kind == "valu" and p.store_data & c.wr: n = max(n, 2)
        elif p.store_data and p.store_data & c.wr: n = max(n, 1)
    elif p.kind == "salu":
        if "m0" in p.wr and c.kind == "vmem" and c.islds: n = max(n, 1)
    return n

def lds_cost(t):
    if not t.startswith("ds_"): return 0
    if t.startswith("ds_write_b128"): return 52
    if t.startswith(("ds_read_b128", "ds_write_b32", "ds_read2")): return 16
    return 8

class Weaver:
    def __init__(self, vm_space=4, cap=2, no_s=None):
        self.no_s = no_s or (lambda g: False)
        self.debt = 0; self.lds_max = 24
        self.g = 0; self.last_vm = -100; self.vm_space = vm_space; self.cap = cap
    def run(self, mf, streams, flush=()):
        out = []
        free = lambda t: (t.startswith("@") or t.endswith(":")) and "\n" not in t
        isvm = lambda t: t.startswith(("buffer_", "global_"))
        for g, m in enumerate(mf):
            out.append(m)
            nv = 0; used_s = self.no_s(self.g + g); pend = None
            self.debt = max(0, self.debt - 16)
            while True:
                placed = False
                for s in streams:
                    if pend and s is pend[0]: continue
                    while s and s[0][0] <= g and free(s[0][1]):
                        out.append(s.pop(0)[1])
                if not used_s and nv == 0:
                    for s in streams:
                        if not s or s[0][0] > g: continue
                        t = s[0][1]
                        if "\n" in t:
                            if self.g + g - self.last_vm < self.vm_space and t.count("\n") == 1: continue
                            if t.count("\n") > 1:
                                out.append(s.pop(0)[1]); self.last_vm = self.g + g
                                used_s = True; nv = 2; placed = True; break
                            a, b = t.split("\n"); s.pop(0)
                            out.append(a); pend = (s, b); self.last_vm = self.g + g
                            used_s = True; nv = 1; placed = True; break
                        if t.startswith("s_"):
                            out.append(s.pop(0)[1]); used_s = True; placed = True; break
                    if placed: continue
                for s in streams:
                    if not s or s[0][0] > g: continue
                    if pend and s is pend[0]: continue
                    t = s[0][1]
                    if "\n" in t: continue
                    if isvm(t) and self.g + g - self.last_vm < self.vm_space: continue
                    w = 2 if t.startswith("v_permlane") else 1
                    lc = lds_cost(t)
                    if lc and self.debt > 0 and self.debt + min(lc, 16) > self.lds_max: continue
                    if nv + w <= self.cap or nv == 0:
                        self.debt += lc
                        if isvm(t) or t.startswith("!"): self.last_vm = self.g + g
                        out.append(s.pop(0)[1]); nv += w; placed = True; break
                if not placed: break
            if pend: out.append(pend[1])
        self.g += len(mf)
        for k in flush:
            out += [t for (_, t) in streams[k]]; streams[k].clear()
        for s in streams:
            for i2 in range(len(s)): s[i2] = (max(0, s[i2][0] - len(mf)), s[i2][1])
        return out

def weave(mf, streams, cap=2, vm_space=0):
    st = [list(s) for s in streams]
    return Weaver(vm_space, cap).run(mf, st, flush=range(len(st)))
```

```python
import sys
sys.path.insert(0, "tools")
from pg import Prog, weave

NAME = "interleave_layers__ssm_conv_h3__glu_gated_reglu__prompt_kernel"
HEADER = open("interleave_layers__ssm_conv_h3__glu_gated_reglu__prompt.s.ref").read().split("; Override")[0].rstrip()
S, D, F = 2048, 512, 1376

WS_EPOCH = 0x0
WS_FLAGS = 0x10000
WS_HFL = 0x1a000
WS_STQ, WS_STX = 0xE80000, 0xEC0000
WS_STA = (0xF00000, 0xF40000)
WS_KVG = 0x100000
import os
XP = int(os.environ.get('XP', 16512))
QP = int(os.environ.get('QP', 16512))
WS_X1B = 0x820000
WS_YB = 0xA40000
WS_X3B = 0xC60000
WS_HF = (0x1000000, 0x1600000)
HF_PITCH = 180 * 256
WS_DBG = 0x1C00000
WS_SIZE = 0x2000000

L_TC = 0; TC_STRIDE = 4160; TC_CH = 4 * TC_STRIDE
L_RS = 0
L_U = 33280; U_CH = 4608
L_WST = 61408; WST_UP = 49152 + 16
L_XS = 0
L_A = 114688
L_SP = 147456
L_MISC = 159744
LDS_SIZE = 163840

sX, sJ, sW, sTAG, sC = 3, 4, 5, 6, 7
sQP, sSKP, sDP = 16, 18, 20
SRD_K, SRD_V, SRD_H, SRD_WG, SRD_WU, SRD_WD, SRD_WS, SRD_O = 24, 28, 32, 36, 40, 44, 48, 52
sD0, sD1 = 56, 57
sDEAD, sSPIN = 58, 59
sR0 = 60
sHB, sCT = 61, 62
sT = 64
sM = 80
sST = 90
SPIN_MAX = 400000

def srd(n): return "s[%d:%d]" % (n, n + 3)
def vr(a, n=1): return "v%d" % a if n == 1 else "v[%d:%d]" % (a, a + n - 1)
def ar(a, n=1): return "a%d" % a if n == 1 else "a[%d:%d]" % (a, a + n - 1)
def mfma(d, a, b, c=None):
    return "v_mfma_f32_16x16x32_bf16 %s, %s, %s, %s" % (vr(d, 4), a, b, vr(d, 4) if c is None else c)

class Gen:
    def __init__(self, stop=None, stamps=False, skip=()):
        self.skip = set(skip)
        self.p = Prog()
        self.fix = []
        self.stop = stop
        self.stamps = stamps
        self.nst = 0
        self.stnames = []
        self.extra = []
        self.probe = None
        self.opt = {}

    def stamp(self, name):
        if not self.stamps: return
        p = self.p
        if name not in self.skip and name != "end": return
        if name in self.stnames: idx = self.stnames.index(name)
        else:
            assert self.nst < 12
            idx = self.nst; self.nst += 1; self.stnames.append(name)
        p("s_waitcnt lgkmcnt(0)\ns_memrealtime s[14:15]\ns_waitcnt lgkmcnt(0)\ns_mov_b32 s%d, s14" % (sST + idx))

    def spin_guard(self, lback):
        return ["s_cmp_lg_u32 s%d, 0" % sDEAD, "s_cbranch_scc1 %s" % lback,
                "s_add_u32 s%d, s%d, 1" % (sSPIN, sSPIN), "s_cmp_lt_u32 s%d, %d" % (sSPIN, SPIN_MAX),
                "s_cselect_b32 s%d, 0, 1" % sDEAD]

    CATS = ["kvg", "y", "x0", "x", "m", "h0", "h1", "st"]
    def add_fix(self, body_reload, body_check, cat="st"):
        p = self.p
        lf = p.new("FIX"); lb = p.new("BACK")
        ci = self.CATS.index(cat)
        cnt = [f"s_add_u32 s{88 + ci // 4}, s{88 + ci // 4}, {1 << (8 * (ci % 4))}"] if self.stamps else []
        blk = [lf + ":"] + cnt + self.spin_guard(lb + "_x") + body_reload + ["s_waitcnt vmcnt(0) lgkmcnt(0)"] + body_check + \
              ["s_cbranch_vccnz %s" % lf, lb + "_x:", "s_waitcnt vmcnt(0) lgkmcnt(0)", "s_nop 7", "s_branch %s" % lb]
        self.fix.append(blk)
        return lf, lb

    def poll(self, att, mid, check, cat, between=()):
        p = self.p
        n = sum(1 for l in att for x in l.split("\n") if x.startswith(("buffer_", "global_")))
        tag = p.new("at")
        def tagged(t): return ["\n".join((x.split(" @")[0] + " @" + t) if x.lstrip("!").startswith(("buffer_", "global_")) else x for x in l.split("\n")) for l in att]
        lf = p.new("FIX"); lb = p.new("BACK")
        ci = self.CATS.index(cat)
        cnt = [f"s_add_u32 s{88 + ci // 4}, s{88 + ci // 4}, {1 << (8 * (ci % 4))}"] if self.stamps else []
        blk = [lf + ":"] + cnt + self.spin_guard(lb + "_x") + tagged(tag + "~") + [f"s_waitcnt vmcnt({n})"] + mid + ["s_waitcnt lgkmcnt(0)"] + check + \
              ["s_cbranch_vccnz %s" % lf, lb + "_x:", "s_waitcnt lgkmcnt(0)", "s_nop 7", "s_branch %s" % lb]
        self.fix.append(blk)
        if cat in self.opt.get("single", ("kvg", "y", "x0", "st")):
            blk[blk.index(f"s_waitcnt vmcnt({n})")] = "s_waitcnt vmcnt(0)"
            for l in tagged(tag): p(l)
            for l in between: p(l)
            p(f"@wv {tag}")
            for l in mid + check: p(l)
            p(f"s_cbranch_vccnz {lf}\n{lb}:")
            return tag
        for l in tagged(tag): p(l)
        for l in between: p(l)
        for l in tagged(tag + "~"): p(l)
        p(f"@wv {tag}")
        for l in mid + check: p(l)
        p(f"s_cbranch_vccnz {lf}\n{lb}:")
        return tag + "~"

    def finish(self):
        p = self.p
        p(f"""s_cmp_lg_u32 s2, 0
s_cbranch_scc1 L_NOEP
v_mov_b32 v21, 0
v_mov_b32 v22, s{sTAG}
s_mov_b64 exec, 1
buffer_store_dword v22, v21, {srd(SRD_WS)}, 0 offen sc1
s_mov_b64 exec, -1
L_NOEP:""")
        if self.stamps:
            p("s_waitcnt vmcnt(0)")
            self.stamp("end")
            p(f"s_cmp_lg_u32 s{sW}, 0\ns_cbranch_scc1 L_END")
            p(f"s_lshl_b32 s{sT}, s2, 6\ns_add_u32 s{sT}, s{sT}, 0x{WS_DBG:x}\nv_mov_b32 v21, 0\ns_mov_b64 exec, 1")
            for i in range(self.nst):
                p(f"v_mov_b32 v22, s{sST+i}\nbuffer_store_dword v22, v21, {srd(SRD_WS)}, s{sT} offen offset:{4*i}")
            p(f"v_mov_b32 v22, s88\nbuffer_store_dword v22, v21, {srd(SRD_WS)}, s{sT} offen offset:52\nv_mov_b32 v22, s89\nbuffer_store_dword v22, v21, {srd(SRD_WS)}, s{sT} offen offset:56")
            p(f"v_mov_b32 v22, s{sSPIN}\nbuffer_store_dword v22, v21, {srd(SRD_WS)}, s{sT} offen offset:60")
        p("L_END:\ns_endpgm")
        labels = {it.arg for pr in [p] + self.extra for it in pr.items if getattr(it, "kind", "") == "label"}
        for blk in self.fix:
            if blk[-1].split()[-1] not in labels: continue
            p.fresh()
            for l in blk: p(l)

    def build(self):
        self.code_kb = 64
        from gen_front import front, conv
        front(self)
        conv(self)
        if self.stop != "conv":
            from gen_mlp import mlp
            mlp(self)
        self.finish()
        body = self.p.finalize()
        for e in self.extra: body += e.finalize()
        txt = [HEADER, f"; @launch grid=(256,1,1) block=(256,1,1) lds={LDS_SIZE}", '.amdgcn_target "amdgcn-amd-amdhsa--gfx950"', ".text",
               f".globl {NAME}", ".p2align 8", f".type {NAME},@function", NAME + ":"] + body
        txt += [".p2align 8", f".fill (65536 + 2048 - (. - {NAME})) / 4, 4, 0xbf800000"]
        txt += ['.section .rodata,"a"', ".p2align 6", f".amdhsa_kernel {NAME}", "  .amdhsa_next_free_vgpr 512", "  .amdhsa_next_free_sgpr 102",
                "  .amdhsa_accum_offset 256", "  .amdhsa_group_segment_fixed_size 0", "  .amdhsa_kernarg_size 104", "  .amdhsa_user_sgpr_count 2",
                "  .amdhsa_user_sgpr_kernarg_segment_ptr 1", "  .amdhsa_system_sgpr_workgroup_id_x 1", ".end_amdhsa_kernel"]
        t = "\n".join(txt) + "\n"
        if self.probe is not None: t = add_probe(t, *self.probe)
        return t

def add_probe(t, col, K, mode="max"):
    t = t.replace(f"; @launch grid=(256,1,1) block=(256,1,1) lds={LDS_SIZE}",
                  f"; @launch kernel={NAME} grid=(256,1,1) block=(256,1,1) lds={LDS_SIZE}\n; @launch kernel=probe_kernel grid=(1,1,1) block=(64,1,1) lds=0")
    red = "v_max_u32" if mode == "max" else "v_add_u32"
    code = [".text", ".globl probe_kernel", ".p2align 8", ".type probe_kernel,@function", "probe_kernel:",
            "s_cmp_ge_u32 s2, 1", "s_cbranch_scc1 PR_END", "s_load_dwordx2 s[4:5], s[0:1], 96", "s_waitcnt lgkmcnt(0)",
            f"s_add_u32 s4, s4, 0x{WS_DBG:x}", "s_addc_u32 s5, s5, 0", "v_lshlrev_b32 v1, 8, v0"]
    for i in range(4):
        code += [f"global_load_dword v{2+i}, v1, s[4:5] offset:{64*i}", f"global_load_dword v{6+i}, v1, s[4:5] offset:{64*i + 4*col}"]
    code += ["s_waitcnt vmcnt(0)", "v_min_u32 v2, v2, v3", "v_min_u32 v4, v4, v5", "v_min_u32 v2, v2, v4"]
    code += ["s_mov_b32 s10, -1", "s_nop 2"]
    for l in range(64): code += [f"v_readlane_b32 s11, v2, {l}", "s_nop 0", "s_min_u32 s10, s10, s11"]
    for i in range(4): code += [f"v_subrev_u32 v{6+i}, s10, v{6+i}"]
    code += [f"{red} v6, v6, v7", f"{red} v8, v8, v9", f"{red} v6, v6, v8", "s_mov_b32 s12, 0", "s_nop 2"]
    for l in range(64): code += [f"v_readlane_b32 s11, v6, {l}", "s_nop 0", ("s_max_u32" if mode == "max" else "s_add_u32") + " s12, s12, s11"]
    if mode != "max": code += ["s_lshr_b32 s12, s12, 8"]
    code += [f"s_mul_i32 s12, s12, {K}", "s_min_u32 s12, s12, 200000", "s_memrealtime s[14:15]", "s_waitcnt lgkmcnt(0)",
             "PR_LOOP:", "s_memrealtime s[16:17]", "s_waitcnt lgkmcnt(0)", "s_sub_u32 s16, s16, s14", "s_cmp_lt_u32 s16, s12", "s_cbranch_scc1 PR_LOOP",
             "PR_END:", "s_endpgm"]
    kd = [".p2align 6", ".amdhsa_kernel probe_kernel", "  .amdhsa_next_free_vgpr 32", "  .amdhsa_next_free_sgpr 32", "  .amdhsa_accum_offset 32",
          "  .amdhsa_group_segment_fixed_size 0", "  .amdhsa_kernarg_size 104", "  .amdhsa_user_sgpr_count 2",
          "  .amdhsa_user_sgpr_kernarg_segment_ptr 1", "  .amdhsa_system_sgpr_workgroup_id_x 1", ".end_amdhsa_kernel"]
    t = t.replace('.section .rodata,"a"', "\n".join(code) + '\n.section .rodata,"a"')
    return t + "\n".join(kd) + "\n"

if __name__ == "__main__":
    import argparse
    ap = argparse.ArgumentParser()
    ap.add_argument("-o", default="k.s")
    ap.add_argument("--stop", default=None)
    ap.add_argument("--stamps", action="store_true")
    ap.add_argument("--st", default="")
    ap.add_argument("--probe", default="")
    ap.add_argument("--opt", default="")
    a = ap.parse_args()
    g = Gen(stop=a.stop, stamps=a.stamps, skip=a.st.split(','))
    for kv in a.opt.split(","):
        if kv:
            k_, v_ = kv.split("=")
            g.opt[k_] = v_.split("+") if k_ == "single" else int(v_)
    if a.probe:
        q = a.probe.split(","); g.probe = (int(q[0]), int(q[1]), q[2] if len(q) > 2 else "max")
    t = g.build()
    open(a.o, "w").write(t)
    open(a.o + ".stamps", "w").write(" ".join(g.stnames))
    print("lines", g.p.stats, "stamps", g.stnames)
```

```python
import sys
sys.path.insert(0, "tools")
from pg import weave, Weaver
from gen import *

WS = srd(SRD_WS)
fTW, fUZ, fRSW, fRSR, fKVR, fHP, fFA, fFB = range(220, 228)
QT8 = 228
fK, fKh, fK4, fSK, fKVG, fH, fPF = range(236, 243)
fWD = 243
fWT = 246
fCO, fCA, fCB, fT16 = 252, 253, 254, 255
ONE = 212
POI = 236
GR = 208
CS = 32
WH = (61376, 110560); WUP = 24576 + 16
sP = sT
sWs, sWm = sT + 6, sT + 7

NOW = [0]; ASC = [0]
KVMAP = ["""v_and_b32 v21, 15, v0
v_bfe_u32 v22, v0, 6, 1
v_lshl_add_u32 v21, v22, 4, v21
v_bfe_u32 v22, v0, 4, 2
v_lshrrev_b32 v23, 7, v0
v_lshl_add_u32 v22, v23, 2, v22""", """v_and_b32 v21, 7, v0
v_lshl_add_u32 v21, v2, 3, v21
v_bfe_u32 v22, v0, 3, 3""", """v_lshrrev_b32 v21, 3, v0
v_and_b32 v22, 7, v0"""]
YP = 2 * XP
def w_round(r):
    if NOW[0] == 2: return []
    o = [f"s_mul_i32 s{sWs}, s{sW}, {2*44032}", f"s_add_u32 s{sWs}, s{sWs}, {r*8*44032}"]
    for blk in range(2):
        for (sr, lo) in ((SRD_WG, 0), (SRD_WU, WUP)):
            for ph in range(3):
                o.append(f"s_add_u32 m0, s{sWm}, {WH[r % 2] + lo + blk*3072 + ph*1024}\nbuffer_load_dwordx4 v{fWD+ph}, {srd(sr)}, s{sWs} offen lds @w{r}")
        if blk == 0: o.append(f"s_add_u32 s{sWs}, s{sWs}, 44032")
    return o

def w_tr(r):
    return [f"ds_read_b64_tr_b16 {ar(64*t + 4*(4*r + k) + 2*h, 2)}, v{fWT + 3*(r % 2) + t} offset:{k*6144 + h*3072} @t{r}"
            for k in range(4) for t in range(3) for h in range(2)]

def w_cs(r):
    return [mfma(CS + 4*t, ar(64*t + 4*(4*r + k), 4), vr(ONE, 4), "0" if (r == 0 and k == 0) else None) for k in range(4) for t in range(3)]

def sprinkle(lines, extra, every, start=0):
    out = []; due = 0
    for i, l in enumerate(lines):
        out.append(l)
        if i >= start and (i - start) % every == 0: due = 1
        if due and not (i + 1 < len(lines) and lines[i + 1].startswith(("s_cselect", "s_cbranch", "s_addc"))):
            due = 0
            while extra and "\n" not in extra[0] and not extra[0].startswith(("buffer", "global")): out.append(extra.pop(0))
            if extra: out.append(extra.pop(0))
    return out

def front(G):
    import gen_mlp as M
    p = G.p
    NOW[0] = G.opt.get("nw", 0); ASC[0] = G.opt.get("asc", 0)
    if G.stamps:
        p("s_memrealtime s[80:81]\ns_waitcnt lgkmcnt(0)\ns_mov_b32 s%d, s80" % sST); G.nst = 1; G.stnames = ["start"]
    p("s_cmp_ge_u32 s2, 256\ns_cbranch_scc1 L_END")
    for reg, off in ((SRD_K, 8), (SRD_V, 16), (sSKP, 24), (SRD_WS, 96), (SRD_H, 32), (sQP, 0), (sDP, 40),
                     (SRD_WG, 56), (SRD_WU, 64), (SRD_WD, 72), (SRD_O, 80)):
        p("s_load_dwordx2 s[%d:%d], s[0:1], %d" % (reg, reg + 1, off))
    if G.opt.get("ipf", 0):
        p(f"s_getpc_b64 s[{sT+4}:{sT+5}]\nv_lshlrev_b32 v21, 7, v0\nglobal_load_dword a251, v21, s[{sT+4}:{sT+5}]")
    p(f"""s_and_b32 s{sX}, s2, 7
s_lshr_b32 s{sJ}, s2, 3
v_lshrrev_b32 v2, 6, v0
v_and_b32 v1, 63, v0
{KVMAP[G.opt.get("kfull", 1)]}
s_lshl_b32 s{sT+1}, s{sX}, 5
v_add_u32 v21, s{sT+1}, v21
s_lshl_b32 s{sT+2}, s{sJ}, 3
v_add_u32 v22, s{sT+2}, v22
v_lshlrev_b32 v{fK}, 13, v22
v_lshl_add_u32 v{fK}, v21, 2, v{fK}
v_subrev_u32 v{fKh}, 3072, v{fK}
v_add_u32 v{fK4}, 4096, v{fK}
v_lshlrev_b32 v{fSK}, 4, v21
v_mul_u32_u24 v{fKVG}, 12288, v21
v_lshl_add_u32 v{fKVG}, v22, 4, v{fKVG}
s_add_u32 s{sP}, s{sT+1}, s{sJ}""")
    for reg, size in ((SRD_K, S*D*2), (SRD_V, S*D*2), (SRD_H, S*D*2), (SRD_WG, D*F*2), (SRD_WU, D*F*2), (SRD_WD, D*F*2),
                      (SRD_WS, WS_SIZE), (SRD_O, S*D*2)):
        p("s_mov_b32 s%d, 0x%x\ns_mov_b32 s%d, 0x00020000" % (reg + 2, size, reg + 3))
    p(f"""v_readfirstlane_b32 s{sW}, v2
s_lshl_b32 s{sT+2}, s{sP}, 13
v_lshlrev_b32 v{fH}, 5, v0
v_add_u32 v{fH}, s{sT+2}, v{fH}
s_xor_b32 s{sCT}, s{sJ}, {G.opt.get("rot", 0)}
s_and_b32 s{sCT}, s{sCT}, 7
s_and_b32 s{sHB}, s{sX}, 1
s_lshl_b32 s{sC}, s{sHB}, 3
s_add_u32 s{sC}, s{sC}, s{sCT}
s_and_b32 s{sR0}, s{sJ}, 24
s_lshr_b32 s{sT+2}, s{sX}, 1
s_lshl_b32 s{sT+2}, s{sT+2}, 5
s_add_u32 s{sR0}, s{sR0}, s{sT+2}
s_waitcnt lgkmcnt(0)""")
    KR, VR, SK, HA, HB_ = 48, 59, 68, 88, 98
    for i in range(3): p(f"buffer_load_dword v{KR+i}, v{fKh}, {srd(SRD_K)}, 0 offen offset:{1024*i}")
    for i in range(8): p(f"buffer_load_dword v{KR+3+i}, v{fK if i < 4 else fK4}, {srd(SRD_K)}, 0 offen offset:{1024*(i%4)}")
    p(f"global_load_dwordx4 v[{SK}:{SK+3}], v{fSK}, s[{sSKP}:{sSKP+1}]")
    for i in range(8): p(f"buffer_load_dword v{VR+i}, v{fK if i < 4 else fK4}, {srd(SRD_V)}, 0 offen offset:{1024*(i%4)}")
    p(f"""s_load_dword s{sTAG}, s[{SRD_WS}:{SRD_WS+1}], {WS_EPOCH}
s_lshl_b32 s{sT+1}, s{sP}, 2
s_load_dword s{sD0}, s[{sDP}:{sDP+1}], s{sT+1}""")
    if G.opt.get("ipf", 0):
        p(f"""s_lshl_b32 s{sT+2}, s{sJ}, 10
s_add_u32 s{sT+2}, s{sT+2}, 0x8000
v_and_b32 v{fPF}, 7, v0""")
    else:
        p(f"""s_getpc_b64 s[{sT+4}:{sT+5}]
s_lshl_b32 s{sT+2}, s{sJ}, 11
v_and_b32 v{fPF}, 15, v0""")
    p(f"""v_lshlrev_b32 v{fPF}, 7, v{fPF}
v_add_u32 v{fPF}, s{sT+2}, v{fPF}
global_load_dword a255, v{fPF}, s[{sT+4}:{sT+5}]""")
    if G.opt.get("kw", 0):
        p("v_mov_b32 v108, 0\nv_mov_b32 v109, 0\nv_mov_b32 v110, 0\nv_mov_b32 v111, 0")
        for pl in range(3): p(f"s_mov_b32 s{sT+2}, 0x{WS_KVG + 4096*pl:x}\nbuffer_store_dwordx4 v[108:111], v{fKVG}, {WS}, s{sT+2} offen sc1")
    TW = f"""v_min_u32 v21, 10, v1
v_mad_u32_u24 v21, v2, 11, v21
v_min_u32 v21, 42, v21
v_lshlrev_b32 v21, 7, v21
s_mul_i32 s{sT+2}, s2, 5504
buffer_load_dword a252, v21, {srd(SRD_WG)}, s{sT+2} offen
buffer_load_dword a253, v21, {srd(SRD_WU)}, s{sT+2} offen
buffer_load_dword a254, v21, {srd(SRD_WD)}, s{sT+2} offen""".split("\n")
    tw = G.opt.get("tw", 3)
    if tw == 1:
        for l in TW: p(l)
    LD = f"""buffer_load_dwordx4 v[{HA}:{HA+3}], v{fH}, {srd(SRD_H)}, 0 offen
buffer_load_dwordx4 v[{HA+4}:{HA+7}], v{fH}, {srd(SRD_H)}, 0 offen offset:16
buffer_load_dwordx2 v[{HA+8}:{HA+9}], v{fH}, {srd(SRD_H)}, 0 offen offset:32
buffer_load_dwordx4 v[{HB_}:{HB_+3}], v{fH}, {srd(SRD_H)}, 0 offen offset:4
buffer_load_dwordx4 v[{HB_+4}:{HB_+7}], v{fH}, {srd(SRD_H)}, 0 offen offset:20""".split("\n")
    A0 = M.early_lines() + [f"v_add_u32 v23, s{M.sOB}, v{M.vOA}", "v_add_u32 v22, 0x10000, v23"]
    for l in sprinkle(A0, LD, 4) + LD: p(l)
    p(f"global_load_dwordx4 v[{QT8}:{QT8+3}], v23, s[{sQP}:{sQP+1}]\nglobal_load_dwordx4 v[{QT8+4}:{QT8+7}], v22, s[{sQP}:{sQP+1}]")
    if tw == 2:
        for l in TW: p(l)
    A = f"""s_mov_b32 s{sDEAD}, 0
s_mov_b32 s{sSPIN}, 0
s_cmp_ge_u32 s{sC}, {0 if NOW[0] else 15}
s_cselect_b32 s{SRD_WG+2}, 0, s{SRD_WG+2}
s_cselect_b32 s{SRD_WU+2}, 0, s{SRD_WU+2}
s_mul_i32 s{sT+2}, s{sC}, 192
s_mul_i32 s{sWm}, s{sW}, {2*3072}""".split("\n")
    if G.stamps: A += ["s_mov_b32 s88, 0", "s_mov_b32 s89, 0"]
    for ph in range(3):
        A += f"""v_add_u32 v21, {64*ph}, v1
v_mul_u32_u24 v22, 5462, v21
v_lshrrev_b32 v22, 16, v22
v_mul_u32_u24 v23, 12, v22
v_sub_u32 v21, v21, v23
v_bfe_u32 v23, v22, 2, 1
v_lshlrev_b32 v23, 1, v23
v_xor_b32 v21, v21, v23
v_mul_u32_u24 v22, 2752, v22
v_lshl_add_u32 v22, v21, 4, v22
v_add_u32 v{fWD+ph}, s{sT+2}, v22""".split("\n")
    HN = G.opt.get("hint", 0)
    if HN:
        A += G.hint_init() + [f"v_mov_b32 v{108+i}, 0" for i in range(4)]
        A += [f"buffer_store_dwordx4 v[108:111], v{M.vL16}, {WS}, s{G.sHO} offen sc1"]
    nA = len(A)
    A += [f"v_mov_b32 v{POI+i}, -1" for i in range(4)]
    A += f"""v_bfe_u32 v21, v0, 4, 1
v_bfe_u32 v22, v0, 5, 1
v_and_b32 v23, 15, v0
v_bfe_u32 v{fCO}, v0, 3, 1
v_lshl_add_u32 v{fCO}, v2, 2, v{fCO}
v_and_b32 v{fKVR}, 3, v0
v_lshl_add_u32 v{fCO}, v{fCO}, 2, v{fKVR}
v_mul_u32_u24 v{fCO}, {YP}, v{fCO}
v_lshl_add_u32 v{fCO}, v21, 6, v{fCO}
v_lshl_add_u32 v{fCO}, v22, 4, v{fCO}
v_bfe_u32 v{fKVR}, v0, 2, 1
v_lshl_add_u32 v{fCO}, v{fKVR}, 5, v{fCO}
s_lshl_b32 s{sT+2}, s{sP}, 7
v_add_u32 v{fCO}, s{sT+2}, v{fCO}
v_lshlrev_b32 v{fKVR}, 5, v23
v_lshl_add_u32 v{fKVR}, v22, 4, v{fKVR}
v_xor_b32 v21, 1, v21
v_lshl_add_u32 v{fKVR}, v21, 3, v{fKVR}
v_lshl_add_u32 v{fKVR}, v2, 10, v{fKVR}
v_lshrrev_b32 v21, 7, v0
v_mul_u32_u24 v{fTW}, {TC_CH}, v21
v_and_b32 v22, 127, v0
v_lshl_add_u32 v{fTW}, v22, 5, v{fTW}
v_cmp_eq_u32 s[{sM+2}:{sM+3}], 0, v22
v_bfe_u32 v21, v0, 5, 1
v_mul_u32_u24 v{fUZ}, {U_CH}, v21
v_and_b32 v22, 31, v0
v_lshl_add_u32 v{fUZ}, v22, 4, v{fUZ}
v_lshlrev_b32 v{fT16}, 4, v0""".split("\n")
    A += M.setup_early()
    G.late = M.setup_late()
    A2 = f"""v_bfe_u32 v21, v0, 2, 4
v_mul_u32_u24 v{fWT}, 192, v21
v_bfe_u32 v22, v0, 4, 1
v_xor_b32 v23, v22, v2
v_lshl_add_u32 v{fWT+1}, v23, 5, v{fWT}
v_and_b32 v23, 3, v0
v_lshl_add_u32 v{fWT+1}, v23, 3, v{fWT+1}
v_lshlrev_b32 v22, 1, v22
v_add_u32 v23, 8, v2
v_xor_b32 v23, v23, v22
v_lshl_add_u32 v{fWT+2}, v23, 4, v{fWT}
v_and_b32 v23, 1, v0
v_lshl_add_u32 v{fWT+2}, v23, 3, v{fWT+2}
v_bfe_u32 v23, v0, 1, 1
v_mul_u32_u24 v23, {WUP}, v23
v_add_u32 v{fWT+2}, v{fWT+2}, v23
v_add_u32 v{fWT+2}, {WH[0]}, v{fWT+2}
v_add_u32 v{fWT}, {WH[0]}, v{fWT+1}
v_add_u32 v{fWT+1}, {WH[0] + WUP}, v{fWT+1}""".split("\n")
    A2 += [f"v_add_u32 v{fWT+3+t}, {WH[1]-WH[0]}, v{fWT+t}" for t in range(3)]
    A2 += f"""v_lshl_add_u32 v{fRSW}, v2, 13, v{M.vL16}
v_lshl_add_u32 v{fRSR}, v2, 11, v{M.vL16}
v_mul_u32_u24 v22, {HF_PITCH}, v2
v_add_u32 v{fHP}, v{M.vL16}, v22
v_and_b32 v23, 15, v0
v_add_u32 v22, 1, v23
v_and_b32 v21, 3, v22
v_mul_u32_u24 v{fCA}, {TC_STRIDE}, v21
v_and_b32 v22, 28, v22
v_bfe_u32 v21, v0, 4, 2
v_lshl_add_u32 v{fCB}, v23, 1, v21
v_lshlrev_b32 v{fCB}, 4, v{fCB}
v_lshlrev_b32 v21, 3, v21
v_sub_u32 v22, v22, v21
v_add_u32 v22, 8, v22
v_lshl_add_u32 v{fCA}, v22, 1, v{fCA}
s_lshr_b32 s{sT+2}, s{sW}, 1
s_and_b32 s{sT+3}, s{sW}, 1
s_mul_i32 s{sT+4}, s{sT+2}, {TC_CH}
s_lshl_b32 s{sT+5}, s{sT+3}, 8
s_add_u32 s{sT+4}, s{sT+4}, s{sT+5}
v_add_u32 v{fCA}, s{sT+4}, v{fCA}
s_mul_i32 s{sT+4}, s{sT+2}, {U_CH}
s_sub_u32 s{sT+4}, s{sT+4}, s{sT+5}
s_add_u32 s{sT+4}, s{sT+4}, {L_U}
v_add_u32 v{fCB}, s{sT+4}, v{fCB}
v_and_b32 v21, 31, v0
v_lshlrev_b32 v{fFA}, 10, v21
s_lshr_b32 s{sT+2}, s{sX}, 1
s_lshl_b32 s{sT+2}, s{sT+2}, 15
s_lshl_b32 s{sT+3}, s{sCT}, 7
s_add_u32 s{sT+2}, s{sT+2}, s{sT+3}
v_add_u32 v{fFA}, s{sT+2}, v{fFA}
v_bfe_u32 v21, v0, 4, 2
v_lshlrev_b32 v{fFB}, 15, v21
v_and_b32 v21, 7, v0
v_lshl_add_u32 v{fFB}, v21, 10, v{fFB}
v_bfe_u32 v21, v0, 3, 1
v_lshl_add_u32 v{fFB}, v21, 7, v{fFB}
s_and_b32 s{sT+2}, s{sJ}, 24
s_lshl_b32 s{sT+2}, s{sT+2}, 10
s_and_b32 s{sT+3}, s{sX}, 6
s_lshl_b32 s{sT+3}, s{sT+3}, 7
s_add_u32 s{sT+2}, s{sT+2}, s{sT+3}
v_add_u32 v{fFB}, s{sT+2}, v{fFB}""".split("\n")
    WQ = w_round(0) + w_round(1)
    def take(n):
        o = []
        while WQ and (n > 0 or "\n" not in WQ[0]):
            if "\n" in WQ[0]: n -= 1
            o.append(WQ.pop(0))
        return o
    lt = G.opt.get("late", 2)
    if lt == 1: A += G.late; G.late = []
    if lt == 2: A2 += G.late; G.late = []
    if lt == 3: A += A2 + G.late; G.late = []; A2 = []
    if lt == 4: A += A2; A2 = G.late; G.late = []
    u = take(G.opt.get("n0", 0))
    for l in sprinkle(A, u, G.opt.get("n0e", 14), nA) + u: p(l)
    print("front: A", len(A), "A2", len(A2))
    G.stamp("issued")
    if G.stamps and "kvin" in G.skip:
        p(f"v_mov_b32 v21, v{VR+7}"); G.stamp("kvin")
    KU, VU, WU_, AC, KD = 108, 130, 146, 154, 172
    for t in range(4):
        s0, s1 = SK + t // 2, SK + 2 + t // 2
        if t % 2 == 0: p(f"v_lshlrev_b32 v{WU_+2*t}, 16, v{s0}\nv_lshlrev_b32 v{WU_+2*t+1}, 16, v{s1}")
        else: p(f"v_and_b32 v{WU_+2*t}, 0xffff0000, v{s0}\nv_and_b32 v{WU_+2*t+1}, 0xffff0000, v{s1}")
    for i in range(11): p(f"v_lshlrev_b32 v{KU+2*i}, 16, v{KR+i}\nv_and_b32 v{KU+2*i+1}, 0xffff0000, v{KR+i}")
    if tw == 5:
        for l in TW: p(l)
    for s in range(8):
        p(f"v_pk_mul_f32 v[{AC+2*s}:{AC+2*s+1}], v[{KU+2*s}:{KU+2*s+1}], v[{WU_+6}:{WU_+7}]")
    for t in (2, 1, 0):
        for s in range(8):
            k = KU + 2 * (s + 3 - t)
            p(f"v_pk_fma_f32 v[{AC+2*s}:{AC+2*s+1}], v[{k}:{k+1}], v[{WU_+2*t}:{WU_+2*t+1}], v[{AC+2*s}:{AC+2*s+1}]")
    p(f"""s_waitcnt lgkmcnt(0)
s_mul_i32 s{sTAG}, s{sTAG}, 0x9E3779B1
s_add_u32 s{sTAG}, s{sTAG}, 0x7F4A7C15
s_max_u32 s{sTAG}, s{sTAG}, 1
v_mov_b32 v{KD+3}, s{sTAG}
v_mov_b32 v{KD+7}, s{sTAG}
v_mov_b32 v{KD+10}, s{sTAG}
v_mov_b32 v{KD+11}, s{sTAG}""")
    for pl in range(3):
        for s in range(3 * pl, min(8, 3 * pl + 3)):
            p(f"v_lshlrev_b32 v{VU+2*s}, 16, v{VR+s}\nv_and_b32 v{VU+2*s+1}, 0xffff0000, v{VR+s}")
        for s in range(3 * pl, min(8, 3 * pl + 3)):
            p(f"v_pk_mul_f32 v[{AC+2*s}:{AC+2*s+1}], v[{AC+2*s}:{AC+2*s+1}], v[{VU+2*s}:{VU+2*s+1}]")
        for s in range(3 * pl, min(8, 3 * pl + 3)):
            p(f"v_cvt_pk_bf16_f32 v{KD+4*pl+s-3*pl}, v{AC+2*s}, v{AC+2*s+1}")
        p(f"s_mov_b32 s{sT+2}, 0x{WS_KVG + 4096*pl:x}")
        p(f"buffer_store_dwordx4 v[{KD+4*pl}:{KD+4*pl+3}], v{fKVG}, {WS}, s{sT+2} offen sc1")
    if HN: p(G.hint_st(0, KD + 3))
    if tw == 3:
        for l in TW: p(l)
    G.stamp("kvst")
    if G.stamps and "kvack" in G.skip:
        p("s_waitcnt vmcnt(0)"); G.stamp("kvack")
    E0, E1, Z = 140, 148, 156
    X = (72, 80); QS = 240
    B = [f"v_permlane16_swap_b32 v{QT8+4*P}, v{QT8+4*P+2}" for P in range(2)] + [f"v_permlane16_swap_b32 v{QT8+4*P+1}, v{QT8+4*P+3}" for P in range(2)]
    B += M.unpack(X[0], QT8, 8) + M.publish(X, 0)[:-1] + [f"v_mov_b32 v{QS}, v{M.SS}"]
    B += M.s1_addr(QS + 2, QS + 1) + M.s1_both(QS + 1, QS + 2)
    B += [f"s_and_b32 s{sD1}, s{sD0}, 0xffff0000", f"s_lshl_b32 s{sD0}, s{sD0}, 16"]
    ES = []
    for qq in range(2):
        ES += [f"s_mov_b32 s{sT+2}, 0x{WS_YB + qq*8*YP:x}", f"buffer_store_dwordx4 v[{POI}:{POI+3}], v{fCO}, {WS}, s{sT+2} offen sc1 @es"]
    ES += M.xtile_base(sT + 2, WS_X1B) + [f"buffer_store_dwordx4 v[{POI}:{POI+3}], v{M.vFO}, {WS}, s{sT+2+P} offen sc1 @es" for P in range(2)]
    ES += M.st_base(sT + 2, WS_STQ) + [f"buffer_store_dword v{QS}, v{M.vSTW}, {WS}, s{sT+2} offen sc1 @es",
           f"s_add_u32 s{sT+2}, s{sT+2}, 0x{WS_STA[0]-WS_STQ:x}"] + [f"buffer_store_dword v{POI}, v{QS+1}, {WS}, s{sT+2} offen sc1 @es"]
    G.es = ES
    G.flag = [f"s_lshl_b32 s{sT+2}, s{sW}, 15", f"s_lshl_b32 s{sT+3}, s2, 7", f"s_add_u32 s{sT+2}, s{sT+2}, s{sT+3}",
              f"s_add_u32 s{sT+2}, s{sT+2}, 0x{WS_FLAGS:x}", f"v_mov_b32 v{QS}, s{sTAG}", f"v_lshlrev_b32 v{QS+1}, 2, v1", "@wv es",
              f"s_mov_b32 exec_hi, 0\nbuffer_store_dword v{QS}, v{QS+1}, {WS}, s{sT+2} offen sc1\ns_mov_b32 exec_hi, -1"]
    C = [f"v_alignbit_b32 v{E0+k}, v{HA+k+1}, v{HA+k}, 16" for k in range(8)] + [f"v_alignbit_b32 v{E1+k}, v{HA+k+2}, v{HA+k+1}, 16" for k in range(8)]
    for c, r in enumerate((HA, E0, HB_, E1)):
        C += [f"ds_write_b128 v{fTW}, v[{r}:{r+3}] offset:{L_TC + c*TC_STRIDE + 32}", f"ds_write_b128 v{fTW}, v[{r+4}:{r+7}] offset:{L_TC + c*TC_STRIDE + 48}"]
    C += [f"v_mov_b32 v{Z+i}, 0" for i in (0, 1, 2, 3, 4, 5, 6, 8, 9, 10, 12, 13)]
    C += [f"v_lshlrev_b32 v{Z+7}, 16, v{HA}", f"v_mov_b32 v{Z+11}, v{HA}", f"v_lshlrev_b32 v{Z+14}, 16, v{HA}", f"v_mov_b32 v{Z+15}, v{E0}",
          f"ds_write_b128 v{fUZ}, v[{Z}:{Z+3}] offset:{L_U}", f"s_mov_b64 exec, s[{sM+2}:{sM+3}]"]
    for c in range(4):
        C += [f"ds_write_b128 v{fTW}, v[{Z}:{Z+3}] offset:{L_TC + c*TC_STRIDE}", f"ds_write_b128 v{fTW}, v[{Z+4*c}:{Z+4*c+3}] offset:{L_TC + c*TC_STRIDE + 16}"]
    C += ["s_mov_b64 exec, -1"]
    if G.opt.get("esearly"):
        for l in B + ES: p(l)
        B = []; G.es = []
    ie = C.index(f"s_mov_b64 exec, s[{sM+2}:{sM+3}]")
    u = take(G.opt.get("nc", 3))
    for l in sprinkle(C[:ie], u, 12) + u + C[ie:]: p(l)
    G.stamp("cdone")
    p(f"s_mul_i32 s{sT+13}, s{sP}, 12288\ns_add_u32 s{sT+13}, s{sT+13}, 0x{WS_KVG:x}\ns_add_u32 s{sT+14}, s{sT+13}, 4096\ns_add_u32 s{sT+15}, s{sT+13}, 8192")
    ld = [f"buffer_load_dwordx4 v[{GR+4*pl}:{GR+4*pl+3}], v{fT16}, {WS}, s{sT+13+pl} offen sc1" for pl in range(3)]
    chk = [f"v_xor_b32 v21, s{sTAG}, v{GR+3}", f"v_xor_b32 v22, s{sTAG}, v{GR+7}", f"v_xor_b32 v23, s{sTAG}, v{GR+11}",
           f"v_or3_b32 v21, v21, v22, v23", f"v_cmp_ne_u32 vcc, 0, v21"]
    work = B + A2 + [f"s_mov_b32 s{sT+9}, 0x05040100", f"s_mov_b32 s{sT+10}, 0x07060302"]
    npre = G.opt.get("kpre", 200)
    pre, mid = work[:npre], work[npre:]
    while mid and mid[0].startswith(("s_cselect", "s_addc")): pre.append(mid.pop(0))
    if HN:
        ho = [32768*i for i in range(8)]
        p(f"s_lshl_b32 s14, s{sW}, 18\ns_lshl_b32 s13, s{sX}, 12\ns_add_u32 s14, s14, s13\ns_lshr_b32 s13, s{sJ}, 3\ns_lshl_b32 s13, s13, 10\ns_add_u32 s14, s14, s13")
        k0 = G.opt.get("hk", 60)
        pre = pre[:len(pre) - k0] + G.hint_ld(14, ho) + pre[len(pre) - k0:]
    u0 = take(G.opt.get("n1a", 4))
    for l in sprinkle(pre, u0, max(1, len(pre) // max(1, G.opt.get("n1a", 4)))) + u0: p(l)
    u = take(G.opt.get("n1", 2))
    G.stamp("pre")
    if HN:
        for l in G.hint_wait(14, ho, "hint"): p(l)
    G.stamp("att")
    if G.opt.get("esmid", 1):
        mid = mid + G.es; G.es = []
    mid = sprinkle(mid, u, max(1, len(mid) // max(1, G.opt.get("n1", 2)))) + u
    if tw == 4: mid = TW + mid
    G.w_left = WQ
    G.poll(ld, [], chk, "kvg", mid)
    G.stamp("kvret")
    if tw == 6:
        for l in TW: p(l)
    if G.opt.get("esearly"):
        for l in G.flag: p(l)
        G.flag = []
    dpos = lambda s: GR + 4 * (s // 3) + s % 3
    UO = 124
    for ch in range(2):
        for jj in range(4):
            p(f"v_perm_b32 v{UO+4*ch+jj}, v{dpos(6-2*jj)}, v{dpos(7-2*jj)}, s{sT+9+ch}")
        p(f"ds_write_b128 v{fT16}, v[{UO+4*ch}:{UO+4*ch+3}] offset:{L_U + ch*U_CH + 512}")
    p("s_waitcnt lgkmcnt(0)\ns_barrier")
    G.esv = G.opt.get("esv", 2)
    G.stamp("kvg")

def conv_order(it):
    if it == 3 or ASC[0]: return [(q, r) for q in range(8) for r in range(q + 1)]
    left = {q: list(range(q + 1)) for q in range(8)}
    out = []
    while any(left.values()):
        recent = [q for (q, _) in out[-2:]]
        n = 36 - len(out)
        cand = [q for q in left if left[q] and q not in recent] or [q for q in left if left[q] and q != out[-1][0]] or [q for q in left if left[q]]
        urgent = [q for q in cand if 3*len(left[q]) - 2 >= n]
        if urgent: q = max(urgent, key=lambda q: len(left[q]))
        elif it == 0: q = min(cand, key=lambda q: (min(max(r, q - r) for r in left[q]), -len(left[q])))
        elif it == 3: q = min(cand, key=lambda q: len(left[q])) if len(out) % 3 == 2 else max(cand, key=lambda q: len(left[q]))
        else: q = max(cand, key=lambda q: len(left[q]))
        r = min(left[q], key=lambda r: max(r, q - r))
        left[q].remove(r); out.append((q, r))
    return out

def conv(G):
    import gen_mlp as M
    p = G.p
    ACC = 48
    FA = (80, 144); FB = (112, 176)
    FLG = 208
    def loads(it):
        eo = 2 * it + 1
        L = []
        for r in range(8):
            L.append(f"ds_read_b128 v[{FB[it%2]+4*r}:{FB[it%2]+4*r+3}], v{fCB} offset:{512*r - 32*eo + 512}")
            L.append(f"ds_read_b64 v[{FA[it%2]+4*r}:{FA[it%2]+4*r+1}], v{fCA} offset:{512*r + 32*eo}")
            L.append(f"ds_read_b64 v[{FA[it%2]+4*r+2}:{FA[it%2]+4*r+3}], v{fCA} offset:{512*r + 32*eo + 8}")
        return L
    for l in loads(0)[:12]: p(l)
    G.fl_ld = [f"!buffer_load_dword v{FLG}, v{fFA}, {WS}, s{sT+10} offen sc1", f"!buffer_load_dword v{FLG+1}, v{fFB}, {WS}, s{sT+10} offen sc1"]
    G.fl_chk = [f"v_xor_b32 v{FLG}, s{sTAG}, v{FLG}", f"v_xor_b32 v{FLG+1}, s{sTAG}, v{FLG+1}", f"v_or_b32 v{FLG}, v{FLG}, v{FLG+1}", f"v_cmp_ne_u32 vcc, 0, v{FLG}"]
    pois = [f"s_mul_i32 s{sT+8}, s{sR0}, {HF_PITCH}", f"s_mul_i32 s{sT+12}, s{sC}, 3072",
            f"s_add_u32 s{sT+8}, s{sT+8}, s{sT+12}", f"s_add_u32 s{sT+8}, s{sT+8}, 0x{WS_HF[0]:x}",
            f"s_cmp_eq_u32 s{sC}, 15\ns_cselect_b32 s{sT+8}, 0x{WS_SIZE:x}, s{sT+8}\ns_nop 0"]
    for h in range(2):
        pois += [f"buffer_store_dwordx4 v[{POI}:{POI+3}], v{fHP}, {WS}, s{sT+8} offen offset:{1024*i} sc1 @hp" for i in range(3)]
        pois += [f"s_add_u32 s{sT+8}, s{sT+8}, {4*HF_PITCH}"]
    W = Weaver(vm_space=G.opt.get("vsc", 5))
    sw = [(0, t) for t in G.w_left]
    sq = []; st = []
    for it in range(4):
        order = conv_order(it); seen = set(); mf = []
        for (q, r) in order:
            mf.append(mfma(ACC + 4*q, vr(FA[it%2] + 4*r, 4), vr(FB[it%2] + 4*(q - r), 4), "0" if (it == 0 and q not in seen) else None))
            seen.add(q)
        s0 = []
        if it == 0: s0 += [(i // 2, t) for i, t in enumerate(loads(0)[12:])]
        if it < 3: s0 += [(8 + i, t) for i, t in enumerate(loads(it + 1))]
        if it == 0:
            n = 0
            for t in G.es:
                if t.startswith("buffer"): sq.append((2 + G.esv*n, "!" + t)); n += 1
                else: sq.append((0, t))
        flg = G.opt.get("flg", 20)
        if it == flg // 36: sq += [(flg % 36, t) for t in G.flag]
        if it == 3 and G.opt.get("wpf", 0) == 1: sq += [(10, t) for t in wd_l2(G)]
        hpa = G.opt.get("hpa", 80)
        if it == hpa // 36: sq += [(hpa % 36, t) for t in pois]
        if it == 3: sq += [(8, f"s_mov_b32 s{sT+10}, 0x{WS_FLAGS:x}")] + ([(G.opt.get("fll", 40), t) for t in G.fl_ld] if G.opt.get("fll", 40) < 36 else [])
        early = G.opt.get("t0e", 1)
        if it == 2 and early:
            x2 = G.opt.get("x2", 2)
            out = W.run(mf[:x2], [s0, st, sq, sw])
            while any("@w0" in t for (_, t) in sw): out.append(sw.pop(0)[1]); print("forced w0")
            out += ["@wv w0", "s_barrier"]
            st += [(i, t) for i, t in enumerate(w_tr(0))]
            out += W.run(mf[x2:], [s0, st, sq, sw], flush=[0, 1])
        elif it == 3:
            out = W.run(mf[:1], [s0, st, sq, sw])
            while any("@w0" in t for (_, t) in sw): out.append(sw.pop(0)[1]); print("forced w0")
            out += ["@wv w0", "s_waitcnt lgkmcnt(0)", "s_barrier"]
            sT1 = [] if early else [(i, t) for i, t in enumerate(w_tr(0))]
            if early: sw += [(0, t) for t in w_round(2)]
            for g, q in sorted((max(i for i, (qq, _) in enumerate(order) if qq == q), q) for q in range(8)):
                st.append((g + 7, f"ds_write_b128 v{fRSW}, v[{ACC+4*q}:{ACC+4*q+3}] offset:{L_RS + 1024*q}"))
            out += W.run(mf[1:], [st, sT1, sq, sw], flush=[1, 0, 2])
        else:
            out = W.run(mf, [s0, st, sq, sw], flush=[0])
        if G.opt.get("cnot"): out = [l for l in out if "_tr_b16" not in l]
        if G.opt.get("cnob"): out = [l for l in out if l != "s_barrier"]
        if G.opt.get("cnow"): out = [l for l in out if not l.startswith("ds_write")]
        if G.opt.get("cnoa"): out = [l for l in out if not l.startswith("ds_read_b64 ")]
        if G.opt.get("cnod"): out = [l for l in out if not l.startswith("ds_read_b128")]
        for l in out: p(l)
        G.stamp(f"it{it}")
    while any("@w1" in t for (_, t) in sw): p(sw.pop(0)[1]); print("forced w1")
    rest = [t for (_, t) in sw] if G.opt.get("t0e", 1) else w_round(2)
    print("conv: W units left", sum("\n" in t for t in rest))
    G.stamp("convloop")
    p("@wv w1\ns_waitcnt lgkmcnt(0)\ns_barrier")
    T = 80; KV = 112; Y = 136; YO = 160; TM = 168
    E = []
    for qq in range(2):
        for sw_ in range(4):
            E.append(f"ds_read_b128 v[{T+16*qq+4*sw_}:{T+16*qq+4*sw_+3}], v{fRSR} offset:{L_RS + 8192*sw_ + 1024*qq}")
        for ch in range(2):
            E.append(f"ds_read_b64 v[{KV+4*qq+2*ch}:{KV+4*qq+2*ch+1}], v{fKVR} offset:{L_U + ch*U_CH + 512 + 512*qq}")
    for qq in range(2):
        for ch in range(2):
            a0 = T + 16*qq + 8*ch; y = Y + 8*qq + 4*ch; kv = KV + 4*qq + 2*ch; o = YO + 4*qq + 2*ch
            E += [f"v_pk_add_f32 v[{y+r}:{y+r+1}], v[{a0+r}:{a0+r+1}], v[{a0+4+r}:{a0+5+r}]" for r in (0, 2)]
            E += [f"v_and_b32 v{TM}, 0xffff0000, v{kv+1}", f"v_lshlrev_b32 v{TM+1}, 16, v{kv+1}", f"v_and_b32 v{TM+2}, 0xffff0000, v{kv}", f"v_lshlrev_b32 v{TM+3}, 16, v{kv}"]
            E += [f"v_pk_fma_f32 v[{y+r}:{y+r+1}], v[{TM+r}:{TM+r+1}], s[{sD0}:{sD1}], v[{y+r}:{y+r+1}] op_sel:[0,{ch},0] op_sel_hi:[1,{ch},1]" for r in (0, 2)]
            E += [f"v_cvt_pk_bf16_f32 v{o}, v{y}, v{y+1}", f"v_cvt_pk_bf16_f32 v{o+1}, v{y+2}, v{y+3}"]
        o = YO + 4*qq
        E += [f"s_mov_b32 s{sT+2}, 0x{WS_YB + qq*8*YP:x}", f"v_permlane16_swap_b32 v{o}, v{o+2}", f"v_permlane16_swap_b32 v{o+1}, v{o+3}",
              f"buffer_store_dwordx4 v[{o}:{o+3}], v{fCO}, {WS}, s{sT+2} offen sc1"]
    for l in E: p(l)
    if G.opt.get("hint", 0): p(f"v_mov_b32 v{M.vTG}, s{sTAG}\n" + G.hint_st(1, M.vTG))
    G.stamp("yst")
    if G.stamps and "yack" in G.skip:
        p("s_waitcnt vmcnt(0)"); G.stamp("yack")
    G.w_rest = rest
    G.pois = pois

def wd_l2(G):
    return [f"s_mul_i32 s{sT+1}, s{sJ}, 44032", "v_lshlrev_b32 v242, 7, v0", f"buffer_load_dword a254, v242, {srd(SRD_WD)}, s{sT+1} offen",
            "v_min_u32 v242, 87, v0", "v_lshlrev_b32 v242, 7, v242", f"s_add_u32 s{sT+1}, s{sT+1}, 32768", f"buffer_load_dword a255, v242, {srd(SRD_WD)}, s{sT+1} offen"]

def handover(G):
    import gen_mlp as M
    p = G.p
    rest = G.w_rest
    X, TT, PT, YU, VY = (72, 80), (88, 96), 104, 144, 160
    if G.opt.get("fll", 40) >= 36:
        for l in G.fl_ld: p(l)
    for l in w_tr(1): p(l)
    ydma = [f"s_add_u32 m0, s{sT+9}, {M.L_Y}\nbuffer_load_dwordx4 v{M.vL16}, {WS}, s{sT+4} offen offset:{1024*P} sc1 lds @yr" for P in range(2)]
    H = f"""s_lshr_b32 s{sT+4}, s{sR0}, 1
s_add_u32 s{sT+4}, s{sT+4}, s{sHB}
s_and_b32 s{sT+5}, s{sW}, 2
s_add_u32 s{sT+4}, s{sT+4}, s{sT+5}
s_mul_i32 s{sT+4}, s{sT+4}, {YP}
s_and_b32 s{sT+5}, s{sW}, 1
s_lshl_b32 s{sT+5}, s{sT+5}, 11
s_add_u32 s{sT+4}, s{sT+4}, s{sT+5}
s_lshl_b32 s{sT+5}, s{sCT}, 12
s_add_u32 s{sT+4}, s{sT+4}, s{sT+5}
s_add_u32 s{sT+4}, s{sT+4}, 0x{WS_YB:x}
s_lshl_b32 s{sT+9}, s{sW}, 11""".split("\n") + M.layer_scalars(0) + M.unpack(X[0], QT8, 8)
    H += f"""v_mov_b32 v{M.vTG}, s{sTAG}
s_cmp_eq_u32 s{sW}, 0
s_cselect_b32 s{M.sLM}, -1, 0
s_mov_b32 s{M.sLM+1}, 0
v_bfe_u32 v21, v0, 2, 4
v_lshlrev_b32 v21, 6, v21
v_and_b32 v22, 3, v0
v_lshl_add_u32 v21, v22, 3, v21
v_lshl_add_u32 v21, v2, 11, v21
v_lshl_add_u32 v22, v2, 11, v{M.vL16}""".split("\n")
    H = G.late + M.s1_addr() + [f"v_mov_b32 v{ONE+i}, 0x3f803f80" for i in range(4)] + M.xtile_base(sT + 2, WS_X1B) + M.st_base(sT + 11, WS_STQ) + H
    def take(n):
        o = []
        while rest and (n > 0 or "\n" not in rest[0]):
            if "\n" in rest[0]: n -= 1
            o.append(rest.pop(0))
        return o
    u = take(G.opt.get("ny", 4))
    for l in sprinkle(H, u, G.opt.get("he", 14), 2) + u: p(l)
    HN = G.opt.get("hint", 0)
    if HN:
        ho = [32768*i + 128 for i in range(16)]
        p(f"s_and_b32 s14, s{sW}, 1\ns_lshl_b32 s14, s14, 19\ns_lshl_b32 s13, s{sCT}, 12\ns_add_u32 s14, s14, s13\ns_lshr_b32 s13, s{sX}, 1\ns_lshl_b32 s13, s13, 10\ns_add_u32 s14, s14, s13")
        p("s_waitcnt lgkmcnt(0)")
        for l in G.hint_ld(14, ho): p(l)
    W = Weaver(vm_space=G.opt.get("vsy", 5))
    for l in W.run(w_cs(0), [[(0, t) for t in take(G.opt.get("ny2", 2))]], flush=[0]): p(l)
    lf, lb = G.add_fix(G.fl_ld, G.fl_chk, "st")
    for l in G.fl_chk: p(l)
    p(f"s_cbranch_vccnz {lf}\n{lb}:")
    G.stamp("flok")
    p("s_waitcnt lgkmcnt(0)\ns_barrier")
    if HN:
        for l in G.hint_wait(14, ho, "hint"): p(l)
    G.stamp("ydma")
    rest += w_round(3)
    mid = M.st_ld(PT, M.vSTR, sT + 11) + W.run(w_cs(1), [[(0, t) for t in take(G.opt.get("nr", 4))]], flush=[0])
    wpf = G.opt.get("wpf", 0)
    if wpf == 2: mid += wd_l2(G)
    mid += M.ln_coef(PT) + M.ln_norm(X[0], TT[0], 0) + M.ln_norm(X[1], TT[1], 1)
    ytr = [f"ds_read_b64_tr_b16 v[{M.vY+4*P+2*t}:{M.vY+4*P+2*t+1}], v21 offset:{M.L_Y + 32*P + 1024*t}" for P in range(2) for t in range(2)]
    yrd = [f"ds_read_b128 v[{VY+4*P}:{VY+4*P+3}], v22 offset:{M.L_Y + 1024*P}" for P in range(2)]
    yck = [f"v_max_u32 v23, v{VY+3}, v{VY+7}", "v_cmp_eq_u32 vcc, -1, v23"]
    ytag = G.poll(ydma, yrd + ytr, yck, "y", mid)
    G.stamp("yret")
    for P in range(2):
        for l in M.unpack(YU + 8*P, M.vY + 4*P, 4) + M.gate_out(X[P], TT[P], YU + 8*P, P, sT + 2 + P): p(l)
    if HN: p(G.hint_st(2, M.vTG))
    G.stamp("x1st")
    if G.stamps and "xack" in G.skip:
        p("s_waitcnt vmcnt(0)"); G.stamp("xack")
    pub = M.st_base(sT + 2, WS_STA[0])
    for P in range(2): pub += M.psum1(X[P], 128 + 2*P, 132) + M.fold1(128 + 2*P) + M.st1_st(128 + 2*P, sT + 2, P)
    for l in sprinkle(pub, rest, G.opt.get("pe", 4)) + rest: p(l)
    t2, t3 = w_tr(2), w_tr(3)
    if wpf == 4:
        for l in wd_l2(G): p(l)
    p("@wv w2" + ("," + ytag if G.nf[0] > 2 else "") + "\ns_waitcnt lgkmcnt(0)\ns_barrier")
    a_ = t2[:12] + weave(w_cs(2), [[(i // 2, t) for i, t in enumerate(t2[12:])]])
    b_ = ["@wv w3", "s_barrier"] + t3[:12] + weave(w_cs(3), [[(i // 2, t) for i, t in enumerate(t3[12:])]])
    xat = G.opt.get("xat", 2)
    if HN:
        for l in M.x_hint_addr() + a_ + ["s_waitcnt lgkmcnt(0)"] + G.hint_ld(14, M.x_hint_offs(2)): p(l)
        if xat == 2:
            for l in b_: p(l)
            b_ = []
        G.stamp("xpre")
        for l in G.hint_wait(14, M.x_hint_offs(2), "hint"): p(l)
        G.stamp("xdma")
        return b_
    if xat == 0: return a_ + b_
    for l in a_: p(l)
    if xat == 2:
        for l in b_: p(l)
        b_ = []
    G.stamp("xdma")
    return b_ + (wd_l2(G) if wpf == 3 else [])
```

```python
import sys
sys.path.insert(0, "tools")
from pg import weave, Weaver
import pg
from gen import *

WS = srd(SRD_WS)
vMS, vL16, vVF, vSTG, vSG, vFO = 3, 4, 5, 6, 7, 8
vWT = 9
vWG = 24
vH2, vH1, vHA, vHB = 28, 29, 30, 31
vCS = 32
vSTW, vSTR, vOA, vMR = 44, 45, 46, 47
vXR = 48
vY = 56
vR2 = 64
vTG = 71
vFL, vFA = 221, 222
sLM = 16
sFL = 22
RING = 72
def ACC(g): return 72 + 12 * g if g < 6 else 160 + 12 * (g - 6)
vVER = 144
XF = 184
vTM = 208
vM = 212
vPOI = 176
vVA = 220
vMT = 223
AP = (224, 160)
WF = 192
sXB, sHF, sSA, sWD, sM0X, sOB = 8, 9, 10, 11, 12, 63
sHL = 82
sXO, sWO, sHS, sHC = sT + 12, sT + 13, sT + 14, sT + 15
WID = {4: 4, 5: 5, 6: 6, 7: 7, 8: 8, 9: 0, 10: 1}
L_Y = 43008

def dma_unit(m0off, ins): return f"s_add_u32 m0, s{sM0X}, {m0off}\n{ins}"

def x_dma(g, L):
    o = [f"s_add_u32 s{sXO}, s{sXB}, {g*XP}"]
    for i in range(4): o.append(dma_unit((g % 4)*16384, f"buffer_load_dwordx4 v{vVF}, {WS}, s{sXO} offen offset:{1024*i} sc1 lds @x{L}_{g}"))
    return o

def x_verify(G, g, L, also=()):
    rd = [f"ds_read_b128 v[{vVER+4*i}:{vVER+4*i+3}], v{vVF} offset:{(g % 4)*16384 + 1024*i}" for i in range(4)]
    ck = [f"v_max3_u32 v{vVA}, v{vVER+3}, v{vVER+7}, v{vVER+11}", f"v_max_u32 v{vVA}, v{vVA}, v{vVER+15}", f"v_cmp_eq_u32 vcc, -1, v{vVA}"]
    rl = []
    for gg in (g,) + tuple(also):
        rl += [l.split(" @")[0].replace(f"s{sXO},", "s13,").replace(f"s{sXO} ", "s13 ") for l in x_dma(gg, L)]
    lf, lb = G.add_fix(["s_mov_b32 s14, m0"] + rl + ["s_waitcnt vmcnt(0)", "s_mov_b32 m0, s14"] + rd, ck, "x0")
    return [f"@wv x{L}_{g}"] + rd, ck + [f"s_cbranch_vccnz {lf}", lb + ":"]

def wd_dma(k, slot, so=sWO):
    o = [f"s_add_u32 s{so}, s{sWD}, {k*32768}"]
    for b in range(4): o.append(dma_unit(slot*16384, f"buffer_load_dwordx4 v{vWG+b}, {srd(SRD_WD)}, s{so} offen offset:{1024*b} lds @wd{k}"))
    return o

def wd_tr(slot, dst, agpr, tag=""):
    o = []
    for cs in range(4):
        for t in range(2):
            a = slot*16384 + t*2048
            d = (ar if agpr else vr)(dst + 4*cs + 2*t, 2)
            o.append(f"ds_read_b64_tr_b16 {d}, v{vWT + 4*(a // 65536) + cs} offset:{a % 65536}" + (f" @{tag}" if tag else ""))
    return o

def x_rd(n, L):
    g, kk = n // 16, n % 16
    return [f"ds_read_b128 {vr(XF + 4*(n % 6), 4)}, v{vL16} offset:{(g % 4)*16384 + kk*1024}"]

def setup_early():
    out = []
    def p(t): out.extend(t.split("\n"))
    p(f"v_and_b32 v21, 15, v0\nv_lshlrev_b32 v{vSG}, 3, v21")
    p("v_and_b32 v21, 15, v0\nv_lshlrev_b32 v21, 4, v21")
    p(f"""v_lshrrev_b32 v22, 1, v2
v_lshl_add_u32 v21, v22, 12, v21
v_bfe_u32 v23, v0, 4, 2
v_lshl_add_u32 v{vSTR}, v23, 10, v21
v_lshl_add_u32 v21, v23, 2, v21
v_and_b32 v23, 1, v2
v_lshl_add_u32 v21, v23, 8, v21
s_lshl_b32 s{sT+2}, s{sCT}, 9
v_add_u32 v{vSTW}, s{sT+2}, v21""")
    p(f"""v_mul_u32_u24 v21, {2*XP}, v22
v_add_u32 v21, v21, v{vL16}
v_lshl_add_u32 v21, v23, 10, v21
s_lshl_b32 s{sT+2}, s{sCT}, 11
v_add_u32 v{vFO}, s{sT+2}, v21""")
    return out

def setup_late():
    out = []
    def p(t): out.extend(t.split("\n"))
    p(f"v_lshlrev_b32 v{vVF}, 4, v1\nv_lshl_add_u32 v{vVF}, v2, 12, v{vVF}")
    p(f"""v_bfe_u32 v21, v0, 5, 1
v_bfe_u32 v22, v0, 3, 2
v_lshl_add_u32 v21, v21, 3, v22
v_lshlrev_b32 v21, 10, v21
v_bfe_u32 v22, v0, 1, 2
v_bfe_u32 v23, v0, 4, 2
v_xor_b32 v22, v22, v23
v_lshl_add_u32 v21, v22, 5, v21
v_and_b32 v22, 1, v0
v_lshl_add_u32 v21, v22, 4, v21
s_lshl_b32 s{sT+2}, s{sCT}, 7
v_add_u32 v{vWG}, s{sT+2}, v21
v_add_u32 v{vWG+1}, 15360, v{vWG}
v_add_u32 v{vWG+2}, 2048, v{vWG}
v_add_u32 v{vWG+3}, 17408, v{vWG}
s_mul_i32 s{sWD}, s{sW}, {11*32768}""")
    p(f"""v_bfe_u32 v21, v0, 2, 3
v_lshlrev_b32 v22, 7, v21
v_bfe_u32 v23, v0, 5, 1
v_lshl_add_u32 v22, v23, 10, v22
v_and_b32 v23, 3, v0
v_lshl_add_u32 v22, v23, 3, v22
v_lshl_add_u32 v22, v2, 12, v22
v_lshrrev_b32 v21, 1, v21
v_and_b32 v23, 1, v2
v_lshlrev_b32 v23, 1, v23
v_xor_b32 v21, v21, v23""")
    for cs in range(4):
        p(f"v_xor_b32 v23, {cs}, v21\nv_lshl_add_u32 v{vWT+cs}, v23, 5, v22\nv_add_u32 v{vWT+4+cs}, 0x10000, v{vWT+cs}\nv_add_u32 v{vWT+8+cs}, 0x20000, v{vWT+cs}")
    p(f"""v_and_b32 v21, 15, v0
v_lshlrev_b32 v{vSG}, 3, v21
v_lshlrev_b32 v21, 4, v21
v_bfe_u32 v22, v0, 4, 1
v_bfe_u32 v23, v0, 5, 1
v_lshl_add_u32 v{vH2}, v22, 3, v21
v_lshl_add_u32 v{vH2}, v23, 8, v{vH2}
v_lshl_add_u32 v{vH2}, v2, 9, v{vH2}
v_lshl_add_u32 v{vH1}, v22, 3, v21
v_lshl_add_u32 v{vH1}, v23, 2, v{vH1}
v_lshl_add_u32 v{vH1}, v2, 8, v{vH1}
v_add_u32 v{vH1}, 2048, v{vH1}""")
    p("v_lshrrev_b32 v22, 1, v2\nv_and_b32 v23, 1, v2")
    p(f"""v_and_b32 v21, 15, v0
v_lshlrev_b32 v{vSTG}, 3, v21
v_bfe_u32 v{vMS}, v0, 4, 2
v_lshl_add_u32 v{vSTG}, v{vMS}, 9, v{vSTG}
v_lshl_add_u32 v{vSTG}, v2, 12, v{vSTG}
v_lshlrev_b32 v21, 6, v21
v_add_u32 v21, {L_MISC}, v21
v_lshl_add_u32 v{vMR}, v22, 3, v21
s_lshl_b32 s{sT+2}, s{sHB}, 2
v_add_u32 v{vMR}, s{sT+2}, v{vMR}
v_lshl_add_u32 v21, v22, 2, v21
v_lshl_add_u32 v21, v23, 3, v21
v_bfe_u32 v{vMS}, v0, 5, 1
v_lshl_add_u32 v{vMS}, v{vMS}, 5, v21""")
    p(f"""v_mul_u32_u24 v21, 11264, v2
v_add_u32 v21, v21, v{vL16}
v_mul_u32_u24 v{vHA}, {2*HF_PITCH}, v22
v_add_u32 v{vHA}, v21, v{vHA}
v_xor_b32 v{vHB}, 1, v22
v_mul_u32_u24 v{vHB}, {2*HF_PITCH}, v{vHB}
v_add_u32 v{vHB}, v21, v{vHB}""")
    return out

def early_lines():
    return f"""v_lshlrev_b32 v{vL16}, 4, v1
v_and_b32 v21, 15, v0
v_lshrrev_b32 v22, 1, v2
v_lshl_add_u32 v21, v22, 5, v21
v_lshlrev_b32 v21, 10, v21
v_bfe_u32 v22, v0, 4, 1
v_lshl_add_u32 v21, v22, 5, v21
v_bfe_u32 v22, v0, 5, 1
v_lshl_add_u32 v21, v22, 4, v21
v_and_b32 v22, 1, v2
v_lshl_add_u32 v{vOA}, v22, 6, v21
s_add_u32 s{sOB}, s{sR0}, s{sHB}
s_lshl_b32 s{sOB}, s{sOB}, 14
s_lshl_b32 s{sT+3}, s{sCT}, 7
s_add_u32 s{sOB}, s{sOB}, s{sT+3}""".split("\n")

def layer_scalars(L):
    xb = WS_X1B if L == 0 else WS_X3B
    return f"""s_mul_i32 s{sXB}, s{sR0}, {XP}
s_add_u32 s{sXB}, s{sXB}, 0x{xb:x}
s_mul_i32 s{sHF}, s{sR0}, {HF_PITCH}
s_add_u32 s{sHF}, s{sHF}, 0x{WS_HF[L]:x}
s_lshl_b32 s{sSA}, s{sR0}, 11
s_add_u32 s{sSA}, s{sSA}, 0x{WS_STA[L]:x}
s_lshl_b32 s{sM0X}, s{sW}, 12
s_lshl_b32 s{sFL}, s{sR0}, 8
s_add_u32 s{sFL}, s{sFL}, 0x{WS_HFL:x}
s_lshl_b32 s{sFL+1}, s{sC}, 7
s_add_u32 s{sFL+1}, s{sFL+1}, s{sFL}
s_mul_i32 s{sHC}, s{sC}, 3072
s_add_u32 s{sHC}, s{sHC}, s{sHF}
s_cmp_eq_u32 s{sC}, 15
s_cselect_b32 s{sHC}, 0x{WS_SIZE:x}, s{sHC}""".split("\n")

def st_base(r, region):
    return [f"s_lshl_b32 s{r}, s{sR0}, 11", f"s_lshl_b32 s13, s{sHB}, 13", f"s_add_u32 s{r}, s{r}, s13", f"s_add_u32 s{r}, s{r}, 0x{region:x}"]

def xtile_base(r, region):
    return [f"s_add_u32 s{r}, s{sR0}, s{sHB}", f"s_mul_i32 s{r}, s{r}, {XP}", f"s_add_u32 s{r}, s{r}, 0x{region:x}", f"s_add_u32 s{r+1}, s{r}, {4*XP}"]

def s1_addr(vS1W=70, vS1R=69):
    return [f"v_lshrrev_b32 v21, 1, v2", f"v_lshl_add_u32 v21, v21, 12, v{vSG}", "v_bfe_u32 v23, v0, 4, 2", f"v_lshl_add_u32 v{vS1R}, v23, 9, v21",
            "v_lshrrev_b32 v23, 1, v23", "v_lshl_add_u32 v21, v23, 2, v21", "v_and_b32 v23, 1, v2", "v_lshl_add_u32 v21, v23, 7, v21",
            f"s_lshl_b32 s13, s{sCT}, 8", f"v_add_u32 v{vS1W}, s13, v21"]

def s1_both(r, w=70): return [f"v_bfe_u32 v{r}, v0, 4, 1", f"v_lshl_add_u32 v{r}, v{r}, 11, v{w}"]

def poison_l2():
    o = [f"v_mov_b32 v{vPOI+i}, -1" for i in range(4)]
    o += xtile_base(sT + 2, WS_X3B) + [f"buffer_store_dwordx4 v[{vPOI}:{vPOI+3}], v{vFO}, {WS}, s{sT+2+P} offen sc1 @poi" for P in range(2)]
    o += s1_both(21)
    o += st_base(sT + 2, WS_STX) + [f"buffer_store_dword v{vPOI}, v21, {WS}, s{sT+2} offen sc1 @poi",
          f"s_add_u32 s{sT+2}, s{sT+2}, 0x{WS_STA[1]-WS_STX:x}", f"buffer_store_dword v{vPOI}, v21, {WS}, s{sT+2} offen sc1 @poi"]
    return o

SS = 128
def psum(x, P):
    return [f"v_pk_add_f32 v[132:133], v[{x}:{x+1}], v[{x+2}:{x+3}]", f"v_pk_add_f32 v[134:135], v[{x+4}:{x+5}], v[{x+6}:{x+7}]",
            f"v_pk_mul_f32 v[136:137], v[{x}:{x+1}], v[{x}:{x+1}]", f"v_pk_mul_f32 v[138:139], v[{x+2}:{x+3}], v[{x+2}:{x+3}]",
            f"v_pk_add_f32 v[132:133], v[132:133], v[134:135]",
            f"v_pk_fma_f32 v[136:137], v[{x+4}:{x+5}], v[{x+4}:{x+5}], v[136:137]", f"v_pk_fma_f32 v[138:139], v[{x+6}:{x+7}], v[{x+6}:{x+7}], v[138:139]",
            f"v_add_f32 v{SS+2*P}, v132, v133", "v_pk_add_f32 v[136:137], v[136:137], v[138:139]", f"v_add_f32 v{SS+2*P+1}, v136, v137"]
def fold(r, pk=True):
    add = [f"v_pk_add_f32 v[{r}:{r+1}], v[{r}:{r+1}], v[{r+2}:{r+3}]"] if pk else [f"v_add_f32 v{r}, v{r}, v{r+2}", f"v_add_f32 v{r+1}, v{r+1}, v{r+3}"]
    return [f"v_permlane32_swap_b32 v{r}, v{r+2}", f"v_permlane32_swap_b32 v{r+1}, v{r+3}"] + add + \
           [f"v_permlane16_swap_b32 v{r}, v{r+1}", f"v_add_f32 v{r}, v{r}, v{r+1}"]
def st_ld(PT, va, so): return [f"buffer_load_dwordx4 v[{PT+4*i}:{PT+4*i+3}], v{va}, {WS}, s{so} offen offset:{256*i} sc1" for i in range(4)]
def st_ck(PT, acc):
    return [f"v_max3_u32 v{acc}, v{PT}, v{PT+1}, v{PT+2}"] + [f"v_max3_u32 v{acc}, v{acc}, v{PT+k}, v{PT+k+1}" for k in range(3, 15, 2)] + \
           [f"v_max_u32 v{acc}, v{acc}, v{PT+15}", f"v_cmp_eq_u32 vcc, -1, v{acc}"]
def ln_coef(PT):
    o = []
    for h in range(2):
        o += [f"v_pk_add_f32 v[{SS+2*h}:{SS+2*h+1}], v[{PT+2*h}:{PT+2*h+1}], v[{PT+4+2*h}:{PT+4+2*h+1}]",
              f"v_pk_add_f32 v[{132+2*h}:{133+2*h}], v[{PT+8+2*h}:{PT+8+2*h+1}], v[{PT+12+2*h}:{PT+12+2*h+1}]"]
    o += [f"v_pk_add_f32 v[{SS+2*h}:{SS+2*h+1}], v[{SS+2*h}:{SS+2*h+1}], v[{132+2*h}:{133+2*h}]" for h in range(2)]
    o += fold(SS)
    o += f"""v_mul_f32 v{SS}, 0x3b000000, v{SS}
v_mov_b32 v{SS+2}, v{SS}
v_permlane16_swap_b32 v{SS}, v{SS+2}
v_mov_b32 v{SS+1}, v{SS}
v_mov_b32 v{SS+3}, v{SS+2}
v_permlane32_swap_b32 v{SS}, v{SS+1}
v_permlane32_swap_b32 v{SS+2}, v{SS+3}
v_pk_fma_f32 v[{SS+2}:{SS+3}], v[{SS}:{SS+1}], v[{SS}:{SS+1}], v[{SS+2}:{SS+3}] neg_lo:[1,0,0] neg_hi:[1,0,0]
v_max_f32 v{SS+2}, 0, v{SS+2}
v_max_f32 v{SS+3}, 0, v{SS+3}
v_add_f32 v{SS+2}, 0x3727c5ac, v{SS+2}
v_add_f32 v{SS+3}, 0x3727c5ac, v{SS+3}
v_rsq_f32 v{SS+2}, v{SS+2}
v_rsq_f32 v{SS+3}, v{SS+3}
s_nop 0
v_pk_mul_f32 v[{SS}:{SS+1}], v[{SS}:{SS+1}], v[{SS+2}:{SS+3}]""".split("\n")
    return o
def ln_norm(x, t, P):
    return [f"v_pk_fma_f32 v[{t+i}:{t+i+1}], v[{x+i}:{x+i+1}], v[{SS+2}:{SS+3}], v[{SS}:{SS+1}] op_sel:[0,{P},{P}] op_sel_hi:[1,{P},{P}] neg_lo:[0,0,1] neg_hi:[0,0,1]" for i in range(0, 8, 2)]
def unpack(dst, src, n):
    return [l for k in range(n) for l in (f"v_lshlrev_b32 v{dst+2*k}, 16, v{src+k}", f"v_and_b32 v{dst+2*k+1}, 0xffff0000, v{src+k}")]
def gate_out(x, t, y, P, so):
    return [f"v_pk_fma_f32 v[{x+i}:{x+i+1}], v[{t+i}:{t+i+1}], v[{y+i}:{y+i+1}], v[{x+i}:{x+i+1}]" for i in range(0, 8, 2)] + \
           [f"v_cvt_pk_bf16_f32 v{vXR+4*P+i}, v{x+2*i}, v{x+2*i+1}" for i in range(4)] + \
           [f"buffer_store_dwordx4 v[{vXR+4*P}:{vXR+4*P+3}], v{vFO}, {WS}, s{so} offen sc1"]
def publish(X, so):
    return psum(X[0], 0) + psum(X[1], 1) + fold(SS) + [f"buffer_store_dword v{SS}, v{vSTW}, {WS}, s{so} offen sc1"]

vS1W, vS1R = 70, 69
def psum1(x, r, t):
    return [f"v_pk_add_f32 v[{r}:{r+1}], v[{x}:{x+1}], v[{x+2}:{x+3}]", f"v_pk_add_f32 v[{t}:{t+1}], v[{x+4}:{x+5}], v[{x+6}:{x+7}]",
            f"v_pk_mul_f32 v[{t+2}:{t+3}], v[{x}:{x+1}], v[{x}:{x+1}]", f"v_pk_add_f32 v[{r}:{r+1}], v[{r}:{r+1}], v[{t}:{t+1}]",
            f"v_pk_fma_f32 v[{t+2}:{t+3}], v[{x+2}:{x+3}], v[{x+2}:{x+3}], v[{t+2}:{t+3}]",
            f"v_pk_fma_f32 v[{t+2}:{t+3}], v[{x+4}:{x+5}], v[{x+4}:{x+5}], v[{t+2}:{t+3}]",
            f"v_add_f32 v{r}, v{r}, v{r+1}", f"v_pk_fma_f32 v[{t+2}:{t+3}], v[{x+6}:{x+7}], v[{x+6}:{x+7}], v[{t+2}:{t+3}]",
            f"v_add_f32 v{r+1}, v{t+2}, v{t+3}"]
def fold1(r):
    return [f"v_permlane32_swap_b32 v{r}, v{r+1}", f"v_add_f32 v{r}, v{r}, v{r+1}", f"v_mov_b32 v{r+1}, v{r}",
            f"v_permlane16_swap_b32 v{r}, v{r+1}", f"v_add_f32 v{r}, v{r}, v{r+1}"]
def st1_st(r, so, P): return [f"buffer_store_dword v{r}, v{vS1W}, {WS}, s{so} offen offset:{2048*P} sc1"]
def st1_ld(PT, so, P): return [f"buffer_load_dwordx2 v[{PT+2*i}:{PT+2*i+1}], v{vS1R}, {WS}, s{so} offen offset:{2048*P + 128*i} sc1" for i in range(4)]
def st1_ck(PT, acc):
    return [f"v_max3_u32 v{acc}, v{PT}, v{PT+1}, v{PT+2}", f"v_max3_u32 v{acc}, v{acc}, v{PT+3}, v{PT+4}", f"v_max3_u32 v{acc}, v{acc}, v{PT+5}, v{PT+6}",
            f"v_max_u32 v{acc}, v{acc}, v{PT+7}", f"v_cmp_eq_u32 vcc, -1, v{acc}"]
def coef1(PT, r):
    return [f"v_pk_add_f32 v[{r}:{r+1}], v[{PT}:{PT+1}], v[{PT+2}:{PT+3}]", f"v_pk_add_f32 v[{r+2}:{r+3}], v[{PT+4}:{PT+5}], v[{PT+6}:{PT+7}]",
            f"v_pk_add_f32 v[{r}:{r+1}], v[{r}:{r+1}], v[{r+2}:{r+3}]"] + fold1(r) + \
           [f"v_mul_f32 v{r}, 0x3b000000, v{r}", f"v_mov_b32 v{r+1}, v{r}", f"v_permlane32_swap_b32 v{r}, v{r+1}",
            f"v_fma_f32 v{r+1}, -v{r}, v{r}, v{r+1}", f"v_max_f32 v{r+1}, 0, v{r+1}", f"v_add_f32 v{r+1}, 0x3727c5ac, v{r+1}",
            f"v_rsq_f32 v{r+1}, v{r+1}", f"v_mul_f32 v{r}, v{r}, v{r+1}"]
def norm1(x, t, r):
    return [f"v_pk_fma_f32 v[{t+i}:{t+i+1}], v[{x+i}:{x+i+1}], v[{r}:{r+1}], v[{r}:{r+1}] op_sel:[0,1,0] op_sel_hi:[1,1,0] neg_lo:[0,0,1] neg_hi:[0,0,1]" for i in range(0, 8, 2)]

def plain(lines):
    import re
    o = []
    for l in lines:
        m = re.match(r"v_pk_(add|mul|fma)_f32 (.*)", l)
        if not m: o.append(l); continue
        body = m.group(2); ops = [int(x) for x in re.findall(r"v\[(\d+):\d+\]", body)]
        n = len(ops) - 1
        g = lambda key, d: [int(x) for x in re.search(key + r":\[([\d,]+)\]", body).group(1).split(",")] if re.search(r"\b" + key + r":", body) else [d]*n
        lo, hi, nl, nh = g("op_sel", 0), g("op_sel_hi", 1), g("neg_lo", 0), g("neg_hi", 0)
        for h, (sel, ng) in enumerate(((lo, nl), (hi, nh))):
            src = ", ".join(("-" if ng[i] else "") + f"v{ops[1+i] + sel[i]}" for i in range(n))
            o.append(f"v_{m.group(1)}_f32 v{ops[0] + h}, {src}")
    return o

PTG = 160
def mean_ld(P): return [f"buffer_load_dwordx2 v[{PTG+8*P+2*i}:{PTG+8*P+2*i+1}], v{vSTG}, {WS}, s{sSA} offen offset:{2048*P + 128*i} sc1" for i in range(4)]
def mean_stream(G, P):
    r = PTG + 8*P; t = vMT
    ck = st1_ck(r, t)
    lf, lb = G.add_fix(mean_ld(P), ck, "m")
    a = ck + ["+1", f"s_cbranch_vccnz {lf}", lb + ":"]
    a += plain([f"v_pk_add_f32 v[{r}:{r+1}], v[{r}:{r+1}], v[{r+2}:{r+3}]", f"v_pk_add_f32 v[{r+4}:{r+5}], v[{r+4}:{r+5}], v[{r+6}:{r+7}]",
                f"v_pk_add_f32 v[{r}:{r+1}], v[{r}:{r+1}], v[{r+4}:{r+5}]"])
    a += spaced(fold1(r)) + [f"v_mul_f32 v{r}, 0x3b000000, v{r}", f"ds_write_b32 v{vMS}, v{r} offset:{16*P} @msw{P}", "+6", f"@wl msw{P}"]
    q = vR2 + 2*P
    b = [f"v_lshlrev_b32 v{t}, 3, v{vSG}", f"v_add_u32 v{t}, {L_MISC}, v{t}", f"ds_read_b128 v[{vM+4*P}:{vM+4*P+3}], v{t} offset:{16*P}",
         f"ds_read2_b32 v[{q}:{q+1}], v{vMR} offset0:{4*P} offset1:{8+4*P}", "+8",
         f"v_fma_f32 v{q+1}, -v{q}, v{q}, v{q+1}", f"v_max_f32 v{q+1}, 0, v{q+1}", f"v_add_f32 v{q+1}, 0x3727c5ac, v{q+1}", f"v_rcp_f32 v{q+1}, v{q+1}"]
    return a, b
def spaced(lines):
    o = []
    for l in lines:
        if l.startswith("v_permlane"): o.append("+1")
        o.append(l)
    return o

def epi(G, g, L):
    a = ACC(g); r = vM + g
    o = []
    for t in (2, 0, 1):
        for i in range(4): o.append(f"v_fma_f32 v{a+4*t+i}, -v{r}, v{vCS+4*t+i}, v{a+4*t+i}")
    m = a + 8
    o += [f"v_permlane32_swap_b32 v{m}, v{m+2}", f"v_permlane32_swap_b32 v{m+1}, v{m+3}"]
    for i in range(4): o.append(f"v_max_f32 v{a+i}, 0, v{a+i}")
    for i in range(4): o.append(f"v_mul_f32 v{a+i}, v{a+i}, v{a+4+i}")
    o += [f"v_cvt_pk_bf16_f32 v{vTM}, v{a}, v{a+1}", f"v_cvt_pk_bf16_f32 v{vTM+1}, v{a+2}, v{a+3}",
          f"s_add_u32 s{sHS}, s{sHC}, {g*HF_PITCH}",
          f"!buffer_store_dwordx2 v[{vTM}:{vTM+1}], v{vH2}, {WS}, s{sHS} offen sc1 @hs{g}"]
    o += [f"v_max_f32 v{m}, 0, v{m}", f"v_max_f32 v{m+1}, 0, v{m+1}", f"v_mul_f32 v{m}, v{m}, v{m+2}", f"v_mul_f32 v{m+1}, v{m+1}, v{m+3}",
          f"v_cvt_pk_bf16_f32 v{vTM+2}, v{m}, v{m+1}", f"!buffer_store_dword v{vTM+2}, v{vH1}, {WS}, s{sHS} offen sc1 @hs{g}"]
    return o

EPI_AT = {3: [0], 4: [1, 2], 5: [3], 6: [4, 5], 7: [6]}

class WdFeed:
    def __init__(self, L, tlag):
        self.sw = []; self.st = []; self.nt = 0; self.nd = 0; self.on = (L == 0); self.tlag = tlag; self.done_at = {}
        if self.on:
            for k in range(2): self.sw += [(0, t) for t in wd_dma(k, 4 + k)]
            self.sw += [(0, t) for t in poison_l2()]
            for k in range(2, 4): self.sw += [(0, t) for t in wd_dma(k, 4 + k)]
            self.sw += [(0, t) for t in wd_dma(8, 8)]
    def update(self, g):
        if not self.on: return
        for k in range(4):
            if k not in self.done_at and not any(f"@wd{k}" in t for (_, t) in self.sw): self.done_at[k] = g
        while self.nt < 4 and self.nt in self.done_at and g - self.done_at[self.nt] >= self.tlag:
            k = self.nt; self.nt += 1
            self.st += [(0, f"@wv wd{k}")] + [(0, t) for t in wd_tr(4 + k, 192 + 16*k, True, f"ta{k}")]
        while self.nd < self.nt and not any(f"@ta{self.nd}" in t for (_, t) in self.st):
            k = self.nd; self.nd += 1
            self.sw += [(0, f"@wl ta{k}")] + [(0, t) for t in wd_dma(4 + k, 4 + k)]
    def rest(self):
        o = []
        while True:
            o += [t for (_, t) in self.st + self.sw]; self.sw.clear(); self.st.clear()
            self.update(10**6)
            if not (self.st or self.sw): return o

def h_ld(P, k, rs):
    e = RING + 8*k + 4*rs
    return f"buffer_load_dwordx4 v[{e}:{e+3}], v{vHA if rs == 0 else vHB}, {WS}, s{sHL + 3*P + k//4} offen offset:{1024*(k%4)} sc1"

def h_scalars():
    o = [f"s_mul_i32 s{sHL+1}, s{sHB}, {HF_PITCH}", f"s_add_u32 s{sHL}, s{sHF}, s{sHL+1}", f"s_add_u32 s{sHL+1}, s{sHL}, 4096", f"s_add_u32 s{sHL+2}, s{sHL}, 8192"]
    return o + [f"s_add_u32 s{sHL+3+i}, s{sHL+i}, {4*HF_PITCH}" for i in range(3)]

def one_lane(ins): return f"s_mov_b64 exec, s[{sLM}:{sLM+1}]\n{ins}\ns_mov_b64 exec, -1"
def hflag_st(b): return one_lane(f"buffer_store_dword v{vTG}, v{vFA}, {WS}, s{sFL+1} offen sc1")
def hflag_ld(b): return [f"v_lshlrev_b32 v{vFA}, 4, v{vSG}", f"!buffer_load_dword v{vFL}, v{vFA}, {WS}, s{sFL} offen sc1"]
def hflag_chk(G, b):
    ck = [f"v_cmp_ne_u32 vcc, s{sTAG}, v{vFL}"]
    lf, lb = G.add_fix(hflag_ld(b), ck, "h0")
    return ck + [f"s_cbranch_vccnz {lf}", lb + ":"]

def gemm1_normal(G, L):
    p = G.p
    W = Weaver(vm_space=G.opt.get("vs1", 4), no_s=lambda g: g % 3 == 2)
    for n in range(4):
        for l in x_rd(n, L): p(l)
    feed = WdFeed(L, G.opt.get('tlag', 48)); allout = []
    fa = 6 if L == 0 else -1
    pf = G.opt.get(f"pf{L}", 380 if L == 0 else 312); ml = G.opt.get("ml", 8); mc = G.opt.get("mc", 44)
    ml1 = G.opt.get("ml1", 2*48 + 10); mc1 = G.opt.get("mc1", 3*48)
    sf = [(G.opt.get("sfg", 6), t) for t in getattr(G, "slot0", [])]; G.slot0 = []; sm = []; smb = []
    sx = [(0, t) for g in range(G.nf[L], 4) for t in x_dma(g, L)]; sw = feed.sw; stt = feed.st; s2 = []; spf = []
    for g in range(8):
        mf = []
        for kk in range(16):
            n = 16*g + kk
            for t in range(3):
                mf.append(mfma(ACC(g) + 4*t, ar(64*t + 4*kk, 4), vr(XF + 4*(n % 6), 4), "0" if kk == 0 else None))
        s0 = []
        for kk in range(16):
            n = 16*g + kk + 4
            if n < 128: s0 += [(3*kk + i, t) for i, t in enumerate(x_rd(n, L))]
        s1 = []
        if g < 7 or g == fa:
            if g < 7 and g + 1 >= G.nf[L]:
                rd, ck = x_verify(G, g + 1, L)
                s1 += [(G.opt.get("vr", 6), t) for t in rd] + [(0, "+8")] + [(0, t) for t in ck[:-2]] + [(0, "+1")] + [(0, t) for t in ck[-2:]]
            if g == fa:
                assert not any("@poi" in t for (_, t) in sw)
                s1 += [(20, f"v_lshlrev_b32 v{vFA}, 2, v1"), (23, "@wv poi")]
            if g not in (1, 3): s1 += [(24, "s_barrier")]
            if g == fa: s1 += [(24, hflag_st(0))]
        post = []
        if 1 <= g <= 4: post = x_dma(g + 3, L)
        if g == 5: post = wd_dma(9, 0, sXO)
        if g == 6: post = wd_dma(10, 1, sXO)
        if g == 0:
            ma, mb = mean_stream(G, 0)
            sm += [(ml, "!" + t) for t in mean_ld(0)] + [(mc, t) for t in ma]
        if g == 2:
            assert not sf
            ma, mb = mean_stream(G, 1)
            sm += [(ml1 - 96, "!" + t) for t in mean_ld(1)] + [(mc1 - 96, t) for t in ma]
        if g >= 2: s2 += [(6, t) for t in epi(G, g - 1, L)]
        if g == pf // 48: spf += [(0, t) for t in h_scalars()] + [(pf % 48, h_ld(0, k, rs)) for k in range(9) for rs in range(2)]
        if g == 7: spf += [(0, h_ld(0, k, rs)) for k in range(9, 11) for rs in range(2)]
        if L == 1:
            if G.opt.get("noepi"): s2.clear()
            if G.opt.get("nost"): s2[:] = [x for x in s2 if "buffer_store" not in x[1]]
            if G.opt.get("nover"): s1 = [x for x in s1 if not (x[1].startswith("ds_read_b128 v[14") or x[1].startswith("ds_read_b128 v[15") or f"v{vVA}" in x[1] or (g != 1 and ("cbranch" in x[1] or x[1].endswith(":"))))]
            if G.opt.get("nodma"): post = []; spf.clear()
        mb_slot = g in (1, 3)
        cut = 35 if mb_slot else 30
        out = []
        for lo in range(0, cut, 6):
            feed.update(W.g)
            out += W.run(mf[lo:min(cut, lo + 6)], [s0, s1, sf, sm, sx, spf, sw, s2, stt])
            if mb_slot and not s1 and not sm and "s_barrier" not in out: s1.append((0, "s_barrier"))
        if mb_slot and "s_barrier" not in out and not any(t == "s_barrier" for (_, t) in s1): s1 += list(sm) + [(0, "s_barrier")]; sm.clear()
        if s1: print("slot", g, "barrier stream flushed:", len(s1)); out += [t for (_, t) in s1]; s1.clear()
        sx += [(G.opt.get("x4d", 24) if (g == 1 and L == 1 and G.opt.get("inslot", 0)) else 0, t) for t in post]
        if g == 1: s2 += [(0, t) for t in mb + epi(G, 0, L)]
        if g == 3: smb += [(0, t) for t in mb]
        for lo in range(cut, 48, 6):
            feed.update(W.g)
            out += W.run(mf[lo:lo + 6], [s0, sf, sm, smb, sx, spf, sw, s2, stt])
        if g == 4: assert not smb
        if g == 7: out += [t for (_, t) in s2]; s2.clear()
        assert not s0
        for l in out: p(l)
        allout += out
        G.stamp(f"s{L}{g}")
    tail = epi(G, 7, L) + [t for (_, t) in sx] + feed.rest()
    for l in tail: p(l)
    allout += tail
    ins = [pg.Ins(x.split(" @")[0].lstrip("!")) for l in allout for x in l.split("\n") if not (x.startswith(("@", "+")) or x.endswith(":"))]
    pfs = {h_ld(0, k, rs) for k in range(11) for rs in range(2)}
    txt = [a0.text for a0 in ins]
    i5 = min(i for i, t in enumerate(txt) if t.startswith(f"v_mfma_f32_16x16x32_bf16 v[{ACC(7)}:"))
    assert not any(t.startswith("buffer_store") and (f"v{vPOI}," in t or f"v[{vPOI}:" in t) for t in txt[i5:])
    for i, a0 in enumerate(ins):
        if a0.text in pfs:
            for b0 in ins[i+1:]: assert not (a0.wr & (b0.rd | b0.wr)), (a0.text, b0.text)
    gi = 0; pos = {}
    for l in allout:
        if l.startswith("v_mfma"): gi += 1
        if "@hs" in l: pos[l.split("@")[-1]] = "%.1f" % (gi/48)
        if "@wd" in l: pos[l.split("@")[-1]] = "%.1f" % (gi/48)
    print("leftover L%d positions" % L, pos)
    print("L%d leftover: tail %d, prefetch left %d" % (L, len(tail), len(spf)))
    return [t for (_, t) in spf]

def h_verify(G, P, k):
    e = RING + 8*k
    ck = [f"v_max3_u32 v23, v{e}, v{e+1}, v{e+2}", f"v_max3_u32 v23, v23, v{e+3}, v{e+4}",
          f"v_max3_u32 v23, v23, v{e+5}, v{e+6}", f"v_max_u32 v23, v23, v{e+7}", f"v_cmp_eq_u32 vcc, -1, v23"]
    lf, lb = G.add_fix([h_ld(P, k, 0), h_ld(P, k, 1)], ck, f'h{P}')
    return ck + [f"s_cbranch_vccnz {lf}", lb + ":"]

def red_imm(P, j):
    b = 32768
    return b + 1024*j if j < 4 else b + 16384 + 1024*(j - 4)

def red_writes(P):
    o = []
    for rel in (1, 2, 3):
        for tl in range(2):
            a = AP[P] + 16*(rel >> 1) + 4*(2*(rel & 1) + tl)
            o.append(f"ds_write_b128 v{vVF}, v[{a}:{a+3}] offset:{red_imm(P, 2*(rel - 1) + tl)}")
    return o

RA = 21
def red_reads(P, RD):
    return [f"ds_read_b128 v[{RD+4*j}:{RD+4*j+3}], v{(21, 22, 68)[j//2]} offset:{red_imm(P, j)}" for j in range(6)]

def red_adds(P, RD, pk, mid=()):
    o = []
    a = AP[P]
    if pk:
        for base in (0, 8, 16):
            for i in range(0, 8, 2): o.append(f"v_pk_add_f32 v[{a+i}:{a+i+1}], v[{a+i}:{a+i+1}], v[{RD+base+i}:{RD+base+i+1}]")
    else:
        for base in (0, 8, 16):
            for i in range(8): o.append(f"v_add_f32 v{a+i}, v{a+i}, v{RD+base+i}")
    o += list(mid)
    for i in range(4): o += [f"v_lshlrev_b32 v{RD+2*i}, 16, v{vXR+4*P+i}", f"v_and_b32 v{RD+2*i+1}, 0xffff0000, v{vXR+4*P+i}"]
    if pk:
        for i in range(0, 8, 2): o.append(f"v_pk_fma_f32 v[{RD+i}:{RD+i+1}], v[{a+i}:{a+i+1}], v[{vR2+2*P}:{vR2+2*P+1}], v[{RD+i}:{RD+i+1}] op_sel:[0,1,0] op_sel_hi:[1,1,1]")
    else:
        for i in range(8): o.append(f"v_fmac_f32 v{RD+i}, v{a+i}, v{vR2+2*P+1}")
    return o

def poison_h2(c, a):
    o = [f"v_mov_b32 v{c+i}, -1" for i in range(4)] + [f"v_mul_u32_u24 v{a}, {HF_PITCH}, v2", f"v_add_u32 v{a}, v{a}, v{vL16}"]
    for h in range(2):
        o.append(f"s_add_u32 s{sT+8}, s{sHC}, 0x{WS_HF[1]-WS_HF[0] + 4*h*HF_PITCH:x}")
        for i in range(3): o.append(f"buffer_store_dwordx4 v[{c}:{c+3}], v{a}, {WS}, s{sT+8} offen offset:{1024*i} sc1 @hp2")
    return o

def fin_x(P, RD, X, U):
    a = AP[P]; o = []
    for base in (0, 8, 16):
        o += [f"v_pk_add_f32 v[{a+i}:{a+i+1}], v[{a+i}:{a+i+1}], v[{RD+base+i}:{RD+base+i+1}]" for i in range(0, 8, 2)]
        if base == 0: o += unpack(U, vXR + 4*P, 4)
    o += [f"v_pk_fma_f32 v[{X+i}:{X+i+1}], v[{a+i}:{a+i+1}], v[{vR2+2*P}:{vR2+2*P+1}], v[{U+i}:{U+i+1}] op_sel:[0,1,0] op_sel_hi:[1,1,1]" for i in range(0, 8, 2)]
    return o

def out_store(x, o, so):
    return [f"v_cvt_pk_bf16_f32 v{o+i}, v{x+2*i}, v{x+2*i+1}" for i in range(4)] + \
           [f"v_permlane16_swap_b32 v{o}, v{o+2}", f"v_permlane16_swap_b32 v{o+1}, v{o+3}", f"buffer_store_dwordx4 v[{o}:{o+3}], v{vOA}, {srd(SRD_O)}, s{so} offen"]

def gemm2(G, L, left):
    from gen_front import sprinkle
    p = G.p
    p("s_barrier")
    G.stamp(f"g1end{L}")
    W = Weaver(vm_space=G.opt.get("vs2", 4))
    sv = [(0, t) for t in left]
    side = []
    for rel, r in ((1, 21), (2, 22), (3, 68)): side += [f"v_xor_b32 v{r}, {rel}, v2", f"v_lshl_add_u32 v{r}, v{r}, 12, v{vL16}"]
    if L == 0: side += st_base(sT + 2, WS_STX) + xtile_base(sT + 4, WS_X3B) + [f"s_add_u32 s{sT+3}, s{sT+2}, 0x{WS_STA[1]-WS_STX:x}"]
    else: side += [f"s_add_u32 s{sT+2}, s{sOB}, {4*16384}"]
    X0 = AP[0]; R0 = AP[0] + 8
    GP, YU0, C0 = 232, 240, 248
    p1s = G.opt.get("p1s", 8); back = []
    def step_mf(P, k):
        mf = []
        for cs in range(4):
            for rs in range(2):
                w = ar(192 + 16*k + 4*cs, 4) if k < 4 else vr(WF + 16*(k % 2) + 4*cs, 4)
                mf.append(mfma(AP[P] + 16*rs + 4*cs, w, vr(RING + 8*k + 4*rs, 4), "0" if k == 0 else None))
        return mf
    def step_tr(k): return [(i, t) for i, t in enumerate(wd_tr(WID[k + 1], WF + 16*((k + 1) % 2), False))] if 3 <= k < 10 else []
    def nan_check(P, issued):
        ck = [f"v_cmp_u_f32 vcc, v{AP[P]}, v{AP[P]+16}"]
        redo = ["s_waitcnt vmcnt(0)"] + [h_ld(P, k, rs) for k in range(11) for rs in range(2)]
        Wr = Weaver()
        for k in range(11): redo += Wr.run(step_mf(P, k), [step_tr(k)], flush=[0])
        lf, lb = G.add_fix(redo, ck, f"h{P}", after=issued)
        return ck + [f"s_cbranch_vccnz {lf}", lb + ":"]
    for P in range(2):
        s3 = []; s4 = []; issued = []
        for k in range(11):
            s0 = ([(0, f"@wv wd{k+1}")] if (P == 0 and 3 <= k < 10) else []) + step_tr(k)
            s1 = []
            if P == 0:
                if k >= 1: back += [(0, h_ld(1, k - 1, 0)), (0, h_ld(1, k - 1, 1))]
                if k >= p1s: sv += back; back = []
                if k == 0: s3 += [(0, t) for t in side]
                if L == 0 and k == 0: s1 = [(0, t) for t in hflag_ld(0)] + s1
                if L == 0 and k == 3: s1 = [(0, t) for t in hflag_chk(G, 0)] + s1
                W.vm_space = G.opt.get("vsb", 2)
            else:
                W.vm_space = G.opt.get("vs2", 4)
                if L == 0 and k == G.opt.get("hp2", 20): s4 += [(0, t) for t in poison_h2(252, 251)]
                if k == 2: s3 += [(1, "s_barrier")]
                if L == 0 and k == G.opt.get("gs", 8): s3 += [(0, "!" + t) for t in st1_ld(GP, sT + 2, 0)]
            need = (h_ld(P, k, 0), h_ld(P, k, 1))
            while any(t in need for (_, t) in sv): l = sv.pop(0)[1]; p(l); issued.append(l)
            out = W.run(step_mf(P, k), [sv, s0, s1, s3, s4], flush=[1, 2])
            for l in out: p(l)
            issued += out
        for (_, t) in s3 + s4: p(t)
        p1set = {h_ld(1, k, rs) for k in range(11) for rs in range(2)}
        for l in nan_check(P, [l for l in issued if l in p1set] if P == 0 else []): p(l)
        if P == 0:
            G.stamp(f"p0end{L}")
            sv += back + [(0, h_ld(1, 10, 0)), (0, h_ld(1, 10, 1))]
            gap = red_writes(0) + ["s_waitcnt lgkmcnt(0)", "s_barrier"] + red_reads(0, R0) + fin_x(0, R0, X0, WF)
            if L == 0: gap += psum1(X0, C0, C0 + 2) + fold1(C0) + st1_st(C0, sT + 2, 0) + unpack(YU0, vY, 4)
            else: gap += out_store(X0, R0, sOB)
            u = [t for (_, t) in sv[:G.opt.get("gapn", 10)]]; del sv[:len(u)]
            for l in sprinkle(gap, u, G.opt.get("gape", 5)) + u: p(l)
            G.stamp(f"gap{L}")
    G.stamp(f"g2mm{L}")
    RD1, X1 = 96, 120
    for l in red_writes(1): p(l)
    if L == 0:
        for l in G.poll_end_lines(None, st1_ld(GP, sT + 2, 0), [], st1_ck(GP, 23), "st") + coef1(GP, C0) + norm1(X0, GP, C0) + gate_out(X0, GP, YU0, 0, sT + 4): p(l)
        G.stamp("x3a")
    p("s_waitcnt lgkmcnt(0)\ns_barrier")
    for l in red_reads(1, RD1): p(l)
    if L == 0:
        for l in psum1(X0, C0, GP): p(l)
    for l in fin_x(1, RD1, X1, 128): p(l)
    if L == 1:
        for l in out_store(X1, 128, sT + 2): p(l)
        return
    for l in psum1(X1, 128, 130) + fold1(128) + st1_st(128, sT + 2, 1): p(l)
    G.stamp("stpub")
    for l in fold1(C0) + unpack(128, vY + 4, 4) + st1_st(C0, sT + 3, 0): p(l)
    hp = poison_h2(252, 251) if G.opt.get("hp2", 20) > 10 else []
    k0 = 7
    for l in hp[:k0] + [f"s_add_u32 s{sT+9}, s{sT+8}, {4*HF_PITCH}"] + layer_scalars(1): p(l)
    hp = [l.replace(f"s{sT+8} ", f"s{sT+9} ") if i >= 4 else l for i, l in enumerate(hp[k0:]) if l.startswith("buffer")]
    G1_, C1 = 104, 112
    fin = lambda: G.poll_end_lines(None, st1_ld(G1_, sT + 2, 1), [], st1_ck(G1_, vMT), "st") + coef1(G1_, C1) + norm1(X1, 136, C1) + \
        gate_out(X1, 136, 128, 1, sT + 5) + psum1(X1, C1, 116) + fold1(C1) + ["@wv hp2"] + st1_st(C1, sT + 3, 1)
    if G.opt.get("inslot", 0):
        G.between = st1_ld(G1_, sT + 2, 1) + hp
        f = []
        for l in spaced(plain(fin())):
            if l.startswith("s_cbranch"): f.append("+1")
            f.append("!" + l if l.startswith("buffer") else l)
        G.slot0 = f
    else:
        G.between = st1_ld(G1_, sT + 2, 1) + hp + fin()

def x_hint_addr():
    return [f"s_and_b32 s14, s{sJ}, 24", f"s_lshl_b32 s13, s{sW}, 1", "s_add_u32 s14, s14, s13", "s_lshl_b32 s14, s14, 15",
            f"s_and_b32 s13, s{sX}, 6", "s_lshl_b32 s13, s13, 12", "s_add_u32 s14, s14, s13"]
def x_hint_offs(kind): return [32768*c + 4096*h + 1024*wv + 128*kind for c in range(2) for h in range(2) for wv in range(2)]

def x_start(G, L, between):
    n = G.nf[L]
    att = [l for g in range(n) for l in x_dma(g, L)]
    VR2 = 72
    rd = [f"ds_read_b128 v[{VR2+16*g+4*i}:{VR2+16*g+4*i+3}], v{vVF} offset:{g*16384 + 1024*i}" for g in range(n) for i in range(4)]
    rs = [VR2 + 4*k + 3 for k in range(4*n)]
    ck = [f"v_max3_u32 v{vVA}, v{rs[0]}, v{rs[1]}, v{rs[2]}"]
    k = 3
    while k + 1 < len(rs): ck.append(f"v_max3_u32 v{vVA}, v{vVA}, v{rs[k]}, v{rs[k+1]}"); k += 2
    if k < len(rs): ck.append(f"v_max_u32 v{vVA}, v{vVA}, v{rs[k]}")
    ck.append(f"v_cmp_eq_u32 vcc, -1, v{vVA}")
    G.poll(att, rd, ck, "x0", between)

def mlp(G):
    p = G.p
    G.nf = (G.opt.get("nf0", 2), G.opt.get("nf1", 2))
    for L in range(2):
        if L == 0:
            from gen_front import handover
            between = handover(G)
        else:
            between = G.between
        x_start(G, L, between)
        p("s_waitcnt lgkmcnt(0)\ns_barrier")
        G.stamp(f"g1go{L}")
        left = gemm1_normal(G, L)
        if G.stop == "g1" or (G.stop == "g1b" and L == 1): return
        gemm2(G, L, left)
        if G.stop == "g2": return
```

```python
import re

REG = re.compile(r'^(-|\|)?(abs\()?([vas])(\d+|\[(\d+):(\d+)\])\)?\|?$')

def regs_of(tok):
    tok = tok.strip()
    if tok in ("vcc", "exec"):
        return {tok + "_lo", tok + "_hi"}
    if tok in ("vcc_lo", "vcc_hi", "exec_lo", "exec_hi", "m0"):
        return {tok}
    m = REG.match(tok)
    if not m:
        return set()
    k = m.group(3)
    if m.group(5) is not None:
        return {"%s%d" % (k, i) for i in range(int(m.group(5)), int(m.group(6)) + 1)}
    return {"%s%d" % (k, int(m.group(4)))}

TRANS = ("v_exp_f32", "v_log_f32", "v_rcp_f32", "v_rsq_f32", "v_sqrt_f32", "v_sin_f32", "v_cos_f32")

class Ins:
    __slots__ = ("text", "mn", "ops", "mods", "rd", "wr", "kind", "tag", "dpp", "nslots", "cC", "store_data", "islds")
    def __init__(self, text, tag=None):
        self.text = text.strip()
        self.tag = tag
        t = self.text.split(";")[0].strip()
        p = t.split(None, 1)
        self.mn = p[0]
        rest = p[1] if len(p) > 1 else ""
        ops = []; depth = 0; cur = ""
        for ch in rest:
            if ch in "[(": depth += 1
            if ch in "])": depth -= 1
            if ch == "," and depth == 0:
                ops.append(cur.strip()); cur = ""
            else:
                cur += ch
        if cur.strip(): ops.append(cur.strip())
        mods = ""
        if ops:
            q = ops[-1].split(None, 1)
            if len(q) > 1 and not ops[-1].startswith("hwreg"):
                ops[-1] = q[0]; mods = q[1]
        self.ops = ops; self.mods = mods
        self.dpp = ("row_" in mods or "quad_perm" in mods or "_dpp" in self.mn)
        self.nslots = 1
        self.cC = set(); self.store_data = set(); self.islds = False
        mn = self.mn
        R = lambda i: regs_of(ops[i]) if i < len(ops) else set()
        allr = lambda a: set().union(*[R(i) for i in range(a, len(ops))]) if a < len(ops) else set()
        if mn.startswith("v_mfma"):
            self.kind = "mfma"; self.wr = R(0); self.rd = allr(1); self.cC = R(3)
        elif mn.startswith("v_"):
            self.kind = "valu"
            if mn.startswith("v_cmp"):
                self.wr = R(0); self.rd = allr(1)
            elif mn.startswith("v_permlane") and "swap" in mn:
                self.wr = R(0) | R(1); self.rd = R(0) | R(1)
            elif mn.startswith(("v_fmac", "v_dot2c", "v_pk_fmac")):
                self.wr = R(0); self.rd = allr(0)
            elif mn.startswith(("v_add_co", "v_sub_co", "v_addc_co")):
                self.wr = R(0) | R(1); self.rd = allr(2)
            else:
                self.wr = R(0); self.rd = allr(1)
                if mn.startswith("v_cndmask") and len(ops) == 3: self.rd |= {"vcc_lo", "vcc_hi"}
            if self.dpp and "bound_ctrl" not in mods and mn.startswith("v_mov"): self.rd |= R(0)
        elif mn.startswith("ds_"):
            self.kind = "ds"
            if mn.startswith(("ds_read", "ds_bpermute", "ds_swizzle")):
                self.wr = R(0); self.rd = allr(1)
            else:
                self.wr = set(); self.rd = allr(0)
        elif mn.startswith("buffer_") or mn.startswith("global_"):
            self.kind = "vmem"
            lds = re.search(r'\blds\b', mods) is not None or "_lds_" in mn
            self.islds = lds
            if mn in ("buffer_wbl2", "buffer_inv"):
                self.wr = set(); self.rd = set()
            elif lds:
                self.wr = set(); self.rd = allr(0) | {"m0"}
            elif "load" in mn:
                self.wr = R(0); self.rd = allr(1)
            elif mn.startswith("buffer_store"):
                self.wr = set(); self.rd = allr(0)
                if "x4" in mn or "x3" in mn: self.store_data = R(0)
            elif mn.startswith("global_store"):
                self.wr = set(); self.rd = allr(0)
                if "x4" in mn or "x3" in mn: self.store_data = R(1)
            else:
                raise ValueError("unhandled vmem " + self.text)
        elif mn.startswith("s_"):
            self.kind = "salu"
            if mn.startswith(("s_load", "s_memtime", "s_memrealtime")):
                self.kind = "smem"; self.wr = R(0); self.rd = allr(1)
            elif mn.startswith(("s_cmp", "s_bitcmp", "s_cbranch", "s_branch", "s_barrier", "s_waitcnt", "s_nop", "s_endpgm", "s_sleep", "s_setprio")):
                self.wr = set(); self.rd = allr(0) if mn.startswith(("s_cmp", "s_bitcmp")) else set()
                if mn == "s_nop": self.nslots = int(ops[0]) + 1
            elif "saveexec" in mn:
                self.wr = R(0) | {"exec_lo", "exec_hi"}; self.rd = allr(1) | {"exec_lo", "exec_hi"}
            else:
                self.wr = R(0); self.rd = allr(1)
        else:
            raise ValueError("unknown instr: " + self.text)

class Pseudo:
    def __init__(self, kind, arg=None):
        self.kind = kind; self.arg = arg

class Prog:
    def __init__(self):
        self.items = []
        self.uid = 0
        self.stats = {}
    def __call__(self, s, tag=None):
        for l in s.split("\n"):
            l = l.strip().lstrip("!")
            if not l or l.startswith((";", "+")): continue
            if l.endswith(":"):
                self.items.append(Pseudo("label", l[:-1]))
            elif l.startswith("."):
                self.items.append(Pseudo("raw", l))
            elif l.startswith("@wv "):
                self.items.append(Pseudo("wv", l[4:].strip()))
            elif l.startswith("@seed "):
                self.items.append(Pseudo("seed", l[6:].split()))
            elif l.startswith("@wl "):
                self.items.append(Pseudo("wl", l[4:].strip()))
            else:
                t = tag
                if "@" in l:
                    l, t = l.rsplit("@", 1); t = t.strip()
                self.items.append(Ins(l, t))
    def new(self, p="L"):
        self.uid += 1
        return "%s%d" % (p, self.uid)
    def fresh(self):
        self.items.append(Pseudo("fresh"))
    def comment(self, s):
        self.items.append(Pseudo("raw", "; " + s))

    def finalize(self):
        out = []
        vm = []
        lg = []
        def count_after(lst, idx, pos):
            return sum(1 for (o, p) in lst[idx + 1:] if p < pos)
        def place_wait(kind, lst, idx):
            pos = len(out)
            tgt_pos = lst[idx][1]
            k = len(out) - 1; steps = 0
            while k >= 0 and steps < 3 and isinstance(out[k], Ins):
                if out[k].kind == "mfma":
                    if k + 1 > tgt_pos and k + 1 < len(out):
                        nxt = out[k + 1]
                        if nxt.kind in ("valu", "ds", "vmem"):
                            pos = k + 1
                        elif nxt.mn == "s_waitcnt":
                            pos = -(k + 1) - 1
                    break
                if out[k].mn in ("s_barrier",) or out[k].mn.startswith("s_cbranch"): break
                k -= 1; steps += 1
            merge = None
            if pos < 0:
                merge = -(pos + 1); pos = merge
            if kind == "lg" and any(o.kind == "smem" for (o, p) in lst if p < pos):
                n = 0
            else:
                n = count_after(lst, idx, pos)
            n = min(n, 63 if kind == "vm" else 15)
            name = "vmcnt" if kind == "vm" else "lgkmcnt"
            if merge is None and pos == len(out) and out and isinstance(out[-1], Ins) and out[-1].mn == "s_waitcnt":
                merge = len(out) - 1
            if merge is not None:
                w = out[merge]
                m = re.search(name + r'\((\d+)\)', w.text)
                if m:
                    n = min(n, int(m.group(1)))
                    txt = w.text.replace(m.group(0), "%s(%d)" % (name, n))
                else:
                    txt = w.text + " %s(%d)" % (name, n)
                out[merge] = Ins(txt)
            else:
                out.insert(pos, Ins("s_waitcnt %s(%d)" % (name, n)))
                for L in (vm, lg):
                    for i2, (o, p) in enumerate(L):
                        if p >= pos: L[i2] = (o, p + 1)
            before = [e for e in lst if e[1] < pos or (merge is None and e[1] < pos + 1 and e[1] < pos)]
            nb = len(before)
            del lst[:max(0, nb - n)]
        for it in self.items:
            if isinstance(it, Pseudo):
                if it.kind in ("label", "raw"):
                    out.append(it)
                elif it.kind == "fresh":
                    vm.clear(); lg.clear(); out.append(Pseudo("raw", "; --- fresh"))
                elif it.kind == "seed":
                    for _ in range(int(it.arg[1])):
                        vm.append((Ins("buffer_inv", it.arg[0]), len(out) - 1))
                elif it.kind in ("wv", "wl"):
                    lst = vm if it.kind == "wv" else lg
                    tags = it.arg.split(",")
                    idx = max([i for i, (o, p) in enumerate(lst) if o.tag in tags], default=-1)
                    if idx >= 0: place_wait("vm" if it.kind == "wv" else "lg", lst, idx)
                continue
            ins = it
            touched = ins.rd | ins.wr
            if ins.mn == "s_waitcnt":
                m = re.search(r'vmcnt\((\d+)\)', ins.text)
                if m: del vm[:max(0, len(vm) - int(m.group(1)))]
                m = re.search(r'lgkmcnt\((\d+)\)', ins.text)
                if m: del lg[:max(0, len(lg) - int(m.group(1)))]
                out.append(ins); continue
            idx = max([i for i, (o, p) in enumerate(vm) if o.wr & (ins.wr if (o.tag or "").endswith("~") else touched) and not ((o.tag or "").endswith("~") and (ins.tag or "").endswith("~"))], default=-1)
            if (ins.tag or "").endswith("~"): idx = -1
            if idx >= 0: place_wait("vm", vm, idx)
            idx = max([i for i, (o, p) in enumerate(lg) if o.wr & touched], default=-1)
            if idx >= 0: place_wait("lg", lg, idx)
            if ins.kind == "vmem": vm.append((ins, len(out)))
            if ins.kind in ("ds", "smem"): lg.append((ins, len(out)))
            out.append(ins)
        pend = None
        for it in out:
            if isinstance(it, Pseudo): continue
            if it.mn.startswith("s_cbranch_vcc") or "vcc_lo" in it.rd: pend = None
            if "vcc_lo" in it.wr:
                assert pend is None, ("vcc overwritten", pend.text, it.text)
                pend = it
        res = []
        hist = []
        slot = 0
        nnop = 0
        for it in out:
            if isinstance(it, Pseudo):
                res.append(it.arg + (":" if it.kind == "label" else "")); continue
            need = 0
            for (p, ps) in reversed(hist):
                d = slot - ps - p.nslots
                if d >= 9: break
                need = max(need, hazard(p, it) - d)
            if need > 0:
                res.append("s_nop %d" % (need - 1)); slot += need; nnop += 1
            res.append(it.text)
            hist.append((it, slot)); slot += it.nslots
            if len(hist) > 16: hist.pop(0)
        self.stats = dict(nops=nnop, n=len(res))
        return res

def isv(s): return {r for r in s if r[0] in "va" and r[1:].isdigit()}
def iss(s): return {r for r in s if not (r[0] in "va" and r[1:].isdigit())}

def hazard(p, c):
    n = 0
    if p.kind == "valu":
        wv = isv(p.wr); ws = iss(p.wr)
        if c.kind == "mfma" and wv & c.rd: n = max(n, 2)
        if c.kind == "valu":
            if wv & c.rd:
                if c.mn.startswith("v_permlane") or c.dpp: n = max(n, 2)
                if c.mn.startswith(("v_readlane", "v_readfirstlane")): n = max(n, 1)
                if p.mn.startswith(TRANS) and not c.mn.startswith(TRANS): n = max(n, 1)
            if p.mn.startswith("v_dot") and wv & (c.rd | c.wr):
                same_acc = (c.mn == p.mn and not (wv & (regs_of(c.ops[1]) | regs_of(c.ops[2]))))
                if not same_acc: n = max(n, 3)
            if ws & c.rd: n = max(n, 2)
        if p.mn.startswith("v_dot") and c.kind in ("ds", "vmem", "mfma") and wv & (c.rd | c.wr): n = max(n, 3)
        if c.kind == "vmem" and ws & c.rd: n = max(n, 5)
    elif p.kind == "mfma":
        D = p.wr
        if c.kind == "mfma":
            ab = regs_of(c.ops[1]) | regs_of(c.ops[2])
            if D & ab: n = max(n, 8)
            if D & c.cC and D != c.cC: n = max(n, 6)
            if D & c.wr and not (D & c.cC): n = max(n, 6)
        elif c.kind in ("valu", "ds", "vmem"):
            if D & (c.rd | c.wr): n = max(n, 8)
            if c.kind == "valu" and p.cC & c.wr: n = max(n, 3)
    elif p.kind == "vmem":
        if p.store_data and c.kind == "valu" and p.store_data & c.wr: n = max(n, 2)
        elif p.store_data and p.store_data & c.wr: n = max(n, 1)
    elif p.kind == "salu":
        if "m0" in p.wr and c.kind == "vmem" and c.islds: n = max(n, 1)
    return n

def lds_cost(t):
    if not t.startswith("ds_"): return 0
    if t.startswith("ds_write_b128"): return 52
    if t.startswith(("ds_read_b128", "ds_write_b32", "ds_read2")): return 16
    return 8

class Weaver:
    def __init__(self, vm_space=4, cap=2, no_s=None):
        self.no_s = no_s or (lambda g: False)
        self.debt = 0; self.lds_max = 24
        self.g = 0; self.last_vm = -100; self.vm_space = vm_space; self.cap = cap
    def run(self, mf, streams, flush=()):
        out = []
        free = lambda t: (t.startswith("@") or t.endswith(":")) and "\n" not in t
        isvm = lambda t: t.startswith(("buffer_", "global_"))
        for g, m in enumerate(mf):
            out.append(m)
            nv = 0; used_s = self.no_s(self.g + g); pend = None
            self.debt = max(0, self.debt - 16)
            while True:
                placed = False
                for s in streams:
                    if pend and s is pend[0]: continue
                    while s and s[0][0] <= g and (free(s[0][1]) or s[0][1].startswith("+")):
                        t = s.pop(0)[1]
                        if t.startswith("+"):
                            if s: s[0] = (max(s[0][0], g + int(t[1:])), s[0][1])
                        else: out.append(t)
                if not used_s and nv == 0:
                    for s in streams:
                        if not s or s[0][0] > g: continue
                        t = s[0][1]
                        if "\n" in t:
                            if self.g + g - self.last_vm < self.vm_space and t.count("\n") == 1: continue
                            if t.count("\n") > 1:
                                out.append(s.pop(0)[1]); self.last_vm = self.g + g
                                used_s = True; nv = 2; placed = True; break
                            a, b = t.split("\n"); s.pop(0)
                            out.append(a); pend = (s, b); self.last_vm = self.g + g
                            used_s = True; nv = 1; placed = True; break
                        if t.startswith("s_"):
                            out.append(s.pop(0)[1]); used_s = True; placed = True; break
                    if placed: continue
                for s in streams:
                    if not s or s[0][0] > g: continue
                    if pend and s is pend[0]: continue
                    t = s[0][1]
                    if "\n" in t: continue
                    if isvm(t) and self.g + g - self.last_vm < self.vm_space: continue
                    w = 2 if t.startswith("v_permlane") else 1
                    lc = lds_cost(t)
                    if lc and self.debt > 0 and self.debt + min(lc, 16) > self.lds_max: continue
                    if nv + w <= self.cap or nv == 0:
                        self.debt += lc
                        if isvm(t) or t.startswith("!"): self.last_vm = self.g + g
                        out.append(s.pop(0)[1]); nv += w; placed = True; break
                if not placed: break
            if pend: out.append(pend[1])
        self.g += len(mf)
        for k in flush:
            out += [t for (_, t) in streams[k] if not t.startswith("+")]; streams[k].clear()
        for s in streams:
            for i2 in range(len(s)): s[i2] = (max(0, s[i2][0] - len(mf)), s[i2][1])
        return out

def weave(mf, streams, cap=2, vm_space=0):
    st = [list(s) for s in streams]
    return Weaver(vm_space, cap).run(mf, st, flush=range(len(st)))
```

```python
import sys
sys.path.insert(0, "tools")
from pg import Prog, weave

NAME = "interleave_layers__ssm_conv_h3__glu_gated_reglu__prompt_kernel"
HEADER = open("interleave_layers__ssm_conv_h3__glu_gated_reglu__prompt.s.ref").read().split("; Override")[0].rstrip()
S, D, F = 2048, 512, 1376

WS_EPOCH = 0x0
WS_FLAGS = 0x20000
WS_HFL = 0x10000
WS_STQ, WS_STX = 0xE80000, 0xEC0000
WS_STA = (0xF00000, 0xF40000)
WS_HINT = 0x500000
WS_KVG = 0x100000
import os
XP = int(os.environ.get('XP', 16512))
QP = int(os.environ.get('QP', 16512))
WS_X1B = 0x820000
WS_YB = 0xA40000
WS_X3B = 0xC60000
WS_HF = (0x1000000, 0x1600000)
HF_PITCH = 180 * 256
WS_DBG = 0x1C00000
WS_SIZE = 0x2000000

L_TC = 0; TC_STRIDE = 4160; TC_CH = 4 * TC_STRIDE
L_RS = 0
L_U = 33280; U_CH = 4608
L_WST = 61408; WST_UP = 49152 + 16
L_XS = 0
L_A = 114688
L_SP = 147456
L_MISC = 159744
LDS_SIZE = 163840

sX, sJ, sW, sTAG, sC = 3, 4, 5, 6, 7
sQP, sSKP, sDP = 16, 18, 20
SRD_K, SRD_V, SRD_H, SRD_WG, SRD_WU, SRD_WD, SRD_WS, SRD_O = 24, 28, 32, 36, 40, 44, 48, 52
sD0, sD1 = 56, 57
sDEAD, sSPIN = 58, 59
sR0 = 60
sHB, sCT = 61, 62
sT = 64
sM = 80
sST = 90
SPIN_MAX = 400000

def srd(n): return "s[%d:%d]" % (n, n + 3)
def vr(a, n=1): return "v%d" % a if n == 1 else "v[%d:%d]" % (a, a + n - 1)
def ar(a, n=1): return "a%d" % a if n == 1 else "a[%d:%d]" % (a, a + n - 1)
def mfma(d, a, b, c=None):
    return "v_mfma_f32_16x16x32_bf16 %s, %s, %s, %s" % (vr(d, 4), a, b, vr(d, 4) if c is None else c)

class Gen:
    def __init__(self, stop=None, stamps=False, skip=()):
        self.skip = set(skip)
        self.p = Prog()
        self.fix = []
        self.stop = stop
        self.stamps = stamps
        self.nst = 0
        self.stnames = []
        self.extra = []
        self.probe = None
        self.opt = {}

    def stamp(self, name):
        if not self.stamps: return
        p = self.p
        if name not in self.skip and name != "end": return
        if name in self.stnames: idx = self.stnames.index(name)
        else:
            assert self.nst < 12
            idx = self.nst; self.nst += 1; self.stnames.append(name)
        p("s_waitcnt lgkmcnt(0)\ns_memrealtime s[80:81]\ns_waitcnt lgkmcnt(0)\ns_mov_b32 s%d, s80" % (sST + idx))

    def spin_guard(self, lback):
        return ["s_cmp_lg_u32 s%d, 0" % sDEAD, "s_cbranch_scc1 %s" % lback,
                "s_add_u32 s%d, s%d, 1" % (sSPIN, sSPIN), "s_cmp_lt_u32 s%d, %d" % (sSPIN, SPIN_MAX),
                "s_cselect_b32 s%d, 0, 1" % sDEAD]

    CATS = ["kvg", "y", "x0", "hint", "m", "h0", "h1", "st"]
    def add_fix(self, body_reload, body_check, cat="st", after=()):
        p = self.p
        lf = p.new("FIX"); lb = p.new("BACK")
        ci = self.CATS.index(cat)
        cnt = [f"s_add_u32 s{88 + ci // 4}, s{88 + ci // 4}, {1 << (8 * (ci % 4))}"] if self.stamps else []
        blk = [lf + ":"] + cnt + self.spin_guard(lb + "_x") + body_reload + ["s_waitcnt vmcnt(0) lgkmcnt(0)"] + body_check + \
              ["s_cbranch_vccnz %s" % lf] + list(after) + [lb + "_x:", "s_waitcnt vmcnt(0) lgkmcnt(0)", "s_nop 7", "s_branch %s" % lb]
        self.fix.append(blk)
        return lf, lb

    def poll(self, att, mid, check, cat, between=()):
        p = self.p
        n = sum(1 for l in att for x in l.split("\n") if x.startswith(("buffer_", "global_")))
        tag = p.new("at")
        def tagged(t): return ["\n".join((x.split(" @")[0] + " @" + t) if x.lstrip("!").startswith(("buffer_", "global_")) else x for x in l.split("\n")) for l in att]
        lf = p.new("FIX"); lb = p.new("BACK")
        ci = self.CATS.index(cat)
        cnt = [f"s_add_u32 s{88 + ci // 4}, s{88 + ci // 4}, {1 << (8 * (ci % 4))}"] if self.stamps else []
        blk = [lf + ":"] + cnt + self.spin_guard(lb + "_x") + tagged(tag + "~") + [f"s_waitcnt vmcnt({n})"] + mid + ["s_waitcnt lgkmcnt(0)"] + check + \
              ["s_cbranch_vccnz %s" % lf, lb + "_x:", "s_waitcnt lgkmcnt(0)", "s_nop 7", "s_branch %s" % lb]
        self.fix.append(blk)
        if cat in self.opt.get("single", ("kvg", "y", "x0", "st")):
            blk[blk.index(f"s_waitcnt vmcnt({n})")] = "s_waitcnt vmcnt(0)"
            for l in tagged(tag): p(l)
            for l in between: p(l)
            p(f"@wv {tag}")
            for l in mid + check: p(l)
            p(f"s_cbranch_vccnz {lf}\n{lb}:")
            return tag
        for l in tagged(tag): p(l)
        for l in between: p(l)
        for l in tagged(tag + "~"): p(l)
        p(f"@wv {tag}")
        for l in mid + check: p(l)
        p(f"s_cbranch_vccnz {lf}\n{lb}:")
        return tag + "~"

    HREG = list(range(24, 36)) + [18, 19, 20, 21]
    sHB_, sHO = 0, 15
    def hint_init(self):
        return [f"s_add_u32 s0, s{SRD_WS}, 0x{WS_HINT:x}", f"s_addc_u32 s1, s{SRD_WS+1}, 0", f"s_lshl_b32 s{self.sHO}, s2, 12", f"s_lshl_b32 s13, s{sW}, 10",
                f"s_add_u32 s{self.sHO}, s{self.sHO}, s13", f"s_add_u32 s{self.sHO}, s{self.sHO}, 0x{WS_HINT:x}"]
    def hint_st(self, kind, vtag):
        return f"s_mov_b64 exec, 1\nbuffer_store_dword v{vtag}, off, {srd(SRD_WS)}, s{self.sHO} offset:{128*kind} sc1\ns_mov_b64 exec, -1"
    def hint_ld(self, so, offs):
        return [f"s_load_dword s{self.HREG[i]}, s[0:1], s{so} offset:0x{o:x} glc" for i, o in enumerate(offs)]
    def hint_wait(self, so, offs, cat):
        p = self.p; r = self.HREG
        ck = ["s_waitcnt lgkmcnt(0)"] + [f"s_and_b32 s{r[0]}, s{r[0]}, s{r[i]}" for i in range(1, len(offs))] + [f"s_cmp_lg_u32 s{r[0]}, s{sTAG}"]
        lf = p.new("FIX"); lb = p.new("BACK")
        ci = self.CATS.index(cat)
        cnt = [f"s_add_u32 s{88 + ci // 4}, s{88 + ci // 4}, {1 << (8 * (ci % 4))}"] if self.stamps else []
        self.fix.append([lf + ":"] + cnt + self.spin_guard(lb) + self.hint_ld(so, offs) + ck + [f"s_cbranch_scc1 {lf}", f"s_branch {lb}"])
        return ck + [f"s_cbranch_scc1 {lf}", lb + ":"]

    def poll_begin(self, att):
        tag = self.p.new("at")
        for l in att:
            self.p("\n".join((x.split(" @")[0] + " @" + tag) if x.lstrip("!").startswith(("buffer_", "global_")) else x for x in l.split("\n")))
        return tag
    def poll_end_lines(self, tag, att, mid, check, cat):
        lf, lb = self.add_fix([l.split(" @")[0] for l in att] + ["s_waitcnt vmcnt(0)"] + mid, check, cat)
        return ([f"@wv {tag}"] if tag else []) + mid + check + [f"s_cbranch_vccnz {lf}", lb + ":"]

    def finish(self):
        p = self.p
        p(f"""s_cmp_lg_u32 s2, 0
s_cbranch_scc1 L_NOEP
v_mov_b32 v21, 0
v_mov_b32 v22, s{sTAG}
s_mov_b64 exec, 1
buffer_store_dword v22, v21, {srd(SRD_WS)}, 0 offen sc1
s_mov_b64 exec, -1
L_NOEP:""")
        if self.stamps:
            p("s_waitcnt vmcnt(0)")
            self.stamp("end")
            p(f"s_cmp_lg_u32 s{sW}, 0\ns_cbranch_scc1 L_END")
            p(f"s_lshl_b32 s{sT}, s2, 6\ns_add_u32 s{sT}, s{sT}, 0x{WS_DBG:x}\nv_mov_b32 v21, 0\ns_mov_b64 exec, 1")
            for i in range(self.nst):
                p(f"v_mov_b32 v22, s{sST+i}\nbuffer_store_dword v22, v21, {srd(SRD_WS)}, s{sT} offen offset:{4*i}")
            p(f"v_mov_b32 v22, s88\nbuffer_store_dword v22, v21, {srd(SRD_WS)}, s{sT} offen offset:52\nv_mov_b32 v22, s89\nbuffer_store_dword v22, v21, {srd(SRD_WS)}, s{sT} offen offset:56")
            p(f"v_mov_b32 v22, s{sSPIN}\nbuffer_store_dword v22, v21, {srd(SRD_WS)}, s{sT} offen offset:60")
        p("L_END:\ns_endpgm")
        labels = {it.arg for pr in [p] + self.extra for it in pr.items if getattr(it, "kind", "") == "label"}
        for blk in self.fix:
            if blk[-1].split()[-1] not in labels: continue
            p.fresh()
            for l in blk: p(l)

    def build(self):
        self.code_kb = 64
        from gen_front import front, conv
        front(self)
        conv(self)
        if self.stop != "conv":
            from gen_mlp import mlp
            mlp(self)
        self.finish()
        body = self.p.finalize()
        for e in self.extra: body += e.finalize()
        txt = [HEADER, f"; @launch grid=(256,1,1) block=(256,1,1) lds={LDS_SIZE}", '.amdgcn_target "amdgcn-amd-amdhsa--gfx950"', ".text",
               f".globl {NAME}", ".p2align 8", f".type {NAME},@function", NAME + ":"] + body
        txt += [".p2align 8", f".fill (65536 + 2048 - (. - {NAME})) / 4, 4, 0xbf800000"]
        txt += ['.section .rodata,"a"', ".p2align 6", f".amdhsa_kernel {NAME}", "  .amdhsa_next_free_vgpr 512", "  .amdhsa_next_free_sgpr 102",
                "  .amdhsa_accum_offset 256", "  .amdhsa_group_segment_fixed_size 0", "  .amdhsa_kernarg_size 104", "  .amdhsa_user_sgpr_count 2",
                "  .amdhsa_user_sgpr_kernarg_segment_ptr 1", "  .amdhsa_system_sgpr_workgroup_id_x 1", ".end_amdhsa_kernel"]
        t = "\n".join(txt) + "\n"
        if self.probe is not None: t = add_probe(t, *self.probe)
        return t

def add_probe(t, col, K, mode="max"):
    t = t.replace(f"; @launch grid=(256,1,1) block=(256,1,1) lds={LDS_SIZE}",
                  f"; @launch kernel={NAME} grid=(256,1,1) block=(256,1,1) lds={LDS_SIZE}\n; @launch kernel=probe_kernel grid=(1,1,1) block=(64,1,1) lds=0")
    red = "v_max_u32" if mode == "max" else "v_add_u32"
    code = [".text", ".globl probe_kernel", ".p2align 8", ".type probe_kernel,@function", "probe_kernel:",
            "s_cmp_ge_u32 s2, 1", "s_cbranch_scc1 PR_END", "s_load_dwordx2 s[4:5], s[0:1], 96", "s_waitcnt lgkmcnt(0)",
            f"s_add_u32 s4, s4, 0x{WS_DBG:x}", "s_addc_u32 s5, s5, 0", "v_lshlrev_b32 v1, 8, v0"]
    for i in range(4):
        code += [f"global_load_dword v{2+i}, v1, s[4:5] offset:{64*i}", f"global_load_dword v{6+i}, v1, s[4:5] offset:{64*i + 4*col}"]
    code += ["s_waitcnt vmcnt(0)", "v_min_u32 v2, v2, v3", "v_min_u32 v4, v4, v5", "v_min_u32 v2, v2, v4"]
    code += ["s_mov_b32 s10, -1", "s_nop 2"]
    for l in range(64): code += [f"v_readlane_b32 s11, v2, {l}", "s_nop 0", "s_min_u32 s10, s10, s11"]
    for i in range(4): code += [f"v_subrev_u32 v{6+i}, s10, v{6+i}"]
    code += [f"{red} v6, v6, v7", f"{red} v8, v8, v9", f"{red} v6, v6, v8", "s_mov_b32 s12, 0", "s_nop 2"]
    for l in range(64): code += [f"v_readlane_b32 s11, v6, {l}", "s_nop 0", ("s_max_u32" if mode == "max" else "s_add_u32") + " s12, s12, s11"]
    if mode != "max": code += ["s_lshr_b32 s12, s12, 8"]
    code += [f"s_mul_i32 s12, s12, {K}", "s_min_u32 s12, s12, 200000", "s_memrealtime s[14:15]", "s_waitcnt lgkmcnt(0)",
             "PR_LOOP:", "s_memrealtime s[16:17]", "s_waitcnt lgkmcnt(0)", "s_sub_u32 s16, s16, s14", "s_cmp_lt_u32 s16, s12", "s_cbranch_scc1 PR_LOOP",
             "PR_END:", "s_endpgm"]
    kd = [".p2align 6", ".amdhsa_kernel probe_kernel", "  .amdhsa_next_free_vgpr 32", "  .amdhsa_next_free_sgpr 32", "  .amdhsa_accum_offset 32",
          "  .amdhsa_group_segment_fixed_size 0", "  .amdhsa_kernarg_size 104", "  .amdhsa_user_sgpr_count 2",
          "  .amdhsa_user_sgpr_kernarg_segment_ptr 1", "  .amdhsa_system_sgpr_workgroup_id_x 1", ".end_amdhsa_kernel"]
    t = t.replace('.section .rodata,"a"', "\n".join(code) + '\n.section .rodata,"a"')
    return t + "\n".join(kd) + "\n"

if __name__ == "__main__":
    import argparse
    ap = argparse.ArgumentParser()
    ap.add_argument("-o", default="k.s")
    ap.add_argument("--stop", default=None)
    ap.add_argument("--stamps", action="store_true")
    ap.add_argument("--st", default="")
    ap.add_argument("--probe", default="")
    ap.add_argument("--opt", default="")
    a = ap.parse_args()
    g = Gen(stop=a.stop, stamps=a.stamps, skip=a.st.split(','))
    for kv in a.opt.split(","):
        if kv:
            k_, v_ = kv.split("=")
            g.opt[k_] = v_.split("+") if k_ == "single" else int(v_)
    if a.probe:
        q = a.probe.split(","); g.probe = (int(q[0]), int(q[1]), q[2] if len(q) > 2 else "max")
    t = g.build()
    open(a.o, "w").write(t)
    open(a.o + ".stamps", "w").write(" ".join(g.stnames))
    print("lines", g.p.stats, "stamps", g.stnames)
```

```python
import sys
sys.path.insert(0, "tools")
from pg import weave, Weaver
from gen import *

WS = srd(SRD_WS)
fTW, fUZ, fRSW, fRSR, fKVR, fHP, fFA, fFB = range(220, 228)
QT8 = 228
fK, fKh, fK4, fSK, fKVG, fH, fPF = range(236, 243)
fWD = 243
fWT = 246
fCO, fCA, fCB, fT16 = 252, 253, 254, 255
ONE = 212
POI = 236
GR = 208
CS = 32
WH = (61376, 110560); WUP = 24576 + 16
sP = sT
sWs, sWm = sT + 6, sT + 7

NOW = [0]; ASC = [0]
KVMAP = ["""v_and_b32 v21, 15, v0
v_bfe_u32 v22, v0, 6, 1
v_lshl_add_u32 v21, v22, 4, v21
v_bfe_u32 v22, v0, 4, 2
v_lshrrev_b32 v23, 7, v0
v_lshl_add_u32 v22, v23, 2, v22""", """v_and_b32 v21, 7, v0
v_lshl_add_u32 v21, v2, 3, v21
v_bfe_u32 v22, v0, 3, 3""", """v_lshrrev_b32 v21, 3, v0
v_and_b32 v22, 7, v0"""]
MAPS = [f"""s_and_b32 s{sHB}, s{sX}, 1
s_lshl_b32 s{sC}, s{sHB}, 3
s_add_u32 s{sC}, s{sC}, s{sCT}
s_and_b32 s{sR0}, s{sJ}, 24
s_lshr_b32 s{sT+2}, s{sX}, 1
s_lshl_b32 s{sT+2}, s{sT+2}, 5
s_add_u32 s{sR0}, s{sR0}, s{sT+2}""", f"""s_bfe_u32 s{sHB}, s{sJ}, 0x10003
s_and_b32 s{sC}, s{sJ}, 15
s_lshr_b32 s{sR0}, s{sJ}, 4
s_lshl_b32 s{sR0}, s{sR0}, 3
s_lshl_b32 s{sT+2}, s{sX}, 4
s_add_u32 s{sR0}, s{sR0}, s{sT+2}"""]
YP = 2 * XP
def w_round(r):
    if NOW[0] == 2: return []
    o = [f"s_mul_i32 s{sWs}, s{sW}, {2*44032}", f"s_add_u32 s{sWs}, s{sWs}, {r*8*44032}"]
    for blk in range(2):
        for (sr, lo) in ((SRD_WG, 0), (SRD_WU, WUP)):
            for ph in range(3):
                o.append(f"s_add_u32 m0, s{sWm}, {WH[r % 2] + lo + blk*3072 + ph*1024}\nbuffer_load_dwordx4 v{fWD+ph}, {srd(sr)}, s{sWs} offen lds @w{r}")
        if blk == 0: o.append(f"s_add_u32 s{sWs}, s{sWs}, 44032")
    return o

def w_tr(r):
    return [f"ds_read_b64_tr_b16 {ar(64*t + 4*(4*r + k) + 2*h, 2)}, v{fWT + 3*(r % 2) + t} offset:{k*6144 + h*3072} @t{r}"
            for k in range(4) for t in range(3) for h in range(2)]

def w_cs(r):
    return [mfma(CS + 4*t, ar(64*t + 4*(4*r + k), 4), vr(ONE, 4), "0" if (r == 0 and k == 0) else None) for k in range(4) for t in range(3)]

def sprinkle(lines, extra, every, start=0):
    out = []; due = 0
    for i, l in enumerate(lines):
        out.append(l)
        if i >= start and (i - start) % every == 0: due = 1
        if due and not (i + 1 < len(lines) and lines[i + 1].startswith(("s_cselect", "s_cbranch", "s_addc"))):
            due = 0
            while extra and "\n" not in extra[0] and not extra[0].startswith(("buffer", "global")): out.append(extra.pop(0))
            if extra: out.append(extra.pop(0))
    return out

def front(G):
    import gen_mlp as M
    p = G.p
    NOW[0] = G.opt.get("nw", 0); ASC[0] = G.opt.get("asc", 0)
    if G.stamps:
        p("s_memrealtime s[80:81]\ns_waitcnt lgkmcnt(0)\ns_mov_b32 s%d, s80" % sST); G.nst = 1; G.stnames = ["start"]
    p("s_cmp_ge_u32 s2, 256\ns_cbranch_scc1 L_END")
    for reg, off in ((SRD_K, 8), (SRD_V, 16), (sSKP, 24), (SRD_WS, 96), (SRD_H, 32), (sQP, 0), (sDP, 40),
                     (SRD_WG, 56), (SRD_WU, 64), (SRD_WD, 72), (SRD_O, 80)):
        p("s_load_dwordx2 s[%d:%d], s[0:1], %d" % (reg, reg + 1, off))
    if G.opt.get("ipf", 0):
        p(f"s_getpc_b64 s[{sT+4}:{sT+5}]\nv_lshlrev_b32 v21, 7, v0\nglobal_load_dword a251, v21, s[{sT+4}:{sT+5}]")
    p(f"""s_and_b32 s{sX}, s2, 7
s_lshr_b32 s{sJ}, s2, 3
v_lshrrev_b32 v2, 6, v0
v_and_b32 v1, 63, v0
{KVMAP[G.opt.get("kfull", 1)]}
s_lshl_b32 s{sT+1}, s{sX}, 5
v_add_u32 v21, s{sT+1}, v21
s_lshl_b32 s{sT+2}, s{sJ}, 3
v_add_u32 v22, s{sT+2}, v22
v_lshlrev_b32 v{fK}, 13, v22
v_lshl_add_u32 v{fK}, v21, 2, v{fK}
v_subrev_u32 v{fKh}, 3072, v{fK}
v_add_u32 v{fK4}, 4096, v{fK}
v_lshlrev_b32 v{fSK}, 4, v21
v_mul_u32_u24 v{fKVG}, {KP}, v21
v_lshl_add_u32 v{fKVG}, v22, 4, v{fKVG}
s_add_u32 s{sP}, s{sT+1}, s{sJ}""")
    for reg, size in ((SRD_K, S*D*2), (SRD_V, S*D*2), (SRD_H, S*D*2), (SRD_WG, D*F*2), (SRD_WU, D*F*2), (SRD_WD, D*F*2),
                      (SRD_WS, WS_SIZE), (SRD_O, S*D*2)):
        p("s_mov_b32 s%d, 0x%x\ns_mov_b32 s%d, 0x00020000" % (reg + 2, size, reg + 3))
    p(f"""v_readfirstlane_b32 s{sW}, v2
s_lshl_b32 s{sT+2}, s{sP}, 13
v_lshlrev_b32 v{fH}, 5, v0
v_add_u32 v{fH}, s{sT+2}, v{fH}
s_xor_b32 s{sCT}, s{sJ}, {G.opt.get("rot", 0)}
s_and_b32 s{sCT}, s{sCT}, 7
{MAPS[G.opt.get("one", 1)]}
s_waitcnt lgkmcnt(0)""")
    KR, VR, SK, HA, HB_ = 48, 59, 68, 88, 98
    for i in range(3): p(f"buffer_load_dword v{KR+i}, v{fKh}, {srd(SRD_K)}, 0 offen offset:{1024*i}")
    for i in range(8): p(f"buffer_load_dword v{KR+3+i}, v{fK if i < 4 else fK4}, {srd(SRD_K)}, 0 offen offset:{1024*(i%4)}")
    p(f"global_load_dwordx4 v[{SK}:{SK+3}], v{fSK}, s[{sSKP}:{sSKP+1}]")
    for i in range(8): p(f"buffer_load_dword v{VR+i}, v{fK if i < 4 else fK4}, {srd(SRD_V)}, 0 offen offset:{1024*(i%4)}")
    p(f"""s_load_dword s{sTAG}, s[{SRD_WS}:{SRD_WS+1}], {WS_EPOCH}
s_lshl_b32 s{sT+1}, s{sP}, 2
s_load_dword s{sD0}, s[{sDP}:{sDP+1}], s{sT+1}""")
    if G.opt.get("ipf", 0):
        p(f"""s_lshl_b32 s{sT+2}, s{sJ}, 10
s_add_u32 s{sT+2}, s{sT+2}, 0x8000
v_and_b32 v{fPF}, 7, v0""")
    else:
        p(f"""s_getpc_b64 s[{sT+4}:{sT+5}]
s_lshl_b32 s{sT+2}, s{sJ}, 11
v_and_b32 v{fPF}, 15, v0""")
    p(f"""v_lshlrev_b32 v{fPF}, 7, v{fPF}
v_add_u32 v{fPF}, s{sT+2}, v{fPF}
global_load_dword a255, v{fPF}, s[{sT+4}:{sT+5}]""")
    if G.opt.get("kw", 0):
        p("v_mov_b32 v108, 0\nv_mov_b32 v109, 0\nv_mov_b32 v110, 0\nv_mov_b32 v111, 0")
        for pl in range(3): p(f"s_mov_b32 s{sT+2}, 0x{WS_KVG + 4096*pl:x}\nbuffer_store_dwordx4 v[108:111], v{fKVG}, {WS}, s{sT+2} offen sc1")
    TW = f"""v_min_u32 v21, 10, v1
v_mad_u32_u24 v21, v2, 11, v21
v_min_u32 v21, 42, v21
v_lshlrev_b32 v21, 7, v21
s_mul_i32 s{sT+2}, s2, 5504
buffer_load_dword a252, v21, {srd(SRD_WG)}, s{sT+2} offen
buffer_load_dword a253, v21, {srd(SRD_WU)}, s{sT+2} offen
buffer_load_dword a254, v21, {srd(SRD_WD)}, s{sT+2} offen""".split("\n")
    tw = G.opt.get("tw", 3)
    if tw == 1:
        for l in TW: p(l)
    LD = f"""buffer_load_dwordx4 v[{HA}:{HA+3}], v{fH}, {srd(SRD_H)}, 0 offen
buffer_load_dwordx4 v[{HA+4}:{HA+7}], v{fH}, {srd(SRD_H)}, 0 offen offset:16
buffer_load_dwordx2 v[{HA+8}:{HA+9}], v{fH}, {srd(SRD_H)}, 0 offen offset:32
buffer_load_dwordx4 v[{HB_}:{HB_+3}], v{fH}, {srd(SRD_H)}, 0 offen offset:4
buffer_load_dwordx4 v[{HB_+4}:{HB_+7}], v{fH}, {srd(SRD_H)}, 0 offen offset:20""".split("\n")
    A0 = M.early_lines() + [f"v_add_u32 v23, s{M.sOB}, v{M.vOA}", "v_add_u32 v22, 0x10000, v23"]
    ql = G.opt.get("ql", 0)
    if ql: A0[-2:] = [f"v_add_u32 v{QT8}, s{M.sOB}, v{M.vOA}", f"v_add_u32 v{QT8+4}, 0x10000, v{QT8}"]
    QL = [f"global_load_dwordx4 v[{QT8+4*P}:{QT8+4*P+3}], v{QT8+4*P}, s[{sQP}:{sQP+1}]" for P in range(2)]
    for l in sprinkle(A0, LD, 4) + LD: p(l)
    if not ql: p(f"global_load_dwordx4 v[{QT8}:{QT8+3}], v23, s[{sQP}:{sQP+1}]\nglobal_load_dwordx4 v[{QT8+4}:{QT8+7}], v22, s[{sQP}:{sQP+1}]")
    if tw == 2:
        for l in TW: p(l)
    A = f"""s_mov_b32 s{sDEAD}, 0
s_mov_b32 s{sSPIN}, 0
s_cmp_ge_u32 s{sC}, {0 if NOW[0] else 15}
s_cselect_b32 s{SRD_WG+2}, 0, s{SRD_WG+2}
s_cselect_b32 s{SRD_WU+2}, 0, s{SRD_WU+2}
s_mul_i32 s{sT+2}, s{sC}, 192
s_mul_i32 s{sWm}, s{sW}, {2*3072}""".split("\n")
    if G.stamps: A += ["s_mov_b32 s88, 0", "s_mov_b32 s89, 0"]
    for ph in range(3):
        A += f"""v_add_u32 v21, {64*ph}, v1
v_mul_u32_u24 v22, 5462, v21
v_lshrrev_b32 v22, 16, v22
v_mul_u32_u24 v23, 12, v22
v_sub_u32 v21, v21, v23
v_bfe_u32 v23, v22, 2, 1
v_lshlrev_b32 v23, 1, v23
v_xor_b32 v21, v21, v23
v_mul_u32_u24 v22, 2752, v22
v_lshl_add_u32 v22, v21, 4, v22
v_add_u32 v{fWD+ph}, s{sT+2}, v22""".split("\n")
    HN = G.opt.get("hint", 0)
    if HN:
        A += G.hint_init() + [f"v_mov_b32 v{108+i}, 0" for i in range(4)]
        A += [f"buffer_store_dwordx4 v[108:111], v{M.vL16}, {WS}, s{G.sHO} offen sc1"]
    nA = len(A)
    A += [f"v_mov_b32 v{POI+i}, -1" for i in range(4)]
    A += f"""v_bfe_u32 v21, v0, 4, 1
v_bfe_u32 v22, v0, 5, 1
v_and_b32 v23, 15, v0
v_bfe_u32 v{fCO}, v0, 3, 1
v_lshl_add_u32 v{fCO}, v2, 2, v{fCO}
v_and_b32 v{fKVR}, 3, v0
v_lshl_add_u32 v{fCO}, v{fCO}, 2, v{fKVR}
v_mul_u32_u24 v{fCO}, {YP}, v{fCO}
v_lshl_add_u32 v{fCO}, v21, 6, v{fCO}
v_lshl_add_u32 v{fCO}, v22, 4, v{fCO}
v_bfe_u32 v{fKVR}, v0, 2, 1
v_lshl_add_u32 v{fCO}, v{fKVR}, 5, v{fCO}
s_lshl_b32 s{sT+2}, s{sP}, 7
v_add_u32 v{fCO}, s{sT+2}, v{fCO}
v_lshlrev_b32 v{fKVR}, 5, v23
v_lshl_add_u32 v{fKVR}, v22, 4, v{fKVR}
v_xor_b32 v21, 1, v21
v_lshl_add_u32 v{fKVR}, v21, 3, v{fKVR}
v_lshl_add_u32 v{fKVR}, v2, 10, v{fKVR}
v_lshrrev_b32 v21, 7, v0
v_mul_u32_u24 v{fTW}, {TC_CH}, v21
v_and_b32 v22, 127, v0
v_lshl_add_u32 v{fTW}, v22, 5, v{fTW}
v_cmp_eq_u32 s[{sM+2}:{sM+3}], 0, v22
v_bfe_u32 v21, v0, 5, 1
v_mul_u32_u24 v{fUZ}, {U_CH}, v21
v_and_b32 v22, 31, v0
v_lshl_add_u32 v{fUZ}, v22, 4, v{fUZ}
v_lshlrev_b32 v{fT16}, 4, v0""".split("\n")
    A += M.setup_early()
    G.late = M.setup_late()
    A2 = f"""v_bfe_u32 v21, v0, 2, 4
v_mul_u32_u24 v{fWT}, 192, v21
v_bfe_u32 v22, v0, 4, 1
v_xor_b32 v23, v22, v2
v_lshl_add_u32 v{fWT+1}, v23, 5, v{fWT}
v_and_b32 v23, 3, v0
v_lshl_add_u32 v{fWT+1}, v23, 3, v{fWT+1}
v_lshlrev_b32 v22, 1, v22
v_add_u32 v23, 8, v2
v_xor_b32 v23, v23, v22
v_lshl_add_u32 v{fWT+2}, v23, 4, v{fWT}
v_and_b32 v23, 1, v0
v_lshl_add_u32 v{fWT+2}, v23, 3, v{fWT+2}
v_bfe_u32 v23, v0, 1, 1
v_mul_u32_u24 v23, {WUP}, v23
v_add_u32 v{fWT+2}, v{fWT+2}, v23
v_add_u32 v{fWT+2}, {WH[0]}, v{fWT+2}
v_add_u32 v{fWT}, {WH[0]}, v{fWT+1}
v_add_u32 v{fWT+1}, {WH[0] + WUP}, v{fWT+1}""".split("\n")
    A2 += [f"v_add_u32 v{fWT+3+t}, {WH[1]-WH[0]}, v{fWT+t}" for t in range(3)]
    A2 += f"""v_lshl_add_u32 v{fRSW}, v2, 13, v{M.vL16}
v_lshl_add_u32 v{fRSR}, v2, 11, v{M.vL16}
v_mul_u32_u24 v22, {HF_PITCH}, v2
v_add_u32 v{fHP}, v{M.vL16}, v22
v_and_b32 v23, 15, v0
v_add_u32 v22, 1, v23
v_and_b32 v21, 3, v22
v_mul_u32_u24 v{fCA}, {TC_STRIDE}, v21
v_and_b32 v22, 28, v22
v_bfe_u32 v21, v0, 4, 2
v_lshl_add_u32 v{fCB}, v23, 1, v21
v_lshlrev_b32 v{fCB}, 4, v{fCB}
v_lshlrev_b32 v21, 3, v21
v_sub_u32 v22, v22, v21
v_add_u32 v22, 8, v22
v_lshl_add_u32 v{fCA}, v22, 1, v{fCA}
s_lshr_b32 s{sT+2}, s{sW}, 1
s_and_b32 s{sT+3}, s{sW}, 1
s_mul_i32 s{sT+4}, s{sT+2}, {TC_CH}
s_lshl_b32 s{sT+5}, s{sT+3}, 8
s_add_u32 s{sT+4}, s{sT+4}, s{sT+5}
v_add_u32 v{fCA}, s{sT+4}, v{fCA}
s_mul_i32 s{sT+4}, s{sT+2}, {U_CH}
s_sub_u32 s{sT+4}, s{sT+4}, s{sT+5}
s_add_u32 s{sT+4}, s{sT+4}, {L_U}
v_add_u32 v{fCB}, s{sT+4}, v{fCB}
v_and_b32 v21, 7, v0
v_lshl_add_u32 v22, v2, 3, v21
v_lshlrev_b32 v{fFA}, 10, v22
s_lshr_b32 s{sT+2}, s{sR0}, 5
s_lshl_b32 s{sT+2}, s{sT+2}, 15
s_lshl_b32 s{sT+3}, s{sCT}, 7
s_add_u32 s{sT+2}, s{sT+2}, s{sT+3}
v_add_u32 v{fFA}, s{sT+2}, v{fFA}
v_lshlrev_b32 v{fFB}, 15, v2
v_lshl_add_u32 v{fFB}, v21, 10, v{fFB}
v_bfe_u32 v21, v0, 3, 1
v_lshl_add_u32 v{fFB}, v21, {13 if G.opt.get("one", 1) else 7}, v{fFB}
s_and_b32 s{sT+2}, s{sJ}, {16 if G.opt.get("one", 1) else 24}
s_lshl_b32 s{sT+2}, s{sT+2}, 10
s_and_b32 s{sT+3}, s{sX}, {7 if G.opt.get("one", 1) else 6}
s_lshl_b32 s{sT+3}, s{sT+3}, 7
s_add_u32 s{sT+2}, s{sT+2}, s{sT+3}
v_add_u32 v{fFB}, s{sT+2}, v{fFB}
v_bfe_u32 v21, v0, 4, 1
v_cmp_eq_u32 vcc, 1, v21
v_cndmask_b32 v{fFA}, v{fFB}, v{fFA}, vcc""".split("\n")
    WQ = w_round(0) + w_round(1)
    def take(n):
        o = []
        while WQ and (n > 0 or "\n" not in WQ[0]):
            if "\n" in WQ[0]: n -= 1
            o.append(WQ.pop(0))
        return o
    lt = G.opt.get("late", 2)
    if lt == 1: A += G.late; G.late = []
    if lt == 2: A2 += G.late; G.late = []
    if lt == 3: A += A2 + G.late; G.late = []; A2 = []
    if lt == 4: A += A2; A2 = G.late; G.late = []
    u = take(G.opt.get("n0", 0))
    for l in sprinkle(A, u, G.opt.get("n0e", 14), nA) + u: p(l)
    print("front: A", len(A), "A2", len(A2))
    G.stamp("issued")
    if G.stamps and "kvin" in G.skip:
        p(f"v_mov_b32 v21, v{VR+7}"); G.stamp("kvin")
    KU, VU, WU_, AC, KD = 108, 130, 146, 154, 172
    for t in range(4):
        s0, s1 = SK + t // 2, SK + 2 + t // 2
        if t % 2 == 0: p(f"v_lshlrev_b32 v{WU_+2*t}, 16, v{s0}\nv_lshlrev_b32 v{WU_+2*t+1}, 16, v{s1}")
        else: p(f"v_and_b32 v{WU_+2*t}, 0xffff0000, v{s0}\nv_and_b32 v{WU_+2*t+1}, 0xffff0000, v{s1}")
    for i in range(11): p(f"v_lshlrev_b32 v{KU+2*i}, 16, v{KR+i}\nv_and_b32 v{KU+2*i+1}, 0xffff0000, v{KR+i}")
    if ql == 1:
        for l in QL: p(l)
    if tw == 5:
        for l in TW: p(l)
    for s in range(8):
        p(f"v_pk_mul_f32 v[{AC+2*s}:{AC+2*s+1}], v[{KU+2*s}:{KU+2*s+1}], v[{WU_+6}:{WU_+7}]")
    for t in (2, 1, 0):
        for s in range(8):
            k = KU + 2 * (s + 3 - t)
            p(f"v_pk_fma_f32 v[{AC+2*s}:{AC+2*s+1}], v[{k}:{k+1}], v[{WU_+2*t}:{WU_+2*t+1}], v[{AC+2*s}:{AC+2*s+1}]")
    p(f"""s_waitcnt lgkmcnt(0)
s_mul_i32 s{sTAG}, s{sTAG}, 0x9E3779B1
s_add_u32 s{sTAG}, s{sTAG}, 0x7F4A7C15
s_max_u32 s{sTAG}, s{sTAG}, 1
v_mov_b32 v{KD+3}, s{sTAG}
v_mov_b32 v{KD+7}, s{sTAG}
v_mov_b32 v{KD+10}, s{sTAG}
v_mov_b32 v{KD+11}, s{sTAG}""")
    for pl in range(3):
        for s in range(3 * pl, min(8, 3 * pl + 3)):
            p(f"v_lshlrev_b32 v{VU+2*s}, 16, v{VR+s}\nv_and_b32 v{VU+2*s+1}, 0xffff0000, v{VR+s}")
        for s in range(3 * pl, min(8, 3 * pl + 3)):
            p(f"v_pk_mul_f32 v[{AC+2*s}:{AC+2*s+1}], v[{AC+2*s}:{AC+2*s+1}], v[{VU+2*s}:{VU+2*s+1}]")
        for s in range(3 * pl, min(8, 3 * pl + 3)):
            p(f"v_cvt_pk_bf16_f32 v{KD+4*pl+s-3*pl}, v{AC+2*s}, v{AC+2*s+1}")
        p(f"s_mov_b32 s{sT+2}, 0x{WS_KVG + 4096*pl:x}")
        p(f"buffer_store_dwordx4 v[{KD+4*pl}:{KD+4*pl+3}], v{fKVG}, {WS}, s{sT+2} offen {SC('g')}")
    if ql == 2:
        for l in QL: p(l)
    if HN: p(G.hint_st(0, KD + 3))
    if tw == 3:
        for l in TW: p(l)
    G.stamp("kvst")
    if G.stamps and "kvack" in G.skip:
        p("s_waitcnt vmcnt(0)"); G.stamp("kvack")
    E0, E1, Z = 140, 148, 156
    X = (72, 80); QS = 240
    B = [f"v_permlane16_swap_b32 v{QT8+4*P}, v{QT8+4*P+2}" for P in range(2)] + [f"v_permlane16_swap_b32 v{QT8+4*P+1}, v{QT8+4*P+3}" for P in range(2)]
    B += M.unpack(X[0], QT8, 8) + M.publish(X, 0)[:-1] + [f"v_mov_b32 v{QS}, v{M.SS}"]
    B += M.s1_addr(QS + 2, QS + 1) + M.s1_both(QS + 1, QS + 2)
    B += [f"s_and_b32 s{sD1}, s{sD0}, 0xffff0000", f"s_lshl_b32 s{sD0}, s{sD0}, 16"]
    G.bconv = []; G.blate = []
    if G.opt.get("bq", 0):
        i0 = B.index("v_lshrrev_b32 v21, 1, v2")
        G.blate = B[:i0 - 1]; B = B[i0:]
    if G.opt.get("bc", 0):
        i0 = B.index("v_lshrrev_b32 v21, 1, v2")
        R_, T_ = 210, 214
        bq = M.spaced(B[:4])
        for P in range(2):
            for k in range(4):
                q = QT8 + 4*P + k
                bq += [f"v_lshlrev_b32 v{T_}, 16, v{q}", f"v_and_b32 v{T_+1}, 0xffff0000, v{q}"]
                if k == 0: bq += [f"v_add_f32 v{R_+2*P}, v{T_}, v{T_+1}", f"v_mul_f32 v{R_+2*P+1}, v{T_}, v{T_}"]
                else: bq += [f"v_add_f32 v{R_+2*P}, v{R_+2*P}, v{T_}", f"v_fmac_f32 v{R_+2*P+1}, v{T_}, v{T_}", f"v_add_f32 v{R_+2*P}, v{R_+2*P}, v{T_+1}"]
                bq += [f"v_fmac_f32 v{R_+2*P+1}, v{T_+1}, v{T_+1}"]
        bq += M.spaced(M.fold(R_, False)) + M.st_base(sT + 2, WS_STQ) + [f"!buffer_store_dword v{R_}, v{M.vSTW}, {WS}, s{sT+2} offen {SC('g')} @es"]
        G.bconv = bq
        B = B[i0:]
    ES = []
    for qq in range(2):
        ES += [f"s_mov_b32 s{sT+2}, 0x{WS_YB + qq*8*YP:x}", f"buffer_store_dwordx4 v[{POI}:{POI+3}], v{fCO}, {WS}, s{sT+2} offen sc1 @es"]
    ES += M.xtile_base(sT + 2, WS_X1B) + [f"buffer_store_dwordx4 v[{POI}:{POI+3}], v{M.vFO}, {WS}, s{sT+2+P} offen {SC('c')} @es" for P in range(2)]
    ES += M.st_base(sT + 2, WS_STQ) + ([] if G.bconv else [f"buffer_store_dword v{POI if G.blate else QS}, v{M.vSTW}, {WS}, s{sT+2} offen {SC('g')} @es"]) + [
           f"s_add_u32 s{sT+2}, s{sT+2}, 0x{WS_STA[0]-WS_STQ:x}"] + [f"buffer_store_dword v{POI}, v{QS+1}, {WS}, s{sT+2} offen {SC('c')} @es"]
    if G.opt.get("fwarm", 0):
        ES += [f"s_lshl_b32 s{sT+2}, s{sR0}, 9", f"s_lshl_b32 s{sT+3}, s{sC}, 7", f"s_add_u32 s{sT+2}, s{sT+2}, s{sT+3}", f"s_add_u32 s{sT+2}, s{sT+2}, 0x{WS_HFL:x}",
               "v_and_b32 v21, 31, v0", "v_lshlrev_b32 v21, 2, v21", "v_bfe_u32 v22, v0, 5, 1", "v_lshl_add_u32 v21, v22, 11, v21", "v_mov_b32 v22, 0",
               f"buffer_store_dword v22, v21, {WS}, s{sT+2} offen sc1 @es"]
    G.es = ES
    G.flag = [f"s_lshl_b32 s{sT+2}, s{sW}, 15", f"s_lshl_b32 s{sT+3}, s2, 7", f"s_add_u32 s{sT+2}, s{sT+2}, s{sT+3}",
              f"s_add_u32 s{sT+2}, s{sT+2}, 0x{WS_FLAGS:x}", f"v_mov_b32 v{QS}, s{sTAG}", f"v_lshlrev_b32 v{QS+1}, 2, v1", "@wv es",
              f"s_mov_b32 exec_hi, 0\nbuffer_store_dword v{QS}, v{QS+1}, {WS}, s{sT+2} offen sc1\ns_mov_b32 exec_hi, -1"]
    C = [f"v_alignbit_b32 v{E0+k}, v{HA+k+1}, v{HA+k}, 16" for k in range(8)] + [f"v_alignbit_b32 v{E1+k}, v{HA+k+2}, v{HA+k+1}, 16" for k in range(8)]
    for c, r in enumerate((HA, E0, HB_, E1)):
        C += [f"ds_write_b128 v{fTW}, v[{r}:{r+3}] offset:{L_TC + c*TC_STRIDE + 32}", f"ds_write_b128 v{fTW}, v[{r+4}:{r+7}] offset:{L_TC + c*TC_STRIDE + 48}"]
    C += [f"v_mov_b32 v{Z+i}, 0" for i in (0, 1, 2, 3, 4, 5, 6, 8, 9, 10, 12, 13)]
    C += [f"v_lshlrev_b32 v{Z+7}, 16, v{HA}", f"v_mov_b32 v{Z+11}, v{HA}", f"v_lshlrev_b32 v{Z+14}, 16, v{HA}", f"v_mov_b32 v{Z+15}, v{E0}",
          f"ds_write_b128 v{fUZ}, v[{Z}:{Z+3}] offset:{L_U}", f"s_mov_b64 exec, s[{sM+2}:{sM+3}]"]
    for c in range(4):
        C += [f"ds_write_b128 v{fTW}, v[{Z}:{Z+3}] offset:{L_TC + c*TC_STRIDE}", f"ds_write_b128 v{fTW}, v[{Z+4*c}:{Z+4*c+3}] offset:{L_TC + c*TC_STRIDE + 16}"]
    C += ["s_mov_b64 exec, -1"]
    if G.opt.get("esearly"):
        for l in B + ES: p(l)
        B = []; G.es = []
    ie = C.index(f"s_mov_b64 exec, s[{sM+2}:{sM+3}]")
    u = take(G.opt.get("nc", 3))
    for l in sprinkle(C[:ie], u, 12) + u + C[ie:]: p(l)
    G.stamp("cdone")
    p(f"s_mul_i32 s{sT+13}, s{sP}, {KP}\ns_add_u32 s{sT+13}, s{sT+13}, 0x{WS_KVG:x}\ns_add_u32 s{sT+14}, s{sT+13}, 4096\ns_add_u32 s{sT+15}, s{sT+13}, 8192")
    ld = [f"buffer_load_dwordx4 v[{GR+4*pl}:{GR+4*pl+3}], v{fT16}, {WS}, s{sT+13+pl} offen sc1" for pl in range(3)]
    chk = [f"v_xor_b32 v21, s{sTAG}, v{GR+3}", f"v_xor_b32 v22, s{sTAG}, v{GR+7}", f"v_xor_b32 v23, s{sTAG}, v{GR+11}",
           f"v_or3_b32 v21, v21, v22, v23", f"v_cmp_ne_u32 vcc, 0, v21"]
    work = B + A2 + [f"s_mov_b32 s{sT+9}, 0x05040100", f"s_mov_b32 s{sT+10}, 0x07060302"]
    npre = G.opt.get("kpre", 200)
    pre, mid = work[:npre], work[npre:]
    while mid and mid[0].startswith(("s_cselect", "s_addc")): pre.append(mid.pop(0))
    if HN:
        ho = [32768*i for i in range(8)]
        p(f"s_lshl_b32 s14, s{sW}, 18\ns_lshl_b32 s13, s{sX}, 12\ns_add_u32 s14, s14, s13\ns_lshr_b32 s13, s{sJ}, 3\ns_lshl_b32 s13, s13, 10\ns_add_u32 s14, s14, s13")
        k0 = G.opt.get("hk", 60)
        pre = pre[:len(pre) - k0] + G.hint_ld(14, ho) + pre[len(pre) - k0:]
    u0 = take(G.opt.get("n1a", 4))
    for l in sprinkle(pre, u0, max(1, len(pre) // max(1, G.opt.get("n1a", 4)))) + u0: p(l)
    u = take(G.opt.get("n1", 2))
    G.stamp("pre")
    if HN:
        for l in G.hint_wait(14, ho, "hint"): p(l)
    G.stamp("att")
    if G.opt.get("esmid", 1):
        mid = mid + G.es; G.es = []
    mid = sprinkle(mid, u, max(1, len(mid) // max(1, G.opt.get("n1", 2)))) + u
    if tw == 4: mid = TW + mid
    if ql == 3: mid = QL + mid
    G.w_left = WQ
    G.poll(ld, [], chk, "kvg", mid)
    G.stamp("kvret")
    if tw == 6:
        for l in TW: p(l)
    if G.opt.get("esearly"):
        for l in G.flag: p(l)
        G.flag = []
    dpos = lambda s: GR + 4 * (s // 3) + s % 3
    UO = 124
    for ch in range(2):
        for jj in range(4):
            p(f"v_perm_b32 v{UO+4*ch+jj}, v{dpos(6-2*jj)}, v{dpos(7-2*jj)}, s{sT+9+ch}")
        p(f"ds_write_b128 v{fT16}, v[{UO+4*ch}:{UO+4*ch+3}] offset:{L_U + ch*U_CH + 512}")
    p("s_waitcnt lgkmcnt(0)\ns_barrier")
    G.esv = G.opt.get("esv", 2)
    G.stamp("kvg")

def conv_order(it):
    if it == 3 or ASC[0]: return [(q, r) for q in range(8) for r in range(q + 1)]
    left = {q: list(range(q + 1)) for q in range(8)}
    out = []
    while any(left.values()):
        recent = [q for (q, _) in out[-2:]]
        n = 36 - len(out)
        cand = [q for q in left if left[q] and q not in recent] or [q for q in left if left[q] and q != out[-1][0]] or [q for q in left if left[q]]
        urgent = [q for q in cand if 3*len(left[q]) - 2 >= n]
        if urgent: q = max(urgent, key=lambda q: len(left[q]))
        elif it == 0: q = min(cand, key=lambda q: (min(max(r, q - r) for r in left[q]), -len(left[q])))
        elif it == 3: q = min(cand, key=lambda q: len(left[q])) if len(out) % 3 == 2 else max(cand, key=lambda q: len(left[q]))
        else: q = max(cand, key=lambda q: len(left[q]))
        r = min(left[q], key=lambda r: max(r, q - r))
        left[q].remove(r); out.append((q, r))
    return out

def conv(G):
    import gen_mlp as M
    p = G.p
    ACC = 48
    FA = (80, 144); FB = (112, 176)
    FLG = 208
    def loads(it):
        eo = 2 * it + 1
        L = []
        for r in range(8):
            L.append(f"ds_read_b128 v[{FB[it%2]+4*r}:{FB[it%2]+4*r+3}], v{fCB} offset:{512*r - 32*eo + 512}")
            L.append(f"ds_read_b64 v[{FA[it%2]+4*r}:{FA[it%2]+4*r+1}], v{fCA} offset:{512*r + 32*eo}")
            L.append(f"ds_read_b64 v[{FA[it%2]+4*r+2}:{FA[it%2]+4*r+3}], v{fCA} offset:{512*r + 32*eo + 8}")
        return L
    for l in loads(0)[:12]: p(l)
    G.fl_ld = [f"!buffer_load_dword v{FLG}, v{fFA}, {WS}, s{sT+10} offen sc1"]
    G.fl_chk = [f"v_cmp_ne_u32 vcc, s{sTAG}, v{FLG}"]
    pois = [f"s_mul_i32 s{sT+8}, s{sR0}, {HF_PITCH}", f"s_mul_i32 s{sT+12}, s{sC}, 3072",
            f"s_add_u32 s{sT+8}, s{sT+8}, s{sT+12}", f"s_add_u32 s{sT+8}, s{sT+8}, 0x{WS_HF[0]:x}",
            f"s_cmp_eq_u32 s{sC}, 15\ns_cselect_b32 s{sT+8}, 0x{WS_SIZE:x}, s{sT+8}\ns_nop 0"]
    for h in range(2):
        pois += [f"buffer_store_dwordx4 v[{POI}:{POI+3}], v{fHP}, {WS}, s{sT+8} offen offset:{1024*i} {SC('cp0')} @hp" for i in range(3)]
        pois += [f"s_add_u32 s{sT+8}, s{sT+8}, {4*HF_PITCH}"]
    W = Weaver(vm_space=G.opt.get("vsc", 5))
    sw = [(0, t) for t in G.w_left]
    sq = []; st = []
    for it in range(4):
        order = conv_order(it); seen = set(); mf = []
        for (q, r) in order:
            mf.append(mfma(ACC + 4*q, vr(FA[it%2] + 4*r, 4), vr(FB[it%2] + 4*(q - r), 4), "0" if (it == 0 and q not in seen) else None))
            seen.add(q)
        s0 = []
        if it == 0: s0 += [(i // 2, t) for i, t in enumerate(loads(0)[12:])]
        if it < 3: s0 += [(8 + i, t) for i, t in enumerate(loads(it + 1))]
        if it == 0:
            n = 0
            for t in G.es:
                if t.startswith("buffer"): sq.append((2 + G.esv*n, "!" + t)); n += 1
                else: sq.append((0, t))
        if it == 0: sq += [(G.opt.get("bcg", 10), t) for t in G.bconv]
        flg = G.opt.get("flg", 90 if G.bconv else 20)
        if it == flg // 36: sq += [(flg % 36, t) for t in G.flag]
        if it == 3 and G.opt.get("wpf", 0) == 1: sq += [(10, t) for t in wd_l2(G)]
        if it == 3 and G.opt.get("wsl", 2) == 1: sq += [(10, t) for t in wd_slow(G)]
        hpa = G.opt.get("hpa", 80)
        if it == hpa // 36 and not M.HFL(G): sq += [(hpa % 36, t) for t in pois]
        if it == 3: sq += [(8, f"s_mov_b32 s{sT+10}, 0x{WS_FLAGS:x}")] + ([(G.opt.get("fll", 40), t) for t in G.fl_ld] if G.opt.get("fll", 40) < 36 else [])
        early = G.opt.get("t0e", 1)
        if it == 2 and early:
            x2 = G.opt.get("x2", 2)
            out = W.run(mf[:x2], [s0, st, sq, sw])
            while any("@w0" in t for (_, t) in sw): out.append(sw.pop(0)[1]); print("forced w0")
            out += ["@wv w0", "s_barrier"]
            st += [(i, t) for i, t in enumerate(w_tr(0))]
            out += W.run(mf[x2:], [s0, st, sq, sw], flush=[0, 1])
        elif it == 3:
            out = W.run(mf[:1], [s0, st, sq, sw])
            while any("@w0" in t for (_, t) in sw): out.append(sw.pop(0)[1]); print("forced w0")
            out += ["@wv w0", "s_waitcnt lgkmcnt(0)", "s_barrier"]
            sT1 = [] if early else [(i, t) for i, t in enumerate(w_tr(0))]
            if early: sw += [(0, t) for t in w_round(2)]
            for g, q in sorted((max(i for i, (qq, _) in enumerate(order) if qq == q), q) for q in range(8)):
                st.append((g + 7, f"ds_write_b128 v{fRSW}, v[{ACC+4*q}:{ACC+4*q+3}] offset:{L_RS + 1024*q}"))
            out += W.run(mf[1:], [st, sT1, sq, sw], flush=[1, 0, 2])
        else:
            out = W.run(mf, [s0, st, sq, sw], flush=[0])
        if G.opt.get("cnot"): out = [l for l in out if "_tr_b16" not in l]
        if G.opt.get("cnob"): out = [l for l in out if l != "s_barrier"]
        if G.opt.get("cnow"): out = [l for l in out if not l.startswith("ds_write")]
        if G.opt.get("cnoa"): out = [l for l in out if not l.startswith("ds_read_b64 ")]
        if G.opt.get("cnod"): out = [l for l in out if not l.startswith("ds_read_b128")]
        for l in out: p(l)
        G.stamp(f"it{it}")
    while any("@w1" in t for (_, t) in sw): p(sw.pop(0)[1]); print("forced w1")
    rest = [t for (_, t) in sw] if G.opt.get("t0e", 1) else w_round(2)
    print("conv: W units left", sum("\n" in t for t in rest))
    G.stamp("convloop")
    p("@wv w1\ns_waitcnt lgkmcnt(0)\ns_barrier")
    T = 80; KV = 112; Y = 136; YO = 160; TM = 168
    E = []
    for qq in range(2):
        for sw_ in range(4):
            E.append(f"ds_read_b128 v[{T+16*qq+4*sw_}:{T+16*qq+4*sw_+3}], v{fRSR} offset:{L_RS + 8192*sw_ + 1024*qq}")
        for ch in range(2):
            E.append(f"ds_read_b64 v[{KV+4*qq+2*ch}:{KV+4*qq+2*ch+1}], v{fKVR} offset:{L_U + ch*U_CH + 512 + 512*qq}")
    for qq in range(2):
        for ch in range(2):
            a0 = T + 16*qq + 8*ch; y = Y + 8*qq + 4*ch; kv = KV + 4*qq + 2*ch; o = YO + 4*qq + 2*ch
            E += [f"v_pk_add_f32 v[{y+r}:{y+r+1}], v[{a0+r}:{a0+r+1}], v[{a0+4+r}:{a0+5+r}]" for r in (0, 2)]
            E += [f"v_and_b32 v{TM}, 0xffff0000, v{kv+1}", f"v_lshlrev_b32 v{TM+1}, 16, v{kv+1}", f"v_and_b32 v{TM+2}, 0xffff0000, v{kv}", f"v_lshlrev_b32 v{TM+3}, 16, v{kv}"]
            E += [f"v_pk_fma_f32 v[{y+r}:{y+r+1}], v[{TM+r}:{TM+r+1}], s[{sD0}:{sD1}], v[{y+r}:{y+r+1}] op_sel:[0,{ch},0] op_sel_hi:[1,{ch},1]" for r in (0, 2)]
            E += [f"v_cvt_pk_bf16_f32 v{o}, v{y}, v{y+1}", f"v_cvt_pk_bf16_f32 v{o+1}, v{y+2}, v{y+3}"]
        o = YO + 4*qq
        E += [f"s_mov_b32 s{sT+2}, 0x{WS_YB + qq*8*YP:x}", f"v_permlane16_swap_b32 v{o}, v{o+2}", f"v_permlane16_swap_b32 v{o+1}, v{o+3}",
              f"buffer_store_dwordx4 v[{o}:{o+3}], v{fCO}, {WS}, s{sT+2} offen sc1"]
    for l in E: p(l)
    if G.opt.get("hint", 0): p(f"v_mov_b32 v{M.vTG}, s{sTAG}\n" + G.hint_st(1, M.vTG))
    G.stamp("yst")
    if G.stamps and "yack" in G.skip:
        p("s_waitcnt vmcnt(0)"); G.stamp("yack")
    G.w_rest = rest
    G.pois = pois

def wd_l2(G):
    return [f"s_mul_i32 s{sT+1}, s{sJ}, 44032", "v_lshlrev_b32 v242, 7, v0", f"buffer_load_dword a254, v242, {srd(SRD_WD)}, s{sT+1} offen",
            "v_min_u32 v242, 87, v0", "v_lshlrev_b32 v242, 7, v242", f"s_add_u32 s{sT+1}, s{sT+1}, 32768", f"buffer_load_dword a255, v242, {srd(SRD_WD)}, s{sT+1} offen"]

def wd_slow(G):
    return [f"s_lshr_b32 s{sT+1}, s{SRD_WD}, 7", f"s_sub_u32 s{sT+1}, 3, s{sT+1}", f"s_and_b32 s{sT+1}, s{sT+1}, 7", f"s_lshl_b32 s{sT+1}, s{sT+1}, 7",
            f"s_mul_i32 s13, s{sJ}, 44032", f"s_add_u32 s{sT+1}, s{sT+1}, s13", "v_min_u32 v242, 10, v1", "v_mad_u32_u24 v242, v2, 11, v242",
            "v_min_u32 v242, 42, v242", "v_lshlrev_b32 v242, 10, v242", f"buffer_load_dword a254, v242, {srd(SRD_WD)}, s{sT+1} offen"]

def handover(G):
    import gen_mlp as M
    p = G.p
    rest = G.w_rest
    X, TT, PT, YU, VY = (72, 80), (88, 96), 104, 144, 160
    if G.opt.get("fll", 40) >= 36:
        for l in G.fl_ld: p(l)
    if G.blate:
        for l in M.st_base(sT + 11, WS_STQ) + G.blate + [f"buffer_store_dword v{M.SS}, v{M.vSTW}, {WS}, s{sT+11} offen {SC('g')}"]: p(l)
    for l in w_tr(1): p(l)
    ydma = [f"s_add_u32 m0, s{sT+9}, {M.L_Y}\nbuffer_load_dwordx4 v{M.vL16}, {WS}, s{sT+4} offen offset:{1024*P} sc1 lds @yr" for P in range(2)]
    H = f"""s_lshr_b32 s{sT+4}, s{sR0}, 1
s_add_u32 s{sT+4}, s{sT+4}, s{sHB}
s_and_b32 s{sT+5}, s{sW}, 2
s_add_u32 s{sT+4}, s{sT+4}, s{sT+5}
s_mul_i32 s{sT+4}, s{sT+4}, {YP}
s_and_b32 s{sT+5}, s{sW}, 1
s_lshl_b32 s{sT+5}, s{sT+5}, 11
s_add_u32 s{sT+4}, s{sT+4}, s{sT+5}
s_lshl_b32 s{sT+5}, s{sCT}, 12
s_add_u32 s{sT+4}, s{sT+4}, s{sT+5}
s_add_u32 s{sT+4}, s{sT+4}, 0x{WS_YB:x}
s_lshl_b32 s{sT+9}, s{sW}, 11""".split("\n") + M.layer_scalars(0) + ([] if G.blate else M.unpack(X[0], QT8, 8))
    H += f"""v_mov_b32 v{M.vTG}, s{sTAG}
s_cmp_eq_u32 s{sW}, 0
s_cselect_b32 s{M.sLM}, -1, 0
s_mov_b32 s{M.sLM+1}, 0
v_bfe_u32 v21, v0, 2, 4
v_lshlrev_b32 v21, 6, v21
v_and_b32 v22, 3, v0
v_lshl_add_u32 v21, v22, 3, v21
v_lshl_add_u32 v21, v2, 11, v21
v_lshl_add_u32 v22, v2, 11, v{M.vL16}""".split("\n")
    H = G.late + M.s1_addr() + [f"v_mov_b32 v{ONE+i}, 0x3f803f80" for i in range(4)] + M.xtile_base(sT + 2, WS_X1B) + M.st_base(sT + 11, WS_STQ) + H
    def take(n):
        o = []
        while rest and (n > 0 or "\n" not in rest[0]):
            if "\n" in rest[0]: n -= 1
            o.append(rest.pop(0))
        return o
    u = take(G.opt.get("ny", 4))
    for l in sprinkle(H, u, G.opt.get("he", 14), 2) + u: p(l)
    HN = G.opt.get("hint", 0)
    if HN:
        ho = [32768*i + 128 for i in range(16)]
        p(f"s_and_b32 s14, s{sW}, 1\ns_lshl_b32 s14, s14, 19\ns_lshl_b32 s13, s{sCT}, 12\ns_add_u32 s14, s14, s13\ns_lshr_b32 s13, s{sX}, 1\ns_lshl_b32 s13, s13, 10\ns_add_u32 s14, s14, s13")
        p("s_waitcnt lgkmcnt(0)")
        for l in G.hint_ld(14, ho): p(l)
    W = Weaver(vm_space=G.opt.get("vsy", 5))
    for l in W.run(w_cs(0), [[(0, t) for t in take(G.opt.get("ny2", 2))]], flush=[0]): p(l)
    lf, lb = G.add_fix(G.fl_ld, G.fl_chk, "st")
    for l in G.fl_chk: p(l)
    p(f"s_cbranch_vccnz {lf}\n{lb}:")
    G.stamp("flok")
    p("s_waitcnt lgkmcnt(0)\ns_barrier")
    if HN:
        for l in G.hint_wait(14, ho, "hint"): p(l)
    G.stamp("ydma")
    rest += w_round(3)
    mid = M.st_ld(PT, M.vSTR, sT + 11) + W.run(w_cs(1), [[(0, t) for t in take(G.opt.get("nr", 4))]], flush=[0])
    wpf = G.opt.get("wpf", 0)
    if wpf == 2: mid += wd_l2(G)
    if G.opt.get("wsl", 2) == 2: mid += wd_slow(G)
    if G.blate: mid += G.poll_end_lines(None, M.st_ld(PT, M.vSTR, sT + 11), [], M.st_ck(PT, 23), "st")
    mid += M.ln_coef(PT) + M.ln_norm(X[0], TT[0], 0) + M.ln_norm(X[1], TT[1], 1)
    ytr = [f"ds_read_b64_tr_b16 v[{M.vY+4*P+2*t}:{M.vY+4*P+2*t+1}], v21 offset:{M.L_Y + 32*P + 1024*t}" for P in range(2) for t in range(2)]
    yrd = [f"ds_read_b128 v[{VY+4*P}:{VY+4*P+3}], v22 offset:{M.L_Y + 1024*P}" for P in range(2)]
    yck = [f"v_max_u32 v23, v{VY+3}, v{VY+7}", "v_cmp_eq_u32 vcc, -1, v23"]
    ytag = G.poll(ydma, yrd + ytr, yck, "y", mid)
    G.stamp("yret")
    for P in range(2):
        for l in M.unpack(YU + 8*P, M.vY + 4*P, 4) + M.gate_out(X[P], TT[P], YU + 8*P, P, sT + 2 + P): p(l)
    if HN: p(G.hint_st(2, M.vTG))
    G.stamp("x1st")
    if G.stamps and "xack" in G.skip:
        p("s_waitcnt vmcnt(0)"); G.stamp("xack")
    pub = M.st_base(sT + 2, WS_STA[0])
    for P in range(2): pub += M.psum1(X[P], 128 + 2*P, 132) + M.fold1(128 + 2*P) + M.st1_st(128 + 2*P, sT + 2, P)
    for l in sprinkle(pub, rest, G.opt.get("pe", 4)) + rest: p(l)
    t2, t3 = w_tr(2), w_tr(3)
    if wpf == 4:
        for l in wd_l2(G): p(l)
    p("@wv w2" + ("," + ytag if G.nf[0] > 2 else "") + "\ns_waitcnt lgkmcnt(0)\ns_barrier")
    a_ = t2[:12] + weave(w_cs(2), [[(i // 2, t) for i, t in enumerate(t2[12:])]])
    b_ = ["@wv w3", "s_barrier"] + t3[:12] + weave(w_cs(3), [[(i // 2, t) for i, t in enumerate(t3[12:])]])
    xat = G.opt.get("xat", 2)
    if HN:
        for l in M.x_hint_addr() + a_ + ["s_waitcnt lgkmcnt(0)"] + G.hint_ld(14, M.x_hint_offs(2)): p(l)
        if xat == 2:
            for l in b_: p(l)
            b_ = []
        G.stamp("xpre")
        for l in G.hint_wait(14, M.x_hint_offs(2), "hint"): p(l)
        G.stamp("xdma")
        return b_
    if xat == 0: return a_ + b_
    for l in a_: p(l)
    if xat == 2:
        for l in b_: p(l)
        b_ = []
    G.stamp("xdma")
    return b_ + (wd_l2(G) if wpf == 3 else []) + (wd_slow(G) if G.opt.get("wsl", 2) == 3 else [])
```

```python
import sys
sys.path.insert(0, "tools")
from pg import weave, Weaver
import pg
from gen import *

WS = srd(SRD_WS)
vMS, vL16, vVF, vSTG, vSG, vFO = 3, 4, 5, 6, 7, 8
vWT = 9
vWG = 24
vH2, vH1, vHA, vHB = 28, 29, 30, 31
vCS = 32
vSTW, vSTR, vOA, vMR = 44, 45, 46, 47
vXR = 48
vY = 56
vR2 = 64
vTG = 71
vFL, vFA = 221, 222
sLM = 16
sFL = 22
RING = 72
def ACC(g): return 72 + 12 * g if g < 6 else 160 + 12 * (g - 6)
vVER = 144
XF = 184
vTM = 208
vM = 212
vPOI = 176
vVA = 220
vMT = 223
AP = (224, 160)
WF = 192
sXB, sHF, sSA, sWD, sM0X, sOB = 8, 9, 10, 11, 12, 63
sHL = 82
sXO, sWO, sHS, sHC = sT + 12, sT + 13, sT + 14, sT + 15
WID = {4: 4, 5: 5, 6: 6, 7: 7, 8: 8, 9: 0, 10: 1}
L_Y = 43008

def dma_unit(m0off, ins): return f"s_add_u32 m0, s{sM0X}, {m0off}\n{ins}"

def x_dma(g, L):
    o = [f"s_add_u32 s{sXO}, s{sXB}, {g*XP}"]
    for i in range(4): o.append(dma_unit((g % 4)*16384, f"buffer_load_dwordx4 v{vVF}, {WS}, s{sXO} offen offset:{1024*i} sc1 lds @x{L}_{g}"))
    return o

def x_verify(G, g, L, also=()):
    rd = [f"ds_read_b128 v[{vVER+4*i}:{vVER+4*i+3}], v{vVF} offset:{(g % 4)*16384 + 1024*i}" for i in range(4)]
    ck = [f"v_max3_u32 v{vVA}, v{vVER+3}, v{vVER+7}, v{vVER+11}", f"v_max_u32 v{vVA}, v{vVA}, v{vVER+15}", f"v_cmp_eq_u32 vcc, -1, v{vVA}"]
    rl = []
    for gg in (g,) + tuple(also):
        rl += [l.split(" @")[0].replace(f"s{sXO},", "s13,").replace(f"s{sXO} ", "s13 ") for l in x_dma(gg, L)]
    lf, lb = G.add_fix(["s_mov_b32 s14, m0"] + rl + ["s_waitcnt vmcnt(0)", "s_mov_b32 m0, s14"] + rd, ck, "x0")
    return [f"@wv x{L}_{g}"] + rd, ck + [f"s_cbranch_vccnz {lf}", lb + ":"]

def wd_dma(k, slot, so=sWO):
    o = [f"s_add_u32 s{so}, s{sWD}, {k*32768}"]
    for b in range(4): o.append(dma_unit(slot*16384, f"buffer_load_dwordx4 v{vWG+b}, {srd(SRD_WD)}, s{so} offen offset:{1024*b} lds @wd{k}"))
    return o

def wd_tr(slot, dst, agpr, tag=""):
    o = []
    for cs in range(4):
        for t in range(2):
            a = slot*16384 + t*2048
            d = (ar if agpr else vr)(dst + 4*cs + 2*t, 2)
            o.append(f"ds_read_b64_tr_b16 {d}, v{vWT + 4*(a // 65536) + cs} offset:{a % 65536}" + (f" @{tag}" if tag else ""))
    return o

def x_rd(n, L):
    g, kk = n // 16, n % 16
    return [f"ds_read_b128 {vr(XF + 4*(n % 6), 4)}, v{vL16} offset:{(g % 4)*16384 + kk*1024}"]

def setup_early():
    out = []
    def p(t): out.extend(t.split("\n"))
    p(f"v_and_b32 v21, 15, v0\nv_lshlrev_b32 v{vSG}, 3, v21")
    p("v_and_b32 v21, 15, v0\nv_lshlrev_b32 v21, 4, v21")
    p(f"""v_lshrrev_b32 v22, 1, v2
v_lshl_add_u32 v21, v22, 12, v21
v_bfe_u32 v23, v0, 4, 2
v_lshl_add_u32 v{vSTR}, v23, 10, v21
v_lshl_add_u32 v21, v23, 2, v21
v_and_b32 v23, 1, v2
v_lshl_add_u32 v21, v23, 8, v21
s_lshl_b32 s{sT+2}, s{sCT}, 9
v_add_u32 v{vSTW}, s{sT+2}, v21""")
    p(f"""v_mul_u32_u24 v21, {2*XP}, v22
v_add_u32 v21, v21, v{vL16}
v_lshl_add_u32 v21, v23, 10, v21
s_lshl_b32 s{sT+2}, s{sCT}, 11
v_add_u32 v{vFO}, s{sT+2}, v21""")
    return out

def setup_late():
    out = []
    def p(t): out.extend(t.split("\n"))
    p(f"v_lshlrev_b32 v{vVF}, 4, v1\nv_lshl_add_u32 v{vVF}, v2, 12, v{vVF}")
    p(f"""v_bfe_u32 v21, v0, 5, 1
v_bfe_u32 v22, v0, 3, 2
v_lshl_add_u32 v21, v21, 3, v22
v_lshlrev_b32 v21, 10, v21
v_bfe_u32 v22, v0, 1, 2
v_bfe_u32 v23, v0, 4, 2
v_xor_b32 v22, v22, v23
v_lshl_add_u32 v21, v22, 5, v21
v_and_b32 v22, 1, v0
v_lshl_add_u32 v21, v22, 4, v21
s_lshl_b32 s{sT+2}, s{sCT}, 7
v_add_u32 v{vWG}, s{sT+2}, v21
v_add_u32 v{vWG+1}, 15360, v{vWG}
v_add_u32 v{vWG+2}, 2048, v{vWG}
v_add_u32 v{vWG+3}, 17408, v{vWG}
s_mul_i32 s{sWD}, s{sW}, {11*32768}""")
    p(f"""v_bfe_u32 v21, v0, 2, 3
v_lshlrev_b32 v22, 7, v21
v_bfe_u32 v23, v0, 5, 1
v_lshl_add_u32 v22, v23, 10, v22
v_and_b32 v23, 3, v0
v_lshl_add_u32 v22, v23, 3, v22
v_lshl_add_u32 v22, v2, 12, v22
v_lshrrev_b32 v21, 1, v21
v_and_b32 v23, 1, v2
v_lshlrev_b32 v23, 1, v23
v_xor_b32 v21, v21, v23""")
    for cs in range(4):
        p(f"v_xor_b32 v23, {cs}, v21\nv_lshl_add_u32 v{vWT+cs}, v23, 5, v22\nv_add_u32 v{vWT+4+cs}, 0x10000, v{vWT+cs}\nv_add_u32 v{vWT+8+cs}, 0x20000, v{vWT+cs}")
    p(f"""v_and_b32 v21, 15, v0
v_lshlrev_b32 v{vSG}, 3, v21
v_lshlrev_b32 v21, 4, v21
v_bfe_u32 v22, v0, 4, 1
v_bfe_u32 v23, v0, 5, 1
v_lshl_add_u32 v{vH2}, v22, 3, v21
v_lshl_add_u32 v{vH2}, v23, 8, v{vH2}
v_lshl_add_u32 v{vH2}, v2, 9, v{vH2}
v_lshl_add_u32 v{vH1}, v22, 3, v21
v_lshl_add_u32 v{vH1}, v23, 2, v{vH1}
v_lshl_add_u32 v{vH1}, v2, 8, v{vH1}
v_add_u32 v{vH1}, 2048, v{vH1}""")
    p("v_lshrrev_b32 v22, 1, v2\nv_and_b32 v23, 1, v2")
    p(f"""v_and_b32 v21, 15, v0
v_lshlrev_b32 v{vSTG}, 3, v21
v_bfe_u32 v{vMS}, v0, 4, 2
v_lshl_add_u32 v{vSTG}, v{vMS}, 9, v{vSTG}
v_lshl_add_u32 v{vSTG}, v2, 12, v{vSTG}
v_lshlrev_b32 v21, 6, v21
v_add_u32 v21, {L_MISC}, v21
v_lshl_add_u32 v{vMR}, v22, 3, v21
s_lshl_b32 s{sT+2}, s{sHB}, 2
v_add_u32 v{vMR}, s{sT+2}, v{vMR}
v_lshl_add_u32 v21, v22, 2, v21
v_lshl_add_u32 v21, v23, 3, v21
v_bfe_u32 v{vMS}, v0, 5, 1
v_lshl_add_u32 v{vMS}, v{vMS}, 5, v21""")
    p(f"""v_mul_u32_u24 v21, 11264, v2
v_add_u32 v21, v21, v{vL16}
v_mul_u32_u24 v{vHA}, {2*HF_PITCH}, v22
v_add_u32 v{vHA}, v21, v{vHA}
v_xor_b32 v{vHB}, 1, v22
v_mul_u32_u24 v{vHB}, {2*HF_PITCH}, v{vHB}
v_add_u32 v{vHB}, v21, v{vHB}""")
    return out

def early_lines():
    return f"""v_lshlrev_b32 v{vL16}, 4, v1
v_and_b32 v21, 15, v0
v_lshrrev_b32 v22, 1, v2
v_lshl_add_u32 v21, v22, 5, v21
v_lshlrev_b32 v21, 10, v21
v_bfe_u32 v22, v0, 4, 1
v_lshl_add_u32 v21, v22, 5, v21
v_bfe_u32 v22, v0, 5, 1
v_lshl_add_u32 v21, v22, 4, v21
v_and_b32 v22, 1, v2
v_lshl_add_u32 v{vOA}, v22, 6, v21
s_add_u32 s{sOB}, s{sR0}, s{sHB}
s_lshl_b32 s{sOB}, s{sOB}, 14
s_lshl_b32 s{sT+3}, s{sCT}, 7
s_add_u32 s{sOB}, s{sOB}, s{sT+3}""".split("\n")

def layer_scalars(L):
    xb = WS_X1B if L == 0 else WS_X3B
    return f"""s_mul_i32 s{sXB}, s{sR0}, {XP}
s_add_u32 s{sXB}, s{sXB}, 0x{xb:x}
s_mul_i32 s{sHF}, s{sR0}, {HF_PITCH}
s_add_u32 s{sHF}, s{sHF}, 0x{WS_HF[L]:x}
s_lshl_b32 s{sSA}, s{sR0}, 11
s_add_u32 s{sSA}, s{sSA}, 0x{WS_STA[L]:x}
s_lshl_b32 s{sM0X}, s{sW}, 12
s_lshl_b32 s{sFL}, s{sR0}, 9
s_add_u32 s{sFL}, s{sFL}, 0x{WS_HFL:x}
s_lshl_b32 s{sFL+1}, s{sC}, 7
s_add_u32 s{sFL+1}, s{sFL+1}, s{sFL}
s_mul_i32 s{sHC}, s{sC}, 3072
s_add_u32 s{sHC}, s{sHC}, s{sHF}
s_cmp_eq_u32 s{sC}, 15
s_cselect_b32 s{sHC}, 0x{WS_SIZE:x}, s{sHC}""".split("\n")

def st_base(r, region):
    return [f"s_lshl_b32 s{r}, s{sR0}, 11", f"s_lshl_b32 s13, s{sHB}, 13", f"s_add_u32 s{r}, s{r}, s13", f"s_add_u32 s{r}, s{r}, 0x{region:x}"]

def xtile_base(r, region):
    return [f"s_add_u32 s{r}, s{sR0}, s{sHB}", f"s_mul_i32 s{r}, s{r}, {XP}", f"s_add_u32 s{r}, s{r}, 0x{region:x}", f"s_add_u32 s{r+1}, s{r}, {4*XP}"]

def s1_addr(vS1W=70, vS1R=69):
    return [f"v_lshrrev_b32 v21, 1, v2", f"v_lshl_add_u32 v21, v21, 12, v{vSG}", "v_bfe_u32 v23, v0, 4, 2", f"v_lshl_add_u32 v{vS1R}, v23, 9, v21",
            "v_lshrrev_b32 v23, 1, v23", "v_lshl_add_u32 v21, v23, 2, v21", "v_and_b32 v23, 1, v2", "v_lshl_add_u32 v21, v23, 7, v21",
            f"s_lshl_b32 s13, s{sCT}, 8", f"v_add_u32 v{vS1W}, s13, v21"]

def s1_both(r, w=70): return [f"v_bfe_u32 v{r}, v0, 4, 1", f"v_lshl_add_u32 v{r}, v{r}, 11, v{w}"]

def poison_l2():
    o = [f"v_mov_b32 v{vPOI+i}, -1" for i in range(4)]
    o += xtile_base(sT + 2, WS_X3B) + [f"buffer_store_dwordx4 v[{vPOI}:{vPOI+3}], v{vFO}, {WS}, s{sT+2+P} offen {SC('c')} @poi" for P in range(2)]
    o += s1_both(21)
    o += st_base(sT + 2, WS_STX) + [f"buffer_store_dword v{vPOI}, v21, {WS}, s{sT+2} offen {SC('g')} @poi",
          f"s_add_u32 s{sT+2}, s{sT+2}, 0x{WS_STA[1]-WS_STX:x}", f"buffer_store_dword v{vPOI}, v21, {WS}, s{sT+2} offen {SC('c')} @poi"]
    return o

SS = 128
def psum(x, P):
    return [f"v_pk_add_f32 v[132:133], v[{x}:{x+1}], v[{x+2}:{x+3}]", f"v_pk_add_f32 v[134:135], v[{x+4}:{x+5}], v[{x+6}:{x+7}]",
            f"v_pk_mul_f32 v[136:137], v[{x}:{x+1}], v[{x}:{x+1}]", f"v_pk_mul_f32 v[138:139], v[{x+2}:{x+3}], v[{x+2}:{x+3}]",
            f"v_pk_add_f32 v[132:133], v[132:133], v[134:135]",
            f"v_pk_fma_f32 v[136:137], v[{x+4}:{x+5}], v[{x+4}:{x+5}], v[136:137]", f"v_pk_fma_f32 v[138:139], v[{x+6}:{x+7}], v[{x+6}:{x+7}], v[138:139]",
            f"v_add_f32 v{SS+2*P}, v132, v133", "v_pk_add_f32 v[136:137], v[136:137], v[138:139]", f"v_add_f32 v{SS+2*P+1}, v136, v137"]
def fold(r, pk=True):
    add = [f"v_pk_add_f32 v[{r}:{r+1}], v[{r}:{r+1}], v[{r+2}:{r+3}]"] if pk else [f"v_add_f32 v{r}, v{r}, v{r+2}", f"v_add_f32 v{r+1}, v{r+1}, v{r+3}"]
    return [f"v_permlane32_swap_b32 v{r}, v{r+2}", f"v_permlane32_swap_b32 v{r+1}, v{r+3}"] + add + \
           [f"v_permlane16_swap_b32 v{r}, v{r+1}", f"v_add_f32 v{r}, v{r}, v{r+1}"]
def st_ld(PT, va, so): return [f"buffer_load_dwordx4 v[{PT+4*i}:{PT+4*i+3}], v{va}, {WS}, s{so} offen offset:{256*i} sc1" for i in range(4)]
def st_ck(PT, acc):
    return [f"v_max3_u32 v{acc}, v{PT}, v{PT+1}, v{PT+2}"] + [f"v_max3_u32 v{acc}, v{acc}, v{PT+k}, v{PT+k+1}" for k in range(3, 15, 2)] + \
           [f"v_max_u32 v{acc}, v{acc}, v{PT+15}", f"v_cmp_eq_u32 vcc, -1, v{acc}"]
def ln_coef(PT):
    o = []
    for h in range(2):
        o += [f"v_pk_add_f32 v[{SS+2*h}:{SS+2*h+1}], v[{PT+2*h}:{PT+2*h+1}], v[{PT+4+2*h}:{PT+4+2*h+1}]",
              f"v_pk_add_f32 v[{132+2*h}:{133+2*h}], v[{PT+8+2*h}:{PT+8+2*h+1}], v[{PT+12+2*h}:{PT+12+2*h+1}]"]
    o += [f"v_pk_add_f32 v[{SS+2*h}:{SS+2*h+1}], v[{SS+2*h}:{SS+2*h+1}], v[{132+2*h}:{133+2*h}]" for h in range(2)]
    o += fold(SS)
    o += f"""v_mul_f32 v{SS}, 0x3b000000, v{SS}
v_mov_b32 v{SS+2}, v{SS}
v_permlane16_swap_b32 v{SS}, v{SS+2}
v_mov_b32 v{SS+1}, v{SS}
v_mov_b32 v{SS+3}, v{SS+2}
v_permlane32_swap_b32 v{SS}, v{SS+1}
v_permlane32_swap_b32 v{SS+2}, v{SS+3}
v_pk_fma_f32 v[{SS+2}:{SS+3}], v[{SS}:{SS+1}], v[{SS}:{SS+1}], v[{SS+2}:{SS+3}] neg_lo:[1,0,0] neg_hi:[1,0,0]
v_max_f32 v{SS+2}, 0, v{SS+2}
v_max_f32 v{SS+3}, 0, v{SS+3}
v_add_f32 v{SS+2}, 0x3727c5ac, v{SS+2}
v_add_f32 v{SS+3}, 0x3727c5ac, v{SS+3}
v_rsq_f32 v{SS+2}, v{SS+2}
v_rsq_f32 v{SS+3}, v{SS+3}
s_nop 0
v_pk_mul_f32 v[{SS}:{SS+1}], v[{SS}:{SS+1}], v[{SS+2}:{SS+3}]""".split("\n")
    return o
def ln_norm(x, t, P):
    return [f"v_pk_fma_f32 v[{t+i}:{t+i+1}], v[{x+i}:{x+i+1}], v[{SS+2}:{SS+3}], v[{SS}:{SS+1}] op_sel:[0,{P},{P}] op_sel_hi:[1,{P},{P}] neg_lo:[0,0,1] neg_hi:[0,0,1]" for i in range(0, 8, 2)]
def unpack(dst, src, n):
    return [l for k in range(n) for l in (f"v_lshlrev_b32 v{dst+2*k}, 16, v{src+k}", f"v_and_b32 v{dst+2*k+1}, 0xffff0000, v{src+k}")]
def gate_out(x, t, y, P, so):
    return [f"v_pk_fma_f32 v[{x+i}:{x+i+1}], v[{t+i}:{t+i+1}], v[{y+i}:{y+i+1}], v[{x+i}:{x+i+1}]" for i in range(0, 8, 2)] + \
           [f"v_cvt_pk_bf16_f32 v{vXR+4*P+i}, v{x+2*i}, v{x+2*i+1}" for i in range(4)] + \
           [f"buffer_store_dwordx4 v[{vXR+4*P}:{vXR+4*P+3}], v{vFO}, {WS}, s{so} offen {SC('c')}"]
def publish(X, so):
    return psum(X[0], 0) + psum(X[1], 1) + fold(SS) + [f"buffer_store_dword v{SS}, v{vSTW}, {WS}, s{so} offen sc1"]

vS1W, vS1R = 70, 69
def psum1(x, r, t):
    return [f"v_pk_add_f32 v[{r}:{r+1}], v[{x}:{x+1}], v[{x+2}:{x+3}]", f"v_pk_add_f32 v[{t}:{t+1}], v[{x+4}:{x+5}], v[{x+6}:{x+7}]",
            f"v_pk_mul_f32 v[{t+2}:{t+3}], v[{x}:{x+1}], v[{x}:{x+1}]", f"v_pk_add_f32 v[{r}:{r+1}], v[{r}:{r+1}], v[{t}:{t+1}]",
            f"v_pk_fma_f32 v[{t+2}:{t+3}], v[{x+2}:{x+3}], v[{x+2}:{x+3}], v[{t+2}:{t+3}]",
            f"v_pk_fma_f32 v[{t+2}:{t+3}], v[{x+4}:{x+5}], v[{x+4}:{x+5}], v[{t+2}:{t+3}]",
            f"v_add_f32 v{r}, v{r}, v{r+1}", f"v_pk_fma_f32 v[{t+2}:{t+3}], v[{x+6}:{x+7}], v[{x+6}:{x+7}], v[{t+2}:{t+3}]",
            f"v_add_f32 v{r+1}, v{t+2}, v{t+3}"]
def fold1(r):
    return [f"v_permlane32_swap_b32 v{r}, v{r+1}", f"v_add_f32 v{r}, v{r}, v{r+1}", f"v_mov_b32 v{r+1}, v{r}",
            f"v_permlane16_swap_b32 v{r}, v{r+1}", f"v_add_f32 v{r}, v{r}, v{r+1}"]
def st1_st(r, so, P, kind="c"): return [f"buffer_store_dword v{r}, v{vS1W}, {WS}, s{so} offen offset:{2048*P} {SC(kind)}"]
def st1_ld(PT, so, P): return [f"buffer_load_dwordx2 v[{PT+2*i}:{PT+2*i+1}], v{vS1R}, {WS}, s{so} offen offset:{2048*P + 128*i} sc1" for i in range(4)]
def st1_ck(PT, acc):
    return [f"v_max3_u32 v{acc}, v{PT}, v{PT+1}, v{PT+2}", f"v_max3_u32 v{acc}, v{acc}, v{PT+3}, v{PT+4}", f"v_max3_u32 v{acc}, v{acc}, v{PT+5}, v{PT+6}",
            f"v_max_u32 v{acc}, v{acc}, v{PT+7}", f"v_cmp_eq_u32 vcc, -1, v{acc}"]
def coef1(PT, r):
    return [f"v_pk_add_f32 v[{r}:{r+1}], v[{PT}:{PT+1}], v[{PT+2}:{PT+3}]", f"v_pk_add_f32 v[{r+2}:{r+3}], v[{PT+4}:{PT+5}], v[{PT+6}:{PT+7}]",
            f"v_pk_add_f32 v[{r}:{r+1}], v[{r}:{r+1}], v[{r+2}:{r+3}]"] + fold1(r) + \
           [f"v_mul_f32 v{r}, 0x3b000000, v{r}", f"v_mov_b32 v{r+1}, v{r}", f"v_permlane32_swap_b32 v{r}, v{r+1}",
            f"v_fma_f32 v{r+1}, -v{r}, v{r}, v{r+1}", f"v_max_f32 v{r+1}, 0, v{r+1}", f"v_add_f32 v{r+1}, 0x3727c5ac, v{r+1}",
            f"v_rsq_f32 v{r+1}, v{r+1}", f"v_mul_f32 v{r}, v{r}, v{r+1}"]
def norm1(x, t, r):
    return [f"v_pk_fma_f32 v[{t+i}:{t+i+1}], v[{x+i}:{x+i+1}], v[{r}:{r+1}], v[{r}:{r+1}] op_sel:[0,1,0] op_sel_hi:[1,1,0] neg_lo:[0,0,1] neg_hi:[0,0,1]" for i in range(0, 8, 2)]

def plain(lines):
    import re
    o = []
    for l in lines:
        m = re.match(r"v_pk_(add|mul|fma)_f32 (.*)", l)
        if not m: o.append(l); continue
        body = m.group(2); ops = [int(x) for x in re.findall(r"v\[(\d+):\d+\]", body)]
        n = len(ops) - 1
        g = lambda key, d: [int(x) for x in re.search(key + r":\[([\d,]+)\]", body).group(1).split(",")] if re.search(r"\b" + key + r":", body) else [d]*n
        lo, hi, nl, nh = g("op_sel", 0), g("op_sel_hi", 1), g("neg_lo", 0), g("neg_hi", 0)
        for h, (sel, ng) in enumerate(((lo, nl), (hi, nh))):
            src = ", ".join(("-" if ng[i] else "") + f"v{ops[1+i] + sel[i]}" for i in range(n))
            o.append(f"v_{m.group(1)}_f32 v{ops[0] + h}, {src}")
    return o

PTG = 160
def mean_ld(P): return [f"buffer_load_dwordx2 v[{PTG+8*P+2*i}:{PTG+8*P+2*i+1}], v{vSTG}, {WS}, s{sSA} offen offset:{2048*P + 128*i} sc1" for i in range(4)]
def mean_stream(G, P):
    r = PTG + 8*P; t = vMT
    ck = st1_ck(r, t)
    lf, lb = G.add_fix(mean_ld(P), ck, "m")
    a = ck + ["+1", f"s_cbranch_vccnz {lf}", lb + ":"]
    a += plain([f"v_pk_add_f32 v[{r}:{r+1}], v[{r}:{r+1}], v[{r+2}:{r+3}]", f"v_pk_add_f32 v[{r+4}:{r+5}], v[{r+4}:{r+5}], v[{r+6}:{r+7}]",
                f"v_pk_add_f32 v[{r}:{r+1}], v[{r}:{r+1}], v[{r+4}:{r+5}]"])
    a += spaced(fold1(r)) + [f"v_mul_f32 v{r}, 0x3b000000, v{r}", f"ds_write_b32 v{vMS}, v{r} offset:{16*P} @msw{P}", "+6", f"@wl msw{P}"]
    q = vR2 + 2*P
    b = [f"v_lshlrev_b32 v{t}, 3, v{vSG}", f"v_add_u32 v{t}, {L_MISC}, v{t}", f"ds_read_b128 v[{vM+4*P}:{vM+4*P+3}], v{t} offset:{16*P}",
         f"ds_read2_b32 v[{q}:{q+1}], v{vMR} offset0:{4*P} offset1:{8+4*P}", "+8",
         f"v_fma_f32 v{q+1}, -v{q}, v{q}, v{q+1}", f"v_max_f32 v{q+1}, 0, v{q+1}", f"v_add_f32 v{q+1}, 0x3727c5ac, v{q+1}", f"v_rcp_f32 v{q+1}, v{q+1}"]
    return a, b
def spaced(lines):
    o = []
    for l in lines:
        if l.startswith("v_permlane"): o.append("+1")
        o.append(l)
    return o

def epi(G, g, L):
    a = ACC(g); r = vM + g
    o = []
    for t in (2, 0, 1):
        for i in range(4): o.append(f"v_fma_f32 v{a+4*t+i}, -v{r}, v{vCS+4*t+i}, v{a+4*t+i}")
    m = a + 8
    o += [f"v_permlane32_swap_b32 v{m}, v{m+2}", f"v_permlane32_swap_b32 v{m+1}, v{m+3}"]
    for i in range(4): o.append(f"v_max_f32 v{a+i}, 0, v{a+i}")
    for i in range(4): o.append(f"v_mul_f32 v{a+i}, v{a+i}, v{a+4+i}")
    o += [f"v_cvt_pk_bf16_f32 v{vTM}, v{a}, v{a+1}", f"v_cvt_pk_bf16_f32 v{vTM+1}, v{a+2}, v{a+3}",
          f"s_add_u32 s{sHS}, s{sHC}, {g*HF_PITCH}",
          f"!buffer_store_dwordx2 v[{vTM}:{vTM+1}], v{vH2}, {WS}, s{sHS} offen {SC('ch%d' % L)} @hs{g}"]
    o += [f"v_max_f32 v{m}, 0, v{m}", f"v_max_f32 v{m+1}, 0, v{m+1}", f"v_mul_f32 v{m}, v{m}, v{m+2}", f"v_mul_f32 v{m+1}, v{m+1}, v{m+3}",
          f"v_cvt_pk_bf16_f32 v{vTM+2}, v{m}, v{m+1}", f"!buffer_store_dword v{vTM+2}, v{vH1}, {WS}, s{sHS} offen {SC('ch%d' % L)} @hs{g}"]
    return o

EPI_AT = {3: [0], 4: [1, 2], 5: [3], 6: [4, 5], 7: [6]}

class WdFeed:
    def __init__(self, L, tlag):
        self.sw = []; self.st = []; self.nt = 0; self.nd = 0; self.on = (L == 0); self.tlag = tlag; self.done_at = {}
        if self.on:
            for k in range(2): self.sw += [(0, t) for t in wd_dma(k, 4 + k)]
            self.sw += [(0, t) for t in poison_l2()]
            for k in range(2, 4): self.sw += [(0, t) for t in wd_dma(k, 4 + k)]
            self.sw += [(0, t) for t in wd_dma(8, 8)]
    def update(self, g):
        if not self.on: return
        for k in range(4):
            if k not in self.done_at and not any(f"@wd{k}" in t for (_, t) in self.sw): self.done_at[k] = g
        while self.nt < 4 and self.nt in self.done_at and g - self.done_at[self.nt] >= self.tlag:
            k = self.nt; self.nt += 1
            self.st += [(0, f"@wv wd{k}")] + [(0, t) for t in wd_tr(4 + k, 192 + 16*k, True, f"ta{k}")]
        while self.nd < self.nt and not any(f"@ta{self.nd}" in t for (_, t) in self.st):
            k = self.nd; self.nd += 1
            self.sw += [(0, f"@wl ta{k}")] + [(0, t) for t in wd_dma(4 + k, 4 + k)]
    def rest(self):
        o = []
        while True:
            o += [t for (_, t) in self.st + self.sw]; self.sw.clear(); self.st.clear()
            self.update(10**6)
            if not (self.st or self.sw): return o

def h_ld(P, k, rs):
    e = RING + 8*k + 4*rs
    return f"buffer_load_dwordx4 v[{e}:{e+3}], v{vHA if rs == 0 else vHB}, {WS}, s{sHL + 3*P + k//4} offen offset:{1024*(k%4)} sc1"

def h_scalars():
    o = [f"s_mul_i32 s{sHL+1}, s{sHB}, {HF_PITCH}", f"s_add_u32 s{sHL}, s{sHF}, s{sHL+1}", f"s_add_u32 s{sHL+1}, s{sHL}, 4096", f"s_add_u32 s{sHL+2}, s{sHL}, 8192"]
    return o + [f"s_add_u32 s{sHL+3+i}, s{sHL+i}, {4*HF_PITCH}" for i in range(3)]

def one_lane(ins): return f"s_mov_b64 exec, s[{sLM}:{sLM+1}]\n{ins}\ns_mov_b64 exec, -1"
def hflag_st(b): return one_lane(f"buffer_store_dword v{vTG}, v{vFA}, {WS}, s{sFL+1} offen offset:{2048*b} {SC('c')}")
def hflag_ld(b): return [f"v_lshlrev_b32 v{vFA}, 4, v{vSG}", f"!buffer_load_dword v{vFL}, v{vFA}, {WS}, s{sFL} offen offset:{2048*b} sc1"]
def hflag_chk(G, b):
    ck = [f"v_cmp_ne_u32 vcc, s{sTAG}, v{vFL}"]
    lf, lb = G.add_fix(hflag_ld(b), ck, "h0")
    return ck + [f"s_cbranch_vccnz {lf}", lb + ":"]

def HFL(G): return G.opt.get("hfl", 0)

def gemm1_normal(G, L):
    p = G.p
    W = Weaver(vm_space=G.opt.get("vs1", 4), no_s=lambda g: g % 3 == 2)
    for n in range(4):
        for l in x_rd(n, L): p(l)
    feed = WdFeed(L, G.opt.get('tlag', 48)); allout = []; sw = feed.sw; stt = feed.st
    fa = G.opt.get("fa0", 6) if L == 0 else -1
    pf = G.opt.get(f"pf{L}", 380 if L == 0 else 312); ml = G.opt.get("ml", 8); mc = G.opt.get("mc", 44)
    ml1 = G.opt.get("ml1", 120); mc1 = G.opt.get("mc1", 150)
    sf = [(G.opt.get("sfg", 12), t) for t in getattr(G, "slot0", [])]; G.slot0 = []; sm = []; smb = []
    sx = [(0, t) for t in x_dma(2, L) + getattr(G, "slot0p", []) + x_dma(3, L)]; s2 = []; spf = []; G.slot0p = []
    assert G.nf[L] == 2
    for g in range(8):
        mf = []
        for kk in range(16):
            n = 16*g + kk
            for t in range(3):
                mf.append(mfma(ACC(g) + 4*t, ar(64*t + 4*kk, 4), vr(XF + 4*(n % 6), 4), "0" if kk == 0 else None))
        s0 = []
        for kk in range(16):
            n = 16*g + kk + 4
            if n < 128: s0 += [(3*kk + i, t) for i, t in enumerate(x_rd(n, L))]
        s1 = []
        if g < 7 or g == fa:
            if g < 7 and g + 1 >= G.nf[L]:
                rd, ck = x_verify(G, g + 1, L)
                s1 += [(G.opt.get("vr", 6), t) for t in rd] + [(0, "+8")] + [(0, t) for t in ck[:-2]] + [(0, "+1")] + [(0, t) for t in ck[-2:]]
            if g == fa:
                assert not any("@poi" in t for (_, t) in sw)
                assert not any("@hs3" in t for (_, t) in s2)
                s1 += [(20, f"v_lshlrev_b32 v{vFA}, 2, v1"), (G.opt.get("fag", 23), "@wv poi,hs0,hs1,hs2,hs3")]
            if g not in (1, 3): s1 += [(24, "s_barrier")]
            if g == fa: s1 += [(0, hflag_st(0))]
        post = []
        if 1 <= g <= 4: post = x_dma(g + 3, L)
        if g == 5: post = wd_dma(9, 0, sXO)
        if g == 6: post = wd_dma(10, 1, sXO)
        if g == 0:
            ma, mb = mean_stream(G, 0)
            sm += [(ml, "!" + t) for t in mean_ld(0)] + [(mc, t) for t in ma]
        if g == 2:
            assert not sf
            txt0 = "\n".join(allout)
            assert "@hp2" not in txt0 or txt0.rindex("@hp2") < txt0.index("@wv hp2")
            ma, mb = mean_stream(G, 1)
            sm += [(ml1 - 96, "!" + t) for t in mean_ld(1)] + [(mc1 - 96, t) for t in ma]
        if g >= 2: s2 += [(6, t) for t in epi(G, g - 1, L)]
        if g == pf // 48: spf += [(0, t) for t in h_scalars()] + [(pf % 48, h_ld(0, k, rs)) for k in range(9) for rs in range(2)]
        if g == 7: spf += [(0, h_ld(0, k, rs)) for k in range(9, 11) for rs in range(2)]
        if g == 7 and L == 0 and HFL(G):
            assert pf >= 7*48
            i0 = min(i for i, (_, t) in enumerate(spf) if t.startswith("buffer_load_dwordx4"))
            spf[i0:i0] = [(G.opt.get("fla", 16), t) for t in hflag_ld(0)] + [(max(44, pf % 48), t) for t in hflag_chk(G, 0)]
        if L == 1:
            if G.opt.get("noepi"): s2.clear()
            if G.opt.get("nost"): s2[:] = [x for x in s2 if "buffer_store" not in x[1]]
            if G.opt.get("nover"): s1 = [x for x in s1 if not (x[1].startswith("ds_read_b128 v[14") or x[1].startswith("ds_read_b128 v[15") or f"v{vVA}" in x[1] or (g != 1 and ("cbranch" in x[1] or x[1].endswith(":"))))]
            if G.opt.get("nodma"): post = []; spf.clear()
        mb_slot = g in (1, 3)
        cut = 35 if mb_slot else 30
        out = []
        for lo in range(0, cut, 6):
            feed.update(W.g)
            out += W.run(mf[lo:min(cut, lo + 6)], [s0, sx, s1, sf, sm, spf, sw, s2, stt])
            if mb_slot and not s1 and not sm and "s_barrier" not in out and not any("@hp2" in t for (_, t) in sx): s1 += [(0, "@wv hp2"), (0, "s_barrier")]
        if mb_slot and "s_barrier" not in out and not any(t == "s_barrier" for (_, t) in s1):
            assert not any("@hp2" in t for (_, t) in sx)
            s1 += list(sm) + [(0, "@wv hp2"), (0, "s_barrier")]; sm.clear()
        if s1: print("slot", g, "barrier stream flushed:", len(s1)); out += [t for (_, t) in s1]; s1.clear()
        sx += [(G.opt.get("x4d", 24) if (g == 1 and L == 1 and G.opt.get("inslot", 1)) else 0, t) for t in post]
        if g == 1: s2 += [(0, t) for t in mb + epi(G, 0, L)]
        if g == 3: smb += [(0, t) for t in mb]
        for lo in range(cut, 48, 6):
            feed.update(W.g)
            out += W.run(mf[lo:lo + 6], [s0, sx, sf, sm, smb, spf, sw, s2, stt])
        if g == 4: assert not smb
        if g == 7: out += [t for (_, t) in s2]; s2.clear()
        assert not s0
        for l in out: p(l)
        allout += out
        G.stamp(f"s{L}{g}")
    tail = epi(G, 7, L) + [t for (_, t) in sx] + feed.rest()
    while not spf[0][1].startswith("buffer_load_dwordx4"): tail.append(spf.pop(0)[1])
    for l in tail: p(l)
    allout += tail
    ins = [pg.Ins(x.split(" @")[0].lstrip("!")) for l in allout for x in l.split("\n") if not (x.startswith(("@", "+")) or x.endswith(":"))]
    pfs = {h_ld(0, k, rs) for k in range(11) for rs in range(2)}
    txt = [a0.text for a0 in ins]
    i5 = min(i for i, t in enumerate(txt) if t.startswith(f"v_mfma_f32_16x16x32_bf16 v[{ACC(7)}:"))
    assert not any(t.startswith("buffer_store") and (f"v{vPOI}," in t or f"v[{vPOI}:" in t) for t in txt[i5:])
    for i, a0 in enumerate(ins):
        if a0.text in pfs:
            for b0 in ins[i+1:]: assert not (a0.wr & (b0.rd | b0.wr)), (a0.text, b0.text)
    gi = 0; pos = {}
    for l in allout:
        if l.startswith("v_mfma"): gi += 1
        if "@hs" in l: pos[l.split("@")[-1]] = "%.1f" % (gi/48)
        if "@wd" in l: pos[l.split("@")[-1]] = "%.1f" % (gi/48)
    print("leftover L%d positions" % L, pos)
    print("L%d leftover: tail %d, prefetch left %d" % (L, len(tail), len(spf)))
    return [t for (_, t) in spf]

def h_verify(G, P, k):
    e = RING + 8*k
    ck = [f"v_max3_u32 v23, v{e}, v{e+1}, v{e+2}", f"v_max3_u32 v23, v23, v{e+3}, v{e+4}",
          f"v_max3_u32 v23, v23, v{e+5}, v{e+6}", f"v_max_u32 v23, v23, v{e+7}", f"v_cmp_eq_u32 vcc, -1, v23"]
    lf, lb = G.add_fix([h_ld(P, k, 0), h_ld(P, k, 1)], ck, f'h{P}')
    return ck + [f"s_cbranch_vccnz {lf}", lb + ":"]

def red_imm(P, j):
    b = 32768
    return b + 1024*j if j < 4 else b + 16384 + 1024*(j - 4)

def red_writes(P):
    o = []
    for rel in (1, 2, 3):
        for tl in range(2):
            a = AP[P] + 16*(rel >> 1) + 4*(2*(rel & 1) + tl)
            o.append(f"ds_write_b128 v{vVF}, v[{a}:{a+3}] offset:{red_imm(P, 2*(rel - 1) + tl)}")
    return o

RA = 21
def red_reads(P, RD):
    return [f"ds_read_b128 v[{RD+4*j}:{RD+4*j+3}], v{(21, 22, 68)[j//2]} offset:{red_imm(P, j)}" for j in range(6)]

def red_adds(P, RD, pk, mid=()):
    o = []
    a = AP[P]
    if pk:
        for base in (0, 8, 16):
            for i in range(0, 8, 2): o.append(f"v_pk_add_f32 v[{a+i}:{a+i+1}], v[{a+i}:{a+i+1}], v[{RD+base+i}:{RD+base+i+1}]")
    else:
        for base in (0, 8, 16):
            for i in range(8): o.append(f"v_add_f32 v{a+i}, v{a+i}, v{RD+base+i}")
    o += list(mid)
    for i in range(4): o += [f"v_lshlrev_b32 v{RD+2*i}, 16, v{vXR+4*P+i}", f"v_and_b32 v{RD+2*i+1}, 0xffff0000, v{vXR+4*P+i}"]
    if pk:
        for i in range(0, 8, 2): o.append(f"v_pk_fma_f32 v[{RD+i}:{RD+i+1}], v[{a+i}:{a+i+1}], v[{vR2+2*P}:{vR2+2*P+1}], v[{RD+i}:{RD+i+1}] op_sel:[0,1,0] op_sel_hi:[1,1,1]")
    else:
        for i in range(8): o.append(f"v_fmac_f32 v{RD+i}, v{a+i}, v{vR2+2*P+1}")
    return o

def poison_h2(c, a):
    o = [f"v_mov_b32 v{c+i}, -1" for i in range(4)] + [f"v_mul_u32_u24 v{a}, {HF_PITCH}, v2", f"v_add_u32 v{a}, v{a}, v{vL16}"]
    for h in range(2):
        o.append(f"s_add_u32 s{sT+8}, s{sHC}, 0x{WS_HF[1]-WS_HF[0] + 4*h*HF_PITCH:x}")
        for i in range(3): o.append(f"buffer_store_dwordx4 v[{c}:{c+3}], v{a}, {WS}, s{sT+8} offen offset:{1024*i} {SC('cp1')} @hp2")
    return o

def fin_x(P, RD, X, U):
    a = AP[P]; o = []
    for base in (0, 8, 16):
        o += [f"v_pk_add_f32 v[{a+i}:{a+i+1}], v[{a+i}:{a+i+1}], v[{RD+base+i}:{RD+base+i+1}]" for i in range(0, 8, 2)]
        if base == 0: o += unpack(U, vXR + 4*P, 4)
    o += [f"v_pk_fma_f32 v[{X+i}:{X+i+1}], v[{a+i}:{a+i+1}], v[{vR2+2*P}:{vR2+2*P+1}], v[{U+i}:{U+i+1}] op_sel:[0,1,0] op_sel_hi:[1,1,1]" for i in range(0, 8, 2)]
    return o

OFL = ['']
def out_store(x, o, so):
    return [f"v_cvt_pk_bf16_f32 v{o+i}, v{x+2*i}, v{x+2*i+1}" for i in range(4)] + \
           [f"v_permlane16_swap_b32 v{o}, v{o+2}", f"v_permlane16_swap_b32 v{o+1}, v{o+3}", f"buffer_store_dwordx4 v[{o}:{o+3}], v{vOA}, {srd(SRD_O)}, s{so} offen {OFL[0]}"]

def gemm2(G, L, left):
    from gen_front import sprinkle
    OFL[0] = ["", "sc1", "sc0 sc1", "nt", "sc1 nt"][G.opt.get("ofl", 0)]
    p = G.p
    p("s_barrier")
    G.stamp(f"g1end{L}")
    W = Weaver(vm_space=G.opt.get("vs2", 4))
    sv = [(0, t) for t in left]
    side = []
    for rel, r in ((1, 21), (2, 22), (3, 68)): side += [f"v_xor_b32 v{r}, {rel}, v2", f"v_lshl_add_u32 v{r}, v{r}, 12, v{vL16}"]
    if L == 0: side += st_base(sT + 2, WS_STX) + xtile_base(sT + 4, WS_X3B) + [f"s_add_u32 s{sT+3}, s{sT+2}, 0x{WS_STA[1]-WS_STX:x}"]
    else: side += [f"s_add_u32 s{sT+2}, s{sOB}, {4*16384}"]
    X0 = AP[0]; R0 = AP[0] + 8
    GP, YU0, C0 = 232, 240, 248
    p1s = G.opt.get("p1s", 8); back = []
    def step_mf(P, k):
        mf = []
        for cs in range(4):
            for rs in range(2):
                w = ar(192 + 16*k + 4*cs, 4) if k < 4 else vr(WF + 16*(k % 2) + 4*cs, 4)
                mf.append(mfma(AP[P] + 16*rs + 4*cs, w, vr(RING + 8*k + 4*rs, 4), "0" if k == 0 else None))
        return mf
    def step_tr(k): return [(i, t) for i, t in enumerate(wd_tr(WID[k + 1], WF + 16*((k + 1) % 2), False))] if 3 <= k < 10 else []
    def nan_check(P, issued):
        ck = [f"v_cmp_u_f32 vcc, v{AP[P]}, v{AP[P]+16}"]
        redo = ["s_waitcnt vmcnt(0)"] + [h_ld(P, k, rs) for k in range(11) for rs in range(2)]
        Wr = Weaver()
        for k in range(11): redo += Wr.run(step_mf(P, k), [step_tr(k)], flush=[0])
        lf, lb = G.add_fix(redo, ck, f"h{P}", after=issued)
        return ck + [f"s_cbranch_vccnz {lf}", lb + ":"]
    for P in range(2):
        s3 = []; s4 = []; issued = []
        for k in range(11):
            s0 = ([(0, f"@wv wd{k+1}")] if (P == 0 and 3 <= k < 10) else []) + step_tr(k)
            s1 = []
            if P == 0:
                if k >= 1: back += [(0, h_ld(1, k - 1, 0)), (0, h_ld(1, k - 1, 1))]
                if k >= p1s: sv += back; back = []
                if k == 0: s3 += [(0, t) for t in side]
                if L == 0 and not HFL(G):
                    if k == 0: s1 = [(0, t) for t in hflag_ld(0)] + s1
                    if k == 3: s1 = [(0, t) for t in hflag_chk(G, 0)] + s1
                if L == 0 and HFL(G):
                    if k == 1: s1 = [(0, "v_lshlrev_b32 v71, 2, v1"), (1, "s_barrier"), (2, f"v_mov_b32 v23, s{sTAG}"), (3, hflag_st(1).replace(f"v{vTG}, v{vFA}", "v23, v71")), (4, f"v_mov_b32 v{vTG}, s{sTAG}")]
                    if k == p1s - 3: s1 = [(0, t.replace(f"v{vFA}", "v23").replace(f"v{vFL}", "v23")) for t in hflag_ld(1)]
                    if k == p1s - 1:
                        ck = [f"v_cmp_ne_u32 vcc, s{sTAG}, v23"]
                        lf, lb = G.add_fix([t.replace(f"v{vFA}", "v23").replace(f"v{vFL}", "v23") for t in hflag_ld(1)], ck, "h1")
                        s1 = [(4, ck[0]), (6, f"s_cbranch_vccnz {lf}"), (6, lb + ":")]
                W.vm_space = G.opt.get("vsb", 2)
            else:
                W.vm_space = G.opt.get("vs2", 4)
                if L == 0 and k == G.opt.get("hp2", 20): s4 += [(0, t) for t in poison_h2(252, 251)]
                if k == 2: s3 += [(1, "s_barrier")]
                if L == 0 and k == G.opt.get("gs", 8): s3 += [(0, "!" + t) for t in st1_ld(GP, sT + 2, 0)]
            need = (h_ld(P, k, 0), h_ld(P, k, 1))
            while any(t in need for (_, t) in sv): l = sv.pop(0)[1]; p(l); issued.append(l)
            out = W.run(step_mf(P, k), [sv, s0, s1, s3, s4], flush=[1, 2])
            for l in out: p(l)
            issued += out
        for (_, t) in s3 + s4: p(t)
        p1set = {h_ld(1, k, rs) for k in range(11) for rs in range(2)}
        if L == 1 or not HFL(G):
            for l in nan_check(P, [l for l in issued if l in p1set] if P == 0 else []): p(l)
        if P == 0:
            G.stamp(f"p0end{L}")
            sv += back + [(0, h_ld(1, 10, 0)), (0, h_ld(1, 10, 1))]
            gap = red_writes(0) + ["s_waitcnt lgkmcnt(0)", "s_barrier"] + red_reads(0, R0) + fin_x(0, R0, X0, WF)
            if L == 0: gap += psum1(X0, C0, C0 + 2) + fold1(C0) + st1_st(C0, sT + 2, 0, 'g') + unpack(YU0, vY, 4)
            else: gap += out_store(X0, R0, sOB)
            u = [t for (_, t) in sv[:G.opt.get("gapn", 10)]]; del sv[:len(u)]
            for l in sprinkle(gap, u, G.opt.get("gape", 5)) + u: p(l)
            G.stamp(f"gap{L}")
    G.stamp(f"g2mm{L}")
    RD1, X1 = 96, 120
    for l in red_writes(1): p(l)
    if L == 0:
        for l in G.poll_end_lines(None, st1_ld(GP, sT + 2, 0), [], st1_ck(GP, 23), "st") + coef1(GP, C0) + norm1(X0, GP, C0) + gate_out(X0, GP, YU0, 0, sT + 4): p(l)
        G.stamp("x3a")
    p("s_waitcnt lgkmcnt(0)\ns_barrier")
    for l in red_reads(1, RD1): p(l)
    if L == 0:
        for l in psum1(X0, C0, GP): p(l)
    for l in fin_x(1, RD1, X1, 128): p(l)
    if L == 1:
        for l in out_store(X1, 128, sT + 2): p(l)
        return
    for l in psum1(X1, 128, 130) + fold1(128) + st1_st(128, sT + 2, 1, 'g'): p(l)
    G.stamp("stpub")
    for l in fold1(C0) + unpack(128, vY + 4, 4) + st1_st(C0, sT + 3, 0): p(l)
    hp = poison_h2(252, 251) if G.opt.get("hp2", 20) > 10 else []
    k0 = 7
    for l in hp[:k0] + [f"s_add_u32 s{sT+9}, s{sT+8}, {4*HF_PITCH}"] + layer_scalars(1): p(l)
    hp = [l.replace(f"s{sT+8} ", f"s{sT+9} ") if i >= 4 else l for i, l in enumerate(hp[k0:]) if l.startswith("buffer")]
    G1_, C1 = 104, 112
    fin = lambda: G.poll_end_lines(None, st1_ld(G1_, sT + 2, 1), [], st1_ck(G1_, vMT), "st") + coef1(G1_, C1) + norm1(X1, 136, C1) + \
        gate_out(X1, 136, 128, 1, sT + 5) + psum1(X1, C1, 116) + fold1(C1) + ["@wv hp2"] + st1_st(C1, sT + 3, 1)
    if G.opt.get("inslot", 1):
        hs0 = G.opt.get("hps", 0)
        G.between = st1_ld(G1_, sT + 2, 1) + ([] if hs0 else hp)
        G.slot0p = hp if hs0 else []
        f = []
        for l in spaced(plain(fin())):
            if l.startswith("s_cbranch"): f.append("+1")
            f.append("!" + l if l.startswith("buffer") else l)
        G.slot0 = f
    else:
        G.between = st1_ld(G1_, sT + 2, 1) + hp + fin()

def x_hint_addr():
    return [f"s_and_b32 s14, s{sJ}, 24", f"s_lshl_b32 s13, s{sW}, 1", "s_add_u32 s14, s14, s13", "s_lshl_b32 s14, s14, 15",
            f"s_and_b32 s13, s{sX}, 6", "s_lshl_b32 s13, s13, 12", "s_add_u32 s14, s14, s13"]
def x_hint_offs(kind): return [32768*c + 4096*h + 1024*wv + 128*kind for c in range(2) for h in range(2) for wv in range(2)]

def x_start(G, L, between):
    n = G.nf[L]
    att = [l for g in range(n) for l in x_dma(g, L)]
    VR2 = 72
    rd = [f"ds_read_b128 v[{VR2+16*g+4*i}:{VR2+16*g+4*i+3}], v{vVF} offset:{g*16384 + 1024*i}" for g in range(n) for i in range(4)]
    rs = [VR2 + 4*k + 3 for k in range(4*n)]
    ck = [f"v_max3_u32 v{vVA}, v{rs[0]}, v{rs[1]}, v{rs[2]}"]
    k = 3
    while k + 1 < len(rs): ck.append(f"v_max3_u32 v{vVA}, v{vVA}, v{rs[k]}, v{rs[k+1]}"); k += 2
    if k < len(rs): ck.append(f"v_max_u32 v{vVA}, v{vVA}, v{rs[k]}")
    ck.append(f"v_cmp_eq_u32 vcc, -1, v{vVA}")
    G.poll(att, rd, ck, "x0", between)

def mlp(G):
    p = G.p
    G.nf = (G.opt.get("nf0", 2), G.opt.get("nf1", 2))
    for L in range(2):
        if L == 0:
            from gen_front import handover
            between = handover(G)
        else:
            between = G.between
        x_start(G, L, between)
        p("s_waitcnt lgkmcnt(0)\ns_barrier")
        G.stamp(f"g1go{L}")
        left = gemm1_normal(G, L)
        if G.stop == "g1" or (G.stop == "g1b" and L == 1): return
        gemm2(G, L, left)
        if G.stop == "g2": return
```

```python
import sys, os
sys.path.insert(0, "tools")
from pg import Prog, weave

NAME = "interleave_layers__ssm_conv_h3__glu_gated_reglu__prompt_kernel"
HEADER = open("interleave_layers__ssm_conv_h3__glu_gated_reglu__prompt.s.ref").read().split("; Override")[0].rstrip()
S, D, F = 2048, 512, 1376

WS_EPOCH = 0x0
WS_FLAGS = 0x20000
WS_HFL = 0x10000
WS_STQ, WS_STX = 0xE80000, 0xEC0000
WS_STA = (0xF00000, 0xF40000)
WS_HINT = 0x500000
KP = int(os.environ.get('KP', 12416))
WS_KVG = 0x100000
import os
XP = int(os.environ.get('XP', 16512))
QP = int(os.environ.get('QP', 16512))
WS_X1B = 0x820000
WS_YB = 0xA40000
WS_X3B = 0xC60000
WS_HF = (0x1000000, 0x1600000)
HF_PITCH = 180 * 256
WS_DBG = 0x1C00000
WS_SIZE = 0x2000000

L_TC = 0; TC_STRIDE = 4160; TC_CH = 4 * TC_STRIDE
L_RS = 0
L_U = 33280; U_CH = 4608
L_WST = 61408; WST_UP = 49152 + 16
L_XS = 0
L_A = 114688
L_SP = 147456
L_MISC = 159744
LDS_SIZE = 163840

sX, sJ, sW, sTAG, sC = 3, 4, 5, 6, 7
sQP, sSKP, sDP = 16, 18, 20
SRD_K, SRD_V, SRD_H, SRD_WG, SRD_WU, SRD_WD, SRD_WS, SRD_O = 24, 28, 32, 36, 40, 44, 48, 52
sD0, sD1 = 56, 57
sDEAD, sSPIN = 58, 59
sR0 = 60
sHB, sCT = 61, 62
sT = 64
sM = 80
sST = 90
SPIN_MAX = 400000

LOC = [0]
WT = set()
def SC(kind): return "" if kind not in WT and ((kind[0] == "g" and LOC[0] >= 1) or (kind[0] == "c" and LOC[0] >= 2)) else "sc1"
def srd(n): return "s[%d:%d]" % (n, n + 3)
def vr(a, n=1): return "v%d" % a if n == 1 else "v[%d:%d]" % (a, a + n - 1)
def ar(a, n=1): return "a%d" % a if n == 1 else "a[%d:%d]" % (a, a + n - 1)
def mfma(d, a, b, c=None):
    return "v_mfma_f32_16x16x32_bf16 %s, %s, %s, %s" % (vr(d, 4), a, b, vr(d, 4) if c is None else c)

class Gen:
    def __init__(self, stop=None, stamps=False, skip=()):
        self.skip = set(skip)
        self.p = Prog()
        self.fix = []
        self.stop = stop
        self.stamps = stamps
        self.nst = 0
        self.stnames = []
        self.extra = []
        self.probe = None
        self.opt = {}

    def stamp(self, name):
        if not self.stamps: return
        p = self.p
        if name not in self.skip and name != "end": return
        if name in self.stnames: idx = self.stnames.index(name)
        else:
            assert self.nst < 12
            idx = self.nst; self.nst += 1; self.stnames.append(name)
        p("s_waitcnt lgkmcnt(0)\ns_memrealtime s[80:81]\ns_waitcnt lgkmcnt(0)\ns_mov_b32 s%d, s80" % (sST + idx))

    def spin_guard(self, lback):
        return ["s_cmp_lg_u32 s%d, 0" % sDEAD, "s_cbranch_scc1 %s" % lback,
                "s_add_u32 s%d, s%d, 1" % (sSPIN, sSPIN), "s_cmp_lt_u32 s%d, %d" % (sSPIN, SPIN_MAX),
                "s_cselect_b32 s%d, 0, 1" % sDEAD]

    CATS = ["kvg", "y", "x0", "hint", "m", "h0", "h1", "st"]
    def add_fix(self, body_reload, body_check, cat="st", after=()):
        p = self.p
        lf = p.new("FIX"); lb = p.new("BACK")
        ci = self.CATS.index(cat)
        cnt = [f"s_add_u32 s{88 + ci // 4}, s{88 + ci // 4}, {1 << (8 * (ci % 4))}"] if self.stamps else []
        blk = [lf + ":"] + cnt + self.spin_guard(lb + "_x") + body_reload + ["s_waitcnt vmcnt(0) lgkmcnt(0)"] + body_check + \
              ["s_cbranch_vccnz %s" % lf] + list(after) + [lb + "_x:", "s_waitcnt vmcnt(0) lgkmcnt(0)", "s_nop 7", "s_branch %s" % lb]
        self.fix.append(blk)
        return lf, lb

    def poll(self, att, mid, check, cat, between=()):
        p = self.p
        n = sum(1 for l in att for x in l.split("\n") if x.startswith(("buffer_", "global_")))
        tag = p.new("at")
        def tagged(t): return ["\n".join((x.split(" @")[0] + " @" + t) if x.lstrip("!").startswith(("buffer_", "global_")) else x for x in l.split("\n")) for l in att]
        lf = p.new("FIX"); lb = p.new("BACK")
        ci = self.CATS.index(cat)
        cnt = [f"s_add_u32 s{88 + ci // 4}, s{88 + ci // 4}, {1 << (8 * (ci % 4))}"] if self.stamps else []
        blk = [lf + ":"] + cnt + self.spin_guard(lb + "_x") + tagged(tag + "~") + [f"s_waitcnt vmcnt({n})"] + mid + ["s_waitcnt lgkmcnt(0)"] + check + \
              ["s_cbranch_vccnz %s" % lf, lb + "_x:", "s_waitcnt lgkmcnt(0)", "s_nop 7", "s_branch %s" % lb]
        self.fix.append(blk)
        if cat in self.opt.get("single", ("kvg", "y", "x0", "st")):
            blk[blk.index(f"s_waitcnt vmcnt({n})")] = "s_waitcnt vmcnt(0)"
            for l in tagged(tag): p(l)
            for l in between: p(l)
            p(f"@wv {tag}")
            for l in mid + check: p(l)
            p(f"s_cbranch_vccnz {lf}\n{lb}:")
            return tag
        for l in tagged(tag): p(l)
        for l in between: p(l)
        for l in tagged(tag + "~"): p(l)
        p(f"@wv {tag}")
        for l in mid + check: p(l)
        p(f"s_cbranch_vccnz {lf}\n{lb}:")
        return tag + "~"

    HREG = list(range(24, 36)) + [18, 19, 20, 21]
    sHB_, sHO = 0, 15
    def hint_init(self):
        return [f"s_add_u32 s0, s{SRD_WS}, 0x{WS_HINT:x}", f"s_addc_u32 s1, s{SRD_WS+1}, 0", f"s_lshl_b32 s{self.sHO}, s2, 12", f"s_lshl_b32 s13, s{sW}, 10",
                f"s_add_u32 s{self.sHO}, s{self.sHO}, s13", f"s_add_u32 s{self.sHO}, s{self.sHO}, 0x{WS_HINT:x}"]
    def hint_st(self, kind, vtag):
        return f"s_mov_b64 exec, 1\nbuffer_store_dword v{vtag}, off, {srd(SRD_WS)}, s{self.sHO} offset:{128*kind} sc1\ns_mov_b64 exec, -1"
    def hint_ld(self, so, offs):
        return [f"s_load_dword s{self.HREG[i]}, s[0:1], s{so} offset:0x{o:x} glc" for i, o in enumerate(offs)]
    def hint_wait(self, so, offs, cat):
        p = self.p; r = self.HREG
        ck = ["s_waitcnt lgkmcnt(0)"] + [f"s_and_b32 s{r[0]}, s{r[0]}, s{r[i]}" for i in range(1, len(offs))] + [f"s_cmp_lg_u32 s{r[0]}, s{sTAG}"]
        lf = p.new("FIX"); lb = p.new("BACK")
        ci = self.CATS.index(cat)
        cnt = [f"s_add_u32 s{88 + ci // 4}, s{88 + ci // 4}, {1 << (8 * (ci % 4))}"] if self.stamps else []
        self.fix.append([lf + ":"] + cnt + self.spin_guard(lb) + self.hint_ld(so, offs) + ck + [f"s_cbranch_scc1 {lf}", f"s_branch {lb}"])
        return ck + [f"s_cbranch_scc1 {lf}", lb + ":"]

    def poll_begin(self, att):
        tag = self.p.new("at")
        for l in att:
            self.p("\n".join((x.split(" @")[0] + " @" + tag) if x.lstrip("!").startswith(("buffer_", "global_")) else x for x in l.split("\n")))
        return tag
    def poll_end_lines(self, tag, att, mid, check, cat):
        lf, lb = self.add_fix([l.split(" @")[0] for l in att] + ["s_waitcnt vmcnt(0)"] + mid, check, cat)
        return ([f"@wv {tag}"] if tag else []) + mid + check + [f"s_cbranch_vccnz {lf}", lb + ":"]

    def finish(self):
        p = self.p
        p(f"""s_cmp_lg_u32 s2, 0
s_cbranch_scc1 L_NOEP
v_mov_b32 v21, 0
v_mov_b32 v22, s{sTAG}
s_mov_b64 exec, 1
buffer_store_dword v22, v21, {srd(SRD_WS)}, 0 offen sc1
s_mov_b64 exec, -1
L_NOEP:""")
        if self.stamps:
            p("s_waitcnt vmcnt(0)")
            self.stamp("end")
            p(f"s_cmp_lg_u32 s{sW}, 0\ns_cbranch_scc1 L_END")
            p(f"s_lshl_b32 s{sT}, s2, 6\ns_add_u32 s{sT}, s{sT}, 0x{WS_DBG:x}\nv_mov_b32 v21, 0\ns_mov_b64 exec, 1")
            for i in range(self.nst):
                p(f"v_mov_b32 v22, s{sST+i}\nbuffer_store_dword v22, v21, {srd(SRD_WS)}, s{sT} offen offset:{4*i}")
            p(f"v_mov_b32 v22, s88\nbuffer_store_dword v22, v21, {srd(SRD_WS)}, s{sT} offen offset:52\nv_mov_b32 v22, s89\nbuffer_store_dword v22, v21, {srd(SRD_WS)}, s{sT} offen offset:56")
            p(f"v_mov_b32 v22, s{sSPIN}\nbuffer_store_dword v22, v21, {srd(SRD_WS)}, s{sT} offen offset:60")
        p("L_END:\ns_endpgm")
        labels = {it.arg for pr in [p] + self.extra for it in pr.items if getattr(it, "kind", "") == "label"}
        for blk in self.fix:
            if blk[-1].split()[-1] not in labels: continue
            p.fresh()
            for l in blk: p(l)

    def build(self):
        self.code_kb = 64
        import gen as _g
        _g.LOC[0] = self.opt.get("loc", 0); _g.WT.update(self.opt.get("wt", ()))
        from gen_front import front, conv
        front(self)
        conv(self)
        if self.stop != "conv":
            from gen_mlp import mlp
            mlp(self)
        self.finish()
        body = self.p.finalize()
        for e in self.extra: body += e.finalize()
        txt = [HEADER, f"; @launch grid=(256,1,1) block=(256,1,1) lds={LDS_SIZE}", '.amdgcn_target "amdgcn-amd-amdhsa--gfx950"', ".text",
               f".globl {NAME}", ".p2align 8", f".type {NAME},@function", NAME + ":"] + body
        txt += [".p2align 8", f".fill (65536 + 2048 - (. - {NAME})) / 4, 4, 0xbf800000"]
        txt += ['.section .rodata,"a"', ".p2align 6", f".amdhsa_kernel {NAME}", "  .amdhsa_next_free_vgpr 512", "  .amdhsa_next_free_sgpr 102",
                "  .amdhsa_accum_offset 256", "  .amdhsa_group_segment_fixed_size 0", "  .amdhsa_kernarg_size 104", "  .amdhsa_user_sgpr_count 2",
                "  .amdhsa_user_sgpr_kernarg_segment_ptr 1", "  .amdhsa_system_sgpr_workgroup_id_x 1", ".end_amdhsa_kernel"]
        t = "\n".join(txt) + "\n"
        if self.probe is not None: t = add_probe(t, *self.probe)
        return t

def add_probe(t, col, K, mode="max"):
    t = t.replace(f"; @launch grid=(256,1,1) block=(256,1,1) lds={LDS_SIZE}",
                  f"; @launch kernel={NAME} grid=(256,1,1) block=(256,1,1) lds={LDS_SIZE}\n; @launch kernel=probe_kernel grid=(1,1,1) block=(64,1,1) lds=0")
    red = "v_max_u32" if mode == "max" else "v_add_u32"
    code = [".text", ".globl probe_kernel", ".p2align 8", ".type probe_kernel,@function", "probe_kernel:",
            "s_cmp_ge_u32 s2, 1", "s_cbranch_scc1 PR_END", "s_load_dwordx2 s[4:5], s[0:1], 96", "s_waitcnt lgkmcnt(0)",
            f"s_add_u32 s4, s4, 0x{WS_DBG:x}", "s_addc_u32 s5, s5, 0", "v_lshlrev_b32 v1, 8, v0"]
    for i in range(4):
        code += [f"global_load_dword v{2+i}, v1, s[4:5] offset:{64*i}", f"global_load_dword v{6+i}, v1, s[4:5] offset:{64*i + 4*col}"]
    code += ["s_waitcnt vmcnt(0)", "v_min_u32 v2, v2, v3", "v_min_u32 v4, v4, v5", "v_min_u32 v2, v2, v4"]
    code += ["s_mov_b32 s10, -1", "s_nop 2"]
    for l in range(64): code += [f"v_readlane_b32 s11, v2, {l}", "s_nop 0", "s_min_u32 s10, s10, s11"]
    for i in range(4): code += [f"v_subrev_u32 v{6+i}, s10, v{6+i}"]
    code += [f"{red} v6, v6, v7", f"{red} v8, v8, v9", f"{red} v6, v6, v8", "s_mov_b32 s12, 0", "s_nop 2"]
    for l in range(64): code += [f"v_readlane_b32 s11, v6, {l}", "s_nop 0", ("s_max_u32" if mode == "max" else "s_add_u32") + " s12, s12, s11"]
    if mode != "max": code += ["s_lshr_b32 s12, s12, 8"]
    code += [f"s_mul_i32 s12, s12, {K}", "s_min_u32 s12, s12, 200000", "s_memrealtime s[14:15]", "s_waitcnt lgkmcnt(0)",
             "PR_LOOP:", "s_memrealtime s[16:17]", "s_waitcnt lgkmcnt(0)", "s_sub_u32 s16, s16, s14", "s_cmp_lt_u32 s16, s12", "s_cbranch_scc1 PR_LOOP",
             "PR_END:", "s_endpgm"]
    kd = [".p2align 6", ".amdhsa_kernel probe_kernel", "  .amdhsa_next_free_vgpr 32", "  .amdhsa_next_free_sgpr 32", "  .amdhsa_accum_offset 32",
          "  .amdhsa_group_segment_fixed_size 0", "  .amdhsa_kernarg_size 104", "  .amdhsa_user_sgpr_count 2",
          "  .amdhsa_user_sgpr_kernarg_segment_ptr 1", "  .amdhsa_system_sgpr_workgroup_id_x 1", ".end_amdhsa_kernel"]
    t = t.replace('.section .rodata,"a"', "\n".join(code) + '\n.section .rodata,"a"')
    return t + "\n".join(kd) + "\n"

if __name__ == "__main__":
    import argparse
    ap = argparse.ArgumentParser()
    ap.add_argument("-o", default="k.s")
    ap.add_argument("--stop", default=None)
    ap.add_argument("--stamps", action="store_true")
    ap.add_argument("--st", default="")
    ap.add_argument("--probe", default="")
    ap.add_argument("--opt", default="")
    a = ap.parse_args()
    g = Gen(stop=a.stop, stamps=a.stamps, skip=a.st.split(','))
    for kv in a.opt.split(","):
        if kv:
            k_, v_ = kv.split("=")
            g.opt[k_] = v_.split("+") if k_ in ("single", "wt") else int(v_)
    if a.probe:
        q = a.probe.split(","); g.probe = (int(q[0]), int(q[1]), q[2] if len(q) > 2 else "max")
    t = g.build()
    open(a.o, "w").write(t)
    open(a.o + ".stamps", "w").write(" ".join(g.stnames))
    print("lines", g.p.stats, "stamps", g.stnames)
```

```python
import sys
sys.path.insert(0, "tools")
from pg import weave, Weaver
from gen import *

WS = srd(SRD_WS)
fTW, fUZ, fRSW, fRSR, fKVR, fHP, fFA, fFB = range(220, 228)
QT8 = 228
fK, fKh, fK4, fSK, fKVG, fH, fPF = range(236, 243)
fWD = 243
fWT = 246
fCO, fCA, fCB, fT16 = 252, 253, 254, 255
ONE = 212
POI = 236
GR = 208
CS = 32
WH = (61376, 110560); WUP = 24576 + 16
sP = sT
sWs, sWm = sT + 6, sT + 7

NOW = [0]; ASC = [0]
KVMAP = ["""v_and_b32 v21, 15, v0
v_bfe_u32 v22, v0, 6, 1
v_lshl_add_u32 v21, v22, 4, v21
v_bfe_u32 v22, v0, 4, 2
v_lshrrev_b32 v23, 7, v0
v_lshl_add_u32 v22, v23, 2, v22""", """v_and_b32 v21, 7, v0
v_lshl_add_u32 v21, v2, 3, v21
v_bfe_u32 v22, v0, 3, 3""", """v_lshrrev_b32 v21, 3, v0
v_and_b32 v22, 7, v0""", """v_and_b32 v21, 31, v0
v_lshrrev_b32 v22, 5, v0"""]
MAPS = [f"""s_and_b32 s{sHB}, s{sX}, 1
s_lshl_b32 s{sC}, s{sHB}, 3
s_add_u32 s{sC}, s{sC}, s{sCT}
s_and_b32 s{sR0}, s{sJ}, 24
s_lshr_b32 s{sT+2}, s{sX}, 1
s_lshl_b32 s{sT+2}, s{sT+2}, 5
s_add_u32 s{sR0}, s{sR0}, s{sT+2}""", f"""s_bfe_u32 s{sHB}, s{sJ}, 0x10003
s_and_b32 s{sC}, s{sJ}, 15
s_lshr_b32 s{sR0}, s{sJ}, 4
s_lshl_b32 s{sR0}, s{sR0}, 3
s_lshl_b32 s{sT+2}, s{sX}, 4
s_add_u32 s{sR0}, s{sR0}, s{sT+2}"""]
YP = 2 * XP
def w_round(r):
    if NOW[0] == 2: return []
    o = [f"s_mul_i32 s{sWs}, s{sW}, {2*44032}", f"s_add_u32 s{sWs}, s{sWs}, {r*8*44032}"]
    for blk in range(2):
        for (sr, lo) in ((SRD_WG, 0), (SRD_WU, WUP)):
            for ph in range(3):
                o.append(f"s_add_u32 m0, s{sWm}, {WH[r % 2] + lo + blk*3072 + ph*1024}\nbuffer_load_dwordx4 v{fWD+ph}, {srd(sr)}, s{sWs} offen lds @w{r}")
        if blk == 0: o.append(f"s_add_u32 s{sWs}, s{sWs}, 44032")
    return o

def w_tr(r):
    return [f"ds_read_b64_tr_b16 {ar(64*t + 4*(4*r + k) + 2*h, 2)}, v{fWT + 3*(r % 2) + t} offset:{k*6144 + h*3072} @t{r}"
            for k in range(4) for t in range(3) for h in range(2)]

def w_cs(r):
    return [mfma(CS + 4*t, ar(64*t + 4*(4*r + k), 4), vr(ONE, 4), "0" if (r == 0 and k == 0) else None) for k in range(4) for t in range(3)]

def sprinkle(lines, extra, every, start=0):
    out = []; due = 0
    for i, l in enumerate(lines):
        out.append(l)
        if i >= start and (i - start) % every == 0: due = 1
        if due and not (i + 1 < len(lines) and lines[i + 1].startswith(("s_cselect", "s_cbranch", "s_addc"))):
            due = 0
            while extra and "\n" not in extra[0] and not extra[0].startswith(("buffer", "global")): out.append(extra.pop(0))
            if extra: out.append(extra.pop(0))
    return out

def front(G):
    import gen_mlp as M
    p = G.p
    NOW[0] = G.opt.get("nw", 0); ASC[0] = G.opt.get("asc", 0)
    if G.stamps:
        p("s_memrealtime s[80:81]\ns_waitcnt lgkmcnt(0)\ns_mov_b32 s%d, s80" % sST); G.nst = 1; G.stnames = ["start"]
    p("s_cmp_ge_u32 s2, 256\ns_cbranch_scc1 L_END")
    for reg, off in ((SRD_K, 8), (SRD_V, 16), (sSKP, 24), (SRD_WS, 96), (SRD_H, 32), (sQP, 0), (sDP, 40),
                     (SRD_WG, 56), (SRD_WU, 64), (SRD_WD, 72), (SRD_O, 80)):
        p("s_load_dwordx2 s[%d:%d], s[0:1], %d" % (reg, reg + 1, off))
    if G.opt.get("ipf", 0):
        p(f"s_getpc_b64 s[{sT+4}:{sT+5}]\nv_lshlrev_b32 v21, 7, v0\nglobal_load_dword a251, v21, s[{sT+4}:{sT+5}]")
    p(f"""s_and_b32 s{sX}, s2, 7
s_lshr_b32 s{sJ}, s2, 3
v_lshrrev_b32 v2, 6, v0
v_and_b32 v1, 63, v0
{KVMAP[G.opt.get("kfull", 3)]}
s_add_u32 s{sT+1}, s{sX}, {"s%d" % sJ if G.opt.get("rotk", 0) else 0}
s_and_b32 s{sT+1}, s{sT+1}, 7
s_lshl_b32 s{sT+1}, s{sT+1}, 5
v_add_u32 v21, s{sT+1}, v21
s_lshl_b32 s{sT+1}, s{sX}, 5
s_lshl_b32 s{sT+2}, s{sJ}, 3
v_add_u32 v22, s{sT+2}, v22
v_lshlrev_b32 v{fK}, 13, v22
v_lshl_add_u32 v{fK}, v21, 2, v{fK}
v_subrev_u32 v{fKh}, 3072, v{fK}
v_add_u32 v{fK4}, 4096, v{fK}
v_lshlrev_b32 v{fSK}, 4, v21
v_mul_u32_u24 v{fKVG}, {KP}, v21
v_lshl_add_u32 v{fKVG}, v22, 4, v{fKVG}
s_add_u32 s{sP}, s{sT+1}, s{sJ}""")
    for reg, size in ((SRD_K, S*D*2), (SRD_V, S*D*2), (SRD_H, S*D*2), (SRD_WG, D*F*2), (SRD_WU, D*F*2), (SRD_WD, D*F*2),
                      (SRD_WS, WS_SIZE), (SRD_O, S*D*2), (sQP, S*D*2)):
        p("s_mov_b32 s%d, 0x%x\ns_mov_b32 s%d, 0x00020000" % (reg + 2, size, reg + 3))
    p(f"""v_readfirstlane_b32 s{sW}, v2
s_lshl_b32 s{sT+2}, s{sP}, 13
v_lshlrev_b32 v{fH}, 5, v0
v_add_u32 v{fH}, s{sT+2}, v{fH}
s_xor_b32 s{sCT}, s{sJ}, {G.opt.get("rot", 0)}
s_and_b32 s{sCT}, s{sCT}, 7
{MAPS[G.opt.get("one", 1)]}
s_waitcnt lgkmcnt(0)""")
    KR, VR, SK, HA, HB_ = 48, 59, 68, 88, 98
    for i in range(3): p(f"buffer_load_dword v{KR+i}, v{fKh}, {srd(SRD_K)}, 0 offen offset:{1024*i}")
    for i in range(8): p(f"buffer_load_dword v{KR+3+i}, v{fK if i < 4 else fK4}, {srd(SRD_K)}, 0 offen offset:{1024*(i%4)}")
    p(f"global_load_dwordx4 v[{SK}:{SK+3}], v{fSK}, s[{sSKP}:{sSKP+1}]")
    for i in range(8): p(f"buffer_load_dword v{VR+i}, v{fK if i < 4 else fK4}, {srd(SRD_V)}, 0 offen offset:{1024*(i%4)}")
    p(f"""s_load_dword s{sTAG}, s[{SRD_WS}:{SRD_WS+1}], {WS_EPOCH}
s_lshl_b32 s{sT+1}, s{sP}, 2
s_load_dword s{sD0}, s[{sDP}:{sDP+1}], s{sT+1}""")
    if G.opt.get("ipf", 0):
        p(f"""s_lshl_b32 s{sT+2}, s{sJ}, 10
s_add_u32 s{sT+2}, s{sT+2}, 0x8000
v_and_b32 v{fPF}, 7, v0""")
    else:
        p(f"""s_getpc_b64 s[{sT+4}:{sT+5}]
s_lshl_b32 s{sT+2}, s{sJ}, 11
v_and_b32 v{fPF}, 15, v0""")
    p(f"""v_lshlrev_b32 v{fPF}, 7, v{fPF}
v_add_u32 v{fPF}, s{sT+2}, v{fPF}
global_load_dword a255, v{fPF}, s[{sT+4}:{sT+5}]""")
    if G.opt.get("kw", 0):
        p("v_mov_b32 v108, 0\nv_mov_b32 v109, 0\nv_mov_b32 v110, 0\nv_mov_b32 v111, 0")
        for pl in range(3): p(f"s_mov_b32 s{sT+2}, 0x{WS_KVG + 4096*pl:x}\nbuffer_store_dwordx4 v[108:111], v{fKVG}, {WS}, s{sT+2} offen sc1")
    TW = f"""v_min_u32 v21, 10, v1
v_mad_u32_u24 v21, v2, 11, v21
v_min_u32 v21, 42, v21
v_lshlrev_b32 v21, 7, v21
s_mul_i32 s{sT+2}, s2, 5504
buffer_load_dword a252, v21, {srd(SRD_WG)}, s{sT+2} offen
buffer_load_dword a253, v21, {srd(SRD_WU)}, s{sT+2} offen
buffer_load_dword a254, v21, {srd(SRD_WD)}, s{sT+2} offen""".split("\n")
    tw = G.opt.get("tw", 3)
    if tw == 1:
        for l in TW: p(l)
    LD = f"""buffer_load_dwordx4 v[{HA}:{HA+3}], v{fH}, {srd(SRD_H)}, 0 offen
buffer_load_dwordx4 v[{HA+4}:{HA+7}], v{fH}, {srd(SRD_H)}, 0 offen offset:16
buffer_load_dwordx2 v[{HA+8}:{HA+9}], v{fH}, {srd(SRD_H)}, 0 offen offset:32
buffer_load_dwordx4 v[{HB_}:{HB_+3}], v{fH}, {srd(SRD_H)}, 0 offen offset:4
buffer_load_dwordx4 v[{HB_+4}:{HB_+7}], v{fH}, {srd(SRD_H)}, 0 offen offset:20""".split("\n")
    A0 = M.early_lines() + [f"v_add_u32 v23, s{M.sOB}, v{M.vOA}", "v_add_u32 v22, 0x10000, v23"]
    ql = G.opt.get("ql", 0)
    if ql: A0[-2:] = [f"v_add_u32 v{QT8}, s{M.sOB}, v{M.vOA}", f"v_add_u32 v{QT8+4}, 0x10000, v{QT8}"]
    QL = [f"buffer_load_dwordx4 v[{QT8+4*P}:{QT8+4*P+3}], v{QT8+4*P}, {srd(sQP)}, 0 offen" for P in range(2)]
    for l in sprinkle(A0, LD, 4) + LD: p(l)
    if not ql: p(f"buffer_load_dwordx4 v[{QT8}:{QT8+3}], v23, {srd(sQP)}, 0 offen\nbuffer_load_dwordx4 v[{QT8+4}:{QT8+7}], v22, {srd(sQP)}, 0 offen")
    if tw == 2:
        for l in TW: p(l)
    A = f"""s_mov_b32 s{sDEAD}, 0
s_mov_b32 s{sSPIN}, 0
s_cmp_ge_u32 s{sC}, {0 if NOW[0] else 15}
s_cselect_b32 s{SRD_WG+2}, 0, s{SRD_WG+2}
s_cselect_b32 s{SRD_WU+2}, 0, s{SRD_WU+2}
s_mul_i32 s{sT+2}, s{sC}, 192
s_mul_i32 s{sWm}, s{sW}, {2*3072}""".split("\n")
    if G.stamps: A += ["s_mov_b32 s88, 0", "s_mov_b32 s89, 0"]
    for ph in range(3):
        A += f"""v_add_u32 v21, {64*ph}, v1
v_mul_u32_u24 v22, 5462, v21
v_lshrrev_b32 v22, 16, v22
v_mul_u32_u24 v23, 12, v22
v_sub_u32 v21, v21, v23
v_bfe_u32 v23, v22, 2, 1
v_lshlrev_b32 v23, 1, v23
v_xor_b32 v21, v21, v23
v_mul_u32_u24 v22, 2752, v22
v_lshl_add_u32 v22, v21, 4, v22
v_add_u32 v{fWD+ph}, s{sT+2}, v22""".split("\n")
    HN = G.opt.get("hint", 0)
    if HN:
        A += G.hint_init() + [f"v_mov_b32 v{108+i}, 0" for i in range(4)]
        A += [f"buffer_store_dwordx4 v[108:111], v{M.vL16}, {WS}, s{G.sHO} offen sc1"]
    k3 = G.opt.get("kfull", 3) == 3
    L_KX = 43008
    if k3:
        A += f"""v_and_b32 v21, 31, v0
v_lshrrev_b32 v22, 5, v0
v_add_u32 v22, v22, v21
v_and_b32 v22, 7, v22
v_lshlrev_b32 v22, 4, v22
v_lshl_add_u32 v{fRSW}, v21, 7, v22
v_lshrrev_b32 v21, 3, v0
v_add_u32 v22, v0, v21
v_and_b32 v22, 7, v22
v_lshlrev_b32 v22, 4, v22
v_lshl_add_u32 v{fRSR}, v21, 7, v22
s_add_u32 s{sT+2}, s{sX}, {"s%d" % sJ if G.opt.get("rotk", 0) else 0}
s_and_b32 s{sT+2}, s{sT+2}, 7
s_lshl_b32 s{sT+2}, s{sT+2}, 5
v_add_u32 v21, s{sT+2}, v21
v_mul_u32_u24 v{fKVG}, {KP}, v21
v_and_b32 v22, 7, v0
v_lshl_add_u32 v{fKVG}, v22, 4, v{fKVG}
s_lshl_b32 s{sT+2}, s{sJ}, 7
v_add_u32 v{fKVG}, s{sT+2}, v{fKVG}""".split("\n")
    nA = len(A)
    A += [f"v_mov_b32 v{POI+i}, -1" for i in range(4)]
    A += f"""v_bfe_u32 v21, v0, 4, 1
v_bfe_u32 v22, v0, 5, 1
v_and_b32 v23, 15, v0
v_bfe_u32 v{fCO}, v0, 3, 1
v_lshl_add_u32 v{fCO}, v2, 2, v{fCO}
v_and_b32 v{fKVR}, 3, v0
v_lshl_add_u32 v{fCO}, v{fCO}, 2, v{fKVR}
v_mul_u32_u24 v{fCO}, {YP}, v{fCO}
v_lshl_add_u32 v{fCO}, v21, 6, v{fCO}
v_lshl_add_u32 v{fCO}, v22, 4, v{fCO}
v_bfe_u32 v{fKVR}, v0, 2, 1
v_lshl_add_u32 v{fCO}, v{fKVR}, 5, v{fCO}
s_lshl_b32 s{sT+2}, s{sP}, 7
v_add_u32 v{fCO}, s{sT+2}, v{fCO}
v_lshlrev_b32 v{fKVR}, 5, v23
v_lshl_add_u32 v{fKVR}, v22, 4, v{fKVR}
v_xor_b32 v21, 1, v21
v_lshl_add_u32 v{fKVR}, v21, 3, v{fKVR}
v_lshl_add_u32 v{fKVR}, v2, 10, v{fKVR}
v_lshrrev_b32 v21, 7, v0
v_mul_u32_u24 v{fTW}, {TC_CH}, v21
v_and_b32 v22, 127, v0
v_lshl_add_u32 v{fTW}, v22, 5, v{fTW}
v_cmp_eq_u32 s[{sM+2}:{sM+3}], 0, v22
v_bfe_u32 v21, v0, 5, 1
v_mul_u32_u24 v{fUZ}, {U_CH}, v21
v_and_b32 v22, 31, v0
v_lshl_add_u32 v{fUZ}, v22, 4, v{fUZ}
v_lshlrev_b32 v{fT16}, 4, v0""".split("\n")
    A += M.setup_early()
    G.late = M.setup_late()
    A2 = f"""v_bfe_u32 v21, v0, 2, 4
v_mul_u32_u24 v{fWT}, 192, v21
v_bfe_u32 v22, v0, 4, 1
v_xor_b32 v23, v22, v2
v_lshl_add_u32 v{fWT+1}, v23, 5, v{fWT}
v_and_b32 v23, 3, v0
v_lshl_add_u32 v{fWT+1}, v23, 3, v{fWT+1}
v_lshlrev_b32 v22, 1, v22
v_add_u32 v23, 8, v2
v_xor_b32 v23, v23, v22
v_lshl_add_u32 v{fWT+2}, v23, 4, v{fWT}
v_and_b32 v23, 1, v0
v_lshl_add_u32 v{fWT+2}, v23, 3, v{fWT+2}
v_bfe_u32 v23, v0, 1, 1
v_mul_u32_u24 v23, {WUP}, v23
v_add_u32 v{fWT+2}, v{fWT+2}, v23
v_add_u32 v{fWT+2}, {WH[0]}, v{fWT+2}
v_add_u32 v{fWT}, {WH[0]}, v{fWT+1}
v_add_u32 v{fWT+1}, {WH[0] + WUP}, v{fWT+1}""".split("\n")
    A2 += [f"v_add_u32 v{fWT+3+t}, {WH[1]-WH[0]}, v{fWT+t}" for t in range(3)]
    A2 += f"""v_lshl_add_u32 v{fRSW}, v2, 13, v{M.vL16}
v_lshl_add_u32 v{fRSR}, v2, 11, v{M.vL16}
v_mul_u32_u24 v22, {HF_PITCH}, v2
v_add_u32 v{fHP}, v{M.vL16}, v22
v_and_b32 v23, 15, v0
v_add_u32 v22, 1, v23
v_and_b32 v21, 3, v22
v_mul_u32_u24 v{fCA}, {TC_STRIDE}, v21
v_and_b32 v22, 28, v22
v_bfe_u32 v21, v0, 4, 2
v_lshl_add_u32 v{fCB}, v23, 1, v21
v_lshlrev_b32 v{fCB}, 4, v{fCB}
v_lshlrev_b32 v21, 3, v21
v_sub_u32 v22, v22, v21
v_add_u32 v22, 8, v22
v_lshl_add_u32 v{fCA}, v22, 1, v{fCA}
s_lshr_b32 s{sT+2}, s{sW}, 1
s_and_b32 s{sT+3}, s{sW}, 1
s_mul_i32 s{sT+4}, s{sT+2}, {TC_CH}
s_lshl_b32 s{sT+5}, s{sT+3}, 8
s_add_u32 s{sT+4}, s{sT+4}, s{sT+5}
v_add_u32 v{fCA}, s{sT+4}, v{fCA}
s_mul_i32 s{sT+4}, s{sT+2}, {U_CH}
s_sub_u32 s{sT+4}, s{sT+4}, s{sT+5}
s_add_u32 s{sT+4}, s{sT+4}, {L_U}
v_add_u32 v{fCB}, s{sT+4}, v{fCB}
v_and_b32 v21, 7, v0
v_lshl_add_u32 v22, v2, 3, v21
v_lshlrev_b32 v{fFA}, 10, v22
s_lshr_b32 s{sT+2}, s{sR0}, 5
s_lshl_b32 s{sT+2}, s{sT+2}, 15
s_lshl_b32 s{sT+3}, s{sCT}, 7
s_add_u32 s{sT+2}, s{sT+2}, s{sT+3}
v_add_u32 v{fFA}, s{sT+2}, v{fFA}
v_lshlrev_b32 v{fFB}, 15, v2
v_lshl_add_u32 v{fFB}, v21, 10, v{fFB}
v_bfe_u32 v21, v0, 3, 1
v_lshl_add_u32 v{fFB}, v21, {13 if G.opt.get("one", 1) else 7}, v{fFB}
s_and_b32 s{sT+2}, s{sJ}, {16 if G.opt.get("one", 1) else 24}
s_lshl_b32 s{sT+2}, s{sT+2}, 10
s_and_b32 s{sT+3}, s{sX}, {7 if G.opt.get("one", 1) else 6}
s_lshl_b32 s{sT+3}, s{sT+3}, 7
s_add_u32 s{sT+2}, s{sT+2}, s{sT+3}
v_add_u32 v{fFB}, s{sT+2}, v{fFB}
v_bfe_u32 v21, v0, 4, 1
v_cmp_eq_u32 vcc, 1, v21
v_cndmask_b32 v{fFA}, v{fFB}, v{fFA}, vcc""".split("\n")
    WQ = w_round(0) + w_round(1)
    def take(n):
        o = []
        while WQ and (n > 0 or "\n" not in WQ[0]):
            if "\n" in WQ[0]: n -= 1
            o.append(WQ.pop(0))
        return o
    lt = G.opt.get("late", 2)
    if lt == 1: A += G.late; G.late = []
    if lt == 2: A2 += G.late; G.late = []
    assert not (k3 and lt >= 3)
    if lt == 3: A += A2 + G.late; G.late = []; A2 = []
    if lt == 4: A += A2; A2 = G.late; G.late = []
    u = take(G.opt.get("n0", 0))
    for l in sprinkle(A, u, G.opt.get("n0e", 14), nA) + u: p(l)
    print("front: A", len(A), "A2", len(A2))
    G.stamp("issued")
    if G.stamps and "kvin" in G.skip:
        p(f"v_mov_b32 v21, v{VR+7}"); G.stamp("kvin")
    KU, VU, WU_, AC, KD = 108, 130, 146, 154, 172
    for t in range(4):
        s0, s1 = SK + t // 2, SK + 2 + t // 2
        if t % 2 == 0: p(f"v_lshlrev_b32 v{WU_+2*t}, 16, v{s0}\nv_lshlrev_b32 v{WU_+2*t+1}, 16, v{s1}")
        else: p(f"v_and_b32 v{WU_+2*t}, 0xffff0000, v{s0}\nv_and_b32 v{WU_+2*t+1}, 0xffff0000, v{s1}")
    for i in range(11): p(f"v_lshlrev_b32 v{KU+2*i}, 16, v{KR+i}\nv_and_b32 v{KU+2*i+1}, 0xffff0000, v{KR+i}")
    if ql == 1:
        for l in QL: p(l)
    if tw == 5:
        for l in TW: p(l)
    for s in range(8):
        p(f"v_pk_mul_f32 v[{AC+2*s}:{AC+2*s+1}], v[{KU+2*s}:{KU+2*s+1}], v[{WU_+6}:{WU_+7}]")
    for t in (2, 1, 0):
        for s in range(8):
            k = KU + 2 * (s + 3 - t)
            p(f"v_pk_fma_f32 v[{AC+2*s}:{AC+2*s+1}], v[{k}:{k+1}], v[{WU_+2*t}:{WU_+2*t+1}], v[{AC+2*s}:{AC+2*s+1}]")
    p(f"""s_waitcnt lgkmcnt(0)
s_mul_i32 s{sTAG}, s{sTAG}, 0x9E3779B1
s_add_u32 s{sTAG}, s{sTAG}, 0x7F4A7C15
s_max_u32 s{sTAG}, s{sTAG}, 1
v_mov_b32 v{KD+3}, s{sTAG}
v_mov_b32 v{KD+7}, s{sTAG}
v_mov_b32 v{KD+10}, s{sTAG}
v_mov_b32 v{KD+11}, s{sTAG}""")
    for pl in range(3):
        for s in range(3 * pl, min(8, 3 * pl + 3)):
            p(f"v_lshlrev_b32 v{VU+2*s}, 16, v{VR+s}\nv_and_b32 v{VU+2*s+1}, 0xffff0000, v{VR+s}")
        for s in range(3 * pl, min(8, 3 * pl + 3)):
            p(f"v_pk_mul_f32 v[{AC+2*s}:{AC+2*s+1}], v[{AC+2*s}:{AC+2*s+1}], v[{VU+2*s}:{VU+2*s+1}]")
        for s in range(3 * pl, min(8, 3 * pl + 3)):
            p(f"v_cvt_pk_bf16_f32 v{KD+4*pl+s-3*pl}, v{AC+2*s}, v{AC+2*s+1}")
        if k3:
            p(f"ds_write_b128 v{fRSW}, v[{KD+4*pl}:{KD+4*pl+3}] offset:{L_KX + 4096*pl}"); continue
        p(f"s_mov_b32 s{sT+2}, 0x{WS_KVG + 4096*pl:x}")
        p(f"buffer_store_dwordx4 v[{KD+4*pl}:{KD+4*pl+3}], v{fKVG}, {WS}, s{sT+2} offen {SC('g')}")
    if k3:
        p("s_waitcnt lgkmcnt(0)\ns_barrier")
        for pl in range(3): p(f"ds_read_b128 v[{KD+12+4*pl}:{KD+15+4*pl}], v{fRSR} offset:{L_KX + 4096*pl}")
        for pl in range(3): p(f"s_mov_b32 s{sT+2}, 0x{WS_KVG + 4096*pl:x}\nbuffer_store_dwordx4 v[{KD+12+4*pl}:{KD+15+4*pl}], v{fKVG}, {WS}, s{sT+2} offen {SC('g')}")
    if ql == 2:
        for l in QL: p(l)
    if HN: p(G.hint_st(0, KD + 3))
    if tw == 3:
        for l in TW: p(l)
    G.stamp("kvst")
    if G.stamps and "kvack" in G.skip:
        p("s_waitcnt vmcnt(0)"); G.stamp("kvack")
    E0, E1, Z = 140, 148, 156
    X = (72, 80); QS = 240
    B = [f"v_permlane16_swap_b32 v{QT8+4*P}, v{QT8+4*P+2}" for P in range(2)] + [f"v_permlane16_swap_b32 v{QT8+4*P+1}, v{QT8+4*P+3}" for P in range(2)]
    B += M.unpack(X[0], QT8, 8) + M.publish(X, 0)[:-1] + [f"v_mov_b32 v{QS}, v{M.SS}"]
    B += M.s1_addr(QS + 2, QS + 1) + M.s1_both(QS + 1, QS + 2)
    B += [f"s_and_b32 s{sD1}, s{sD0}, 0xffff0000", f"s_lshl_b32 s{sD0}, s{sD0}, 16"]
    G.bconv = []; G.blate = []
    if G.opt.get("bq", 0):
        i0 = B.index("v_lshrrev_b32 v21, 1, v2")
        G.blate = B[:i0 - 1]; B = B[i0:]
    if G.opt.get("bc", 0):
        i0 = B.index("v_lshrrev_b32 v21, 1, v2")
        R_, T_ = 210, 214
        bq = M.spaced(B[:4])
        for P in range(2):
            for k in range(4):
                q = QT8 + 4*P + k
                bq += [f"v_lshlrev_b32 v{T_}, 16, v{q}", f"v_and_b32 v{T_+1}, 0xffff0000, v{q}"]
                if k == 0: bq += [f"v_add_f32 v{R_+2*P}, v{T_}, v{T_+1}", f"v_mul_f32 v{R_+2*P+1}, v{T_}, v{T_}"]
                else: bq += [f"v_add_f32 v{R_+2*P}, v{R_+2*P}, v{T_}", f"v_fmac_f32 v{R_+2*P+1}, v{T_}, v{T_}", f"v_add_f32 v{R_+2*P}, v{R_+2*P}, v{T_+1}"]
                bq += [f"v_fmac_f32 v{R_+2*P+1}, v{T_+1}, v{T_+1}"]
        bq += M.spaced(M.fold(R_, False)) + M.st_base(sT + 2, WS_STQ) + [f"!buffer_store_dword v{R_}, v{M.vSTW}, {WS}, s{sT+2} offen {SC('g')} @es"]
        G.bconv = bq
        B = B[i0:]
    ES = []
    for qq in range(2):
        ES += [f"s_mov_b32 s{sT+2}, 0x{WS_YB + qq*8*YP:x}", f"buffer_store_dwordx4 v[{POI}:{POI+3}], v{fCO}, {WS}, s{sT+2} offen sc1 @es"]
    ES += M.xtile_base(sT + 2, WS_X1B) + [f"buffer_store_dwordx4 v[{POI}:{POI+3}], v{M.vFO}, {WS}, s{sT+2+P} offen {SC('c')} @es" for P in range(2)]
    ES += M.st_base(sT + 2, WS_STQ) + ([] if G.bconv else [f"buffer_store_dword v{POI if G.blate else QS}, v{M.vSTW}, {WS}, s{sT+2} offen {SC('g')} @es"]) + [
           f"s_add_u32 s{sT+2}, s{sT+2}, 0x{WS_STA[0]-WS_STQ:x}"] + [f"buffer_store_dword v{POI}, v{QS+1}, {WS}, s{sT+2} offen {SC('c')} @es"]
    if G.opt.get("fwarm", 0):
        ES += [f"s_lshl_b32 s{sT+2}, s{sR0}, 10", f"s_lshl_b32 s{sT+3}, s{sC}, 7", f"s_add_u32 s{sT+2}, s{sT+2}, s{sT+3}", f"s_add_u32 s{sT+2}, s{sT+2}, 0x{WS_HFL:x}",
               "v_and_b32 v21, 31, v0", "v_lshlrev_b32 v21, 2, v21", "v_bfe_u32 v22, v0, 5, 1", "v_lshl_add_u32 v21, v22, 11, v21", "v_mov_b32 v22, 0",
               f"buffer_store_dword v22, v21, {WS}, s{sT+2} offen sc1 @es"]
    G.es = ES
    G.flag = [f"s_lshl_b32 s{sT+2}, s{sW}, 15", f"s_lshl_b32 s{sT+3}, s2, 7", f"s_add_u32 s{sT+2}, s{sT+2}, s{sT+3}",
              f"s_add_u32 s{sT+2}, s{sT+2}, 0x{WS_FLAGS:x}", f"v_mov_b32 v{QS}, s{sTAG}", f"v_lshlrev_b32 v{QS+1}, 2, v1", "@wv es",
              f"s_mov_b32 exec_hi, 0\nbuffer_store_dword v{QS}, v{QS+1}, {WS}, s{sT+2} offen sc1\ns_mov_b32 exec_hi, -1"]
    C = [f"v_alignbit_b32 v{E0+k}, v{HA+k+1}, v{HA+k}, 16" for k in range(8)] + [f"v_alignbit_b32 v{E1+k}, v{HA+k+2}, v{HA+k+1}, 16" for k in range(8)]
    for c, r in enumerate((HA, E0, HB_, E1)):
        C += [f"ds_write_b128 v{fTW}, v[{r}:{r+3}] offset:{L_TC + c*TC_STRIDE + 32}", f"ds_write_b128 v{fTW}, v[{r+4}:{r+7}] offset:{L_TC + c*TC_STRIDE + 48}"]
    C += [f"v_mov_b32 v{Z+i}, 0" for i in (0, 1, 2, 3, 4, 5, 6, 8, 9, 10, 12, 13)]
    C += [f"v_lshlrev_b32 v{Z+7}, 16, v{HA}", f"v_mov_b32 v{Z+11}, v{HA}", f"v_lshlrev_b32 v{Z+14}, 16, v{HA}", f"v_mov_b32 v{Z+15}, v{E0}",
          f"ds_write_b128 v{fUZ}, v[{Z}:{Z+3}] offset:{L_U}", f"s_mov_b64 exec, s[{sM+2}:{sM+3}]"]
    for c in range(4):
        C += [f"ds_write_b128 v{fTW}, v[{Z}:{Z+3}] offset:{L_TC + c*TC_STRIDE}", f"ds_write_b128 v{fTW}, v[{Z+4*c}:{Z+4*c+3}] offset:{L_TC + c*TC_STRIDE + 16}"]
    C += ["s_mov_b64 exec, -1"]
    if G.opt.get("esearly"):
        for l in B + ES: p(l)
        B = []; G.es = []
    ie = C.index(f"s_mov_b64 exec, s[{sM+2}:{sM+3}]")
    u = take(G.opt.get("nc", 3))
    for l in sprinkle(C[:ie], u, 12) + u + C[ie:]: p(l)
    G.stamp("cdone")
    p(f"s_mul_i32 s{sT+13}, s{sP}, {KP}\ns_add_u32 s{sT+13}, s{sT+13}, 0x{WS_KVG:x}\ns_add_u32 s{sT+14}, s{sT+13}, 4096\ns_add_u32 s{sT+15}, s{sT+13}, 8192")
    ld = [f"buffer_load_dwordx4 v[{GR+4*pl}:{GR+4*pl+3}], v{fT16}, {WS}, s{sT+13+pl} offen sc1" for pl in range(3)]
    chk = [f"v_xor_b32 v21, s{sTAG}, v{GR+3}", f"v_xor_b32 v22, s{sTAG}, v{GR+7}", f"v_xor_b32 v23, s{sTAG}, v{GR+11}",
           f"v_or3_b32 v21, v21, v22, v23", f"v_cmp_ne_u32 vcc, 0, v21"]
    work = (A2 + B if G.opt.get("blast", 0) else B + A2) + [f"s_mov_b32 s{sT+9}, 0x05040100", f"s_mov_b32 s{sT+10}, 0x07060302"]
    npre = G.opt.get("kpre", 200)
    pre, mid = work[:npre], work[npre:]
    while mid and mid[0].startswith(("s_cselect", "s_addc")): pre.append(mid.pop(0))
    if HN:
        ho = [32768*i for i in range(8)]
        p(f"s_lshl_b32 s14, s{sW}, 18\ns_lshl_b32 s13, s{sX}, 12\ns_add_u32 s14, s14, s13\ns_lshr_b32 s13, s{sJ}, 3\ns_lshl_b32 s13, s13, 10\ns_add_u32 s14, s14, s13")
        k0 = G.opt.get("hk", 60)
        pre = pre[:len(pre) - k0] + G.hint_ld(14, ho) + pre[len(pre) - k0:]
    u0 = take(G.opt.get("n1a", 4))
    for l in sprinkle(pre, u0, max(1, len(pre) // max(1, G.opt.get("n1a", 4)))) + u0: p(l)
    u = take(G.opt.get("n1", 2))
    G.stamp("pre")
    if HN:
        for l in G.hint_wait(14, ho, "hint"): p(l)
    G.stamp("att")
    if G.opt.get("esmid", 1):
        mid = mid + G.es; G.es = []
    mid = sprinkle(mid, u, max(1, len(mid) // max(1, G.opt.get("n1", 2)))) + u
    if tw == 4: mid = TW + mid
    if ql == 3:
        assert not any(f"v{QT8}" in l for l in pre)
        mid = QL + mid
    G.w_left = WQ
    G.poll(ld, [], chk, "kvg", mid)
    G.stamp("kvret")
    if tw == 6:
        for l in TW: p(l)
    if G.opt.get("esearly"):
        for l in G.flag: p(l)
        G.flag = []
    dpos = lambda s: GR + 4 * (s // 3) + s % 3
    UO = 124
    for ch in range(2):
        for jj in range(4):
            p(f"v_perm_b32 v{UO+4*ch+jj}, v{dpos(6-2*jj)}, v{dpos(7-2*jj)}, s{sT+9+ch}")
        p(f"ds_write_b128 v{fT16}, v[{UO+4*ch}:{UO+4*ch+3}] offset:{L_U + ch*U_CH + 512}")
    p("s_waitcnt lgkmcnt(0)\ns_barrier")
    G.esv = G.opt.get("esv", 2)
    G.stamp("kvg")

def conv_order(it):
    if it == 3 or ASC[0]: return [(q, r) for q in range(8) for r in range(q + 1)]
    left = {q: list(range(q + 1)) for q in range(8)}
    out = []
    while any(left.values()):
        recent = [q for (q, _) in out[-2:]]
        n = 36 - len(out)
        cand = [q for q in left if left[q] and q not in recent] or [q for q in left if left[q] and q != out[-1][0]] or [q for q in left if left[q]]
        urgent = [q for q in cand if 3*len(left[q]) - 2 >= n]
        if urgent: q = max(urgent, key=lambda q: len(left[q]))
        elif it == 0: q = min(cand, key=lambda q: (min(max(r, q - r) for r in left[q]), -len(left[q])))
        elif it == 3: q = min(cand, key=lambda q: len(left[q])) if len(out) % 3 == 2 else max(cand, key=lambda q: len(left[q]))
        else: q = max(cand, key=lambda q: len(left[q]))
        r = min(left[q], key=lambda r: max(r, q - r))
        left[q].remove(r); out.append((q, r))
    return out

def conv(G):
    import gen_mlp as M
    p = G.p
    ACC = 48
    FA = (80, 144); FB = (112, 176)
    FLG = 208
    def loads(it):
        eo = 2 * it + 1
        L = []
        for r in range(8):
            L.append(f"ds_read_b128 v[{FB[it%2]+4*r}:{FB[it%2]+4*r+3}], v{fCB} offset:{512*r - 32*eo + 512}")
            L.append(f"ds_read_b64 v[{FA[it%2]+4*r}:{FA[it%2]+4*r+1}], v{fCA} offset:{512*r + 32*eo}")
            L.append(f"ds_read_b64 v[{FA[it%2]+4*r+2}:{FA[it%2]+4*r+3}], v{fCA} offset:{512*r + 32*eo + 8}")
        return L
    for l in loads(0)[:12]: p(l)
    G.fl_ld = [f"!buffer_load_dword v{FLG}, v{fFA}, {WS}, s{sT+10} offen sc1"]
    G.fl_chk = [f"v_cmp_ne_u32 vcc, s{sTAG}, v{FLG}"]
    pois = [f"s_mul_i32 s{sT+8}, s{sR0}, {HF_PITCH}", f"s_mul_i32 s{sT+12}, s{sC}, 3072",
            f"s_add_u32 s{sT+8}, s{sT+8}, s{sT+12}", f"s_add_u32 s{sT+8}, s{sT+8}, 0x{WS_HF[0]:x}",
            f"s_cmp_eq_u32 s{sC}, 15\ns_cselect_b32 s{sT+8}, 0x{WS_SIZE:x}, s{sT+8}\ns_nop 0"]
    for h in range(2):
        pois += [f"buffer_store_dwordx4 v[{POI}:{POI+3}], v{fHP}, {WS}, s{sT+8} offen offset:{1024*i} {SC('cp0')} @hp" for i in range(3)]
        pois += [f"s_add_u32 s{sT+8}, s{sT+8}, {4*HF_PITCH}"]
    W = Weaver(vm_space=G.opt.get("vsc", 5))
    sw = [(0, t) for t in G.w_left]
    sq = []; st = []
    for it in range(4):
        order = conv_order(it); seen = set(); mf = []
        for (q, r) in order:
            mf.append(mfma(ACC + 4*q, vr(FA[it%2] + 4*r, 4), vr(FB[it%2] + 4*(q - r), 4), "0" if (it == 0 and q not in seen) else None))
            seen.add(q)
        s0 = []
        if it == 0: s0 += [(i // 2, t) for i, t in enumerate(loads(0)[12:])]
        if it < 3: s0 += [(8 + i, t) for i, t in enumerate(loads(it + 1))]
        if it == 0:
            n = 0
            for t in G.es:
                if t.startswith("buffer"): sq.append((2 + G.esv*n, "!" + t)); n += 1
                else: sq.append((0, t))
        if it == 0: sq += [(G.opt.get("bcg", 10), t) for t in G.bconv]
        flg = G.opt.get("flg", 90 if G.bconv else 20)
        if it == flg // 36: sq += [(flg % 36, t) for t in G.flag]
        if it == 3 and G.opt.get("wpf", 0) == 1: sq += [(10, t) for t in wd_l2(G)]
        if it == 3 and G.opt.get("wsl", 2) == 1: sq += [(10, t) for t in wd_slow(G)]
        hpa = G.opt.get("hpa", 80)
        if it == hpa // 36 and not M.HFL(G): sq += [(hpa % 36, t) for t in pois]
        if it == 3: sq += [(8, f"s_mov_b32 s{sT+10}, 0x{WS_FLAGS:x}")] + ([(G.opt.get("fll", 40), t) for t in G.fl_ld] if G.opt.get("fll", 40) < 36 else [])
        early = G.opt.get("t0e", 1)
        if it == 2 and early:
            x2 = G.opt.get("x2", 2)
            out = W.run(mf[:x2], [s0, st, sq, sw])
            while any("@w0" in t for (_, t) in sw): out.append(sw.pop(0)[1]); print("forced w0")
            out += ["@wv w0", "s_barrier"]
            st += [(i, t) for i, t in enumerate(w_tr(0))]
            out += W.run(mf[x2:], [s0, st, sq, sw], flush=[0, 1])
        elif it == 3:
            out = W.run(mf[:1], [s0, st, sq, sw])
            while any("@w0" in t for (_, t) in sw): out.append(sw.pop(0)[1]); print("forced w0")
            out += ["@wv w0", "s_waitcnt lgkmcnt(0)", "s_barrier"]
            sT1 = [] if early else [(i, t) for i, t in enumerate(w_tr(0))]
            if early: sw += [(0, t) for t in w_round(2)]
            for g, q in sorted((max(i for i, (qq, _) in enumerate(order) if qq == q), q) for q in range(8)):
                st.append((g + 7, f"ds_write_b128 v{fRSW}, v[{ACC+4*q}:{ACC+4*q+3}] offset:{L_RS + 1024*q}"))
            out += W.run(mf[1:], [st, sT1, sq, sw], flush=[1, 0, 2])
        else:
            out = W.run(mf, [s0, st, sq, sw], flush=[0])
        if G.opt.get("cnot"): out = [l for l in out if "_tr_b16" not in l]
        if G.opt.get("cnob"): out = [l for l in out if l != "s_barrier"]
        if G.opt.get("cnow"): out = [l for l in out if not l.startswith("ds_write")]
        if G.opt.get("cnoa"): out = [l for l in out if not l.startswith("ds_read_b64 ")]
        if G.opt.get("cnod"): out = [l for l in out if not l.startswith("ds_read_b128")]
        for l in out: p(l)
        G.stamp(f"it{it}")
    while any("@w1" in t for (_, t) in sw): p(sw.pop(0)[1]); print("forced w1")
    rest = [t for (_, t) in sw] if G.opt.get("t0e", 1) else w_round(2)
    print("conv: W units left", sum("\n" in t for t in rest))
    G.stamp("convloop")
    p("@wv w1\ns_waitcnt lgkmcnt(0)\ns_barrier")
    T = 80; KV = 112; Y = 136; YO = 160; TM = 168
    E = []
    for qq in range(2):
        for sw_ in range(4):
            E.append(f"ds_read_b128 v[{T+16*qq+4*sw_}:{T+16*qq+4*sw_+3}], v{fRSR} offset:{L_RS + 8192*sw_ + 1024*qq}")
        for ch in range(2):
            E.append(f"ds_read_b64 v[{KV+4*qq+2*ch}:{KV+4*qq+2*ch+1}], v{fKVR} offset:{L_U + ch*U_CH + 512 + 512*qq}")
    for qq in range(2):
        for ch in range(2):
            a0 = T + 16*qq + 8*ch; y = Y + 8*qq + 4*ch; kv = KV + 4*qq + 2*ch; o = YO + 4*qq + 2*ch
            E += [f"v_pk_add_f32 v[{y+r}:{y+r+1}], v[{a0+r}:{a0+r+1}], v[{a0+4+r}:{a0+5+r}]" for r in (0, 2)]
            E += [f"v_and_b32 v{TM}, 0xffff0000, v{kv+1}", f"v_lshlrev_b32 v{TM+1}, 16, v{kv+1}", f"v_and_b32 v{TM+2}, 0xffff0000, v{kv}", f"v_lshlrev_b32 v{TM+3}, 16, v{kv}"]
            E += [f"v_pk_fma_f32 v[{y+r}:{y+r+1}], v[{TM+r}:{TM+r+1}], s[{sD0}:{sD1}], v[{y+r}:{y+r+1}] op_sel:[0,{ch},0] op_sel_hi:[1,{ch},1]" for r in (0, 2)]
            E += [f"v_cvt_pk_bf16_f32 v{o}, v{y}, v{y+1}", f"v_cvt_pk_bf16_f32 v{o+1}, v{y+2}, v{y+3}"]
        o = YO + 4*qq
        E += [f"s_mov_b32 s{sT+2}, 0x{WS_YB + qq*8*YP:x}", f"v_permlane16_swap_b32 v{o}, v{o+2}", f"v_permlane16_swap_b32 v{o+1}, v{o+3}",
              f"buffer_store_dwordx4 v[{o}:{o+3}], v{fCO}, {WS}, s{sT+2} offen sc1"]
    for l in E: p(l)
    if G.opt.get("hint", 0): p(f"v_mov_b32 v{M.vTG}, s{sTAG}\n" + G.hint_st(1, M.vTG))
    G.stamp("yst")
    if G.stamps and "yack" in G.skip:
        p("s_waitcnt vmcnt(0)"); G.stamp("yack")
    G.w_rest = rest
    G.pois = pois

def wd_l2(G):
    return [f"s_mul_i32 s{sT+1}, s{sJ}, 44032", "v_lshlrev_b32 v242, 7, v0", f"buffer_load_dword a254, v242, {srd(SRD_WD)}, s{sT+1} offen",
            "v_min_u32 v242, 87, v0", "v_lshlrev_b32 v242, 7, v242", f"s_add_u32 s{sT+1}, s{sT+1}, 32768", f"buffer_load_dword a255, v242, {srd(SRD_WD)}, s{sT+1} offen"]

def wd_slow(G):
    return [f"s_lshr_b32 s{sT+1}, s{SRD_WD}, 7", f"s_sub_u32 s{sT+1}, 3, s{sT+1}", f"s_and_b32 s{sT+1}, s{sT+1}, 7", f"s_lshl_b32 s{sT+1}, s{sT+1}, 7",
            f"s_mul_i32 s13, s{sJ}, 44032", f"s_add_u32 s{sT+1}, s{sT+1}, s13", "v_min_u32 v242, 10, v1", "v_mad_u32_u24 v242, v2, 11, v242",
            "v_min_u32 v242, 42, v242", "v_lshlrev_b32 v242, 10, v242", f"buffer_load_dword a254, v242, {srd(SRD_WD)}, s{sT+1} offen"]

def handover(G):
    import gen_mlp as M
    p = G.p
    rest = G.w_rest
    X, TT, PT, YU, VY = (72, 80), (88, 96), 104, 144, 160
    if G.opt.get("fll", 40) >= 36:
        for l in G.fl_ld: p(l)
    if G.blate:
        for l in M.st_base(sT + 11, WS_STQ) + G.blate + [f"buffer_store_dword v{M.SS}, v{M.vSTW}, {WS}, s{sT+11} offen {SC('g')}"]: p(l)
    for l in w_tr(1): p(l)
    ydma = [f"s_add_u32 m0, s{sT+9}, {M.L_Y}\nbuffer_load_dwordx4 v{M.vL16}, {WS}, s{sT+4} offen offset:{1024*P} sc1 lds @yr" for P in range(2)]
    H = f"""s_lshr_b32 s{sT+4}, s{sR0}, 1
s_add_u32 s{sT+4}, s{sT+4}, s{sHB}
s_and_b32 s{sT+5}, s{sW}, 2
s_add_u32 s{sT+4}, s{sT+4}, s{sT+5}
s_mul_i32 s{sT+4}, s{sT+4}, {YP}
s_and_b32 s{sT+5}, s{sW}, 1
s_lshl_b32 s{sT+5}, s{sT+5}, 11
s_add_u32 s{sT+4}, s{sT+4}, s{sT+5}
s_lshl_b32 s{sT+5}, s{sCT}, 12
s_add_u32 s{sT+4}, s{sT+4}, s{sT+5}
s_add_u32 s{sT+4}, s{sT+4}, 0x{WS_YB:x}
s_lshl_b32 s{sT+9}, s{sW}, 11""".split("\n") + M.layer_scalars(0) + ([] if G.blate else M.unpack(X[0], QT8, 8))
    H += f"""v_mov_b32 v{M.vTG}, s{sTAG}
s_cmp_eq_u32 s{sW}, 0
s_cselect_b32 s{M.sLM}, -1, 0
s_mov_b32 s{M.sLM+1}, 0
v_bfe_u32 v21, v0, 2, 4
v_lshlrev_b32 v21, 6, v21
v_and_b32 v22, 3, v0
v_lshl_add_u32 v21, v22, 3, v21
v_lshl_add_u32 v21, v2, 11, v21
v_lshl_add_u32 v22, v2, 11, v{M.vL16}""".split("\n")
    H = G.late + M.s1_addr() + [f"v_mov_b32 v{ONE+i}, 0x3f803f80" for i in range(4)] + M.xtile_base(sT + 2, WS_X1B) + M.st_base(sT + 11, WS_STQ) + H
    def take(n):
        o = []
        while rest and (n > 0 or "\n" not in rest[0]):
            if "\n" in rest[0]: n -= 1
            o.append(rest.pop(0))
        return o
    u = take(G.opt.get("ny", 4))
    for l in sprinkle(H, u, G.opt.get("he", 14), 2) + u: p(l)
    HN = G.opt.get("hint", 0)
    if HN:
        ho = [32768*i + 128 for i in range(16)]
        p(f"s_and_b32 s14, s{sW}, 1\ns_lshl_b32 s14, s14, 19\ns_lshl_b32 s13, s{sCT}, 12\ns_add_u32 s14, s14, s13\ns_lshr_b32 s13, s{sX}, 1\ns_lshl_b32 s13, s13, 10\ns_add_u32 s14, s14, s13")
        p("s_waitcnt lgkmcnt(0)")
        for l in G.hint_ld(14, ho): p(l)
    W = Weaver(vm_space=G.opt.get("vsy", 5))
    for l in W.run(w_cs(0), [[(0, t) for t in take(G.opt.get("ny2", 2))]], flush=[0]): p(l)
    lf, lb = G.add_fix(G.fl_ld, G.fl_chk, "st")
    for l in G.fl_chk: p(l)
    p(f"s_cbranch_vccnz {lf}\n{lb}:")
    G.stamp("flok")
    p("s_waitcnt lgkmcnt(0)\ns_barrier")
    if HN:
        for l in G.hint_wait(14, ho, "hint"): p(l)
    rest += w_round(3)
    for l in take(G.opt.get("nb", 3)): p(l)
    G.stamp("ydma")
    mid = M.st_ld(PT, M.vSTR, sT + 11) + W.run(w_cs(1), [[(0, t) for t in take(G.opt.get("nr", 4))]], flush=[0])
    wpf = G.opt.get("wpf", 0)
    if wpf == 2: mid += wd_l2(G)
    if G.opt.get("wsl", 2) == 2: mid += wd_slow(G)
    if G.blate: mid += G.poll_end_lines(None, M.st_ld(PT, M.vSTR, sT + 11), [], M.st_ck(PT, 23), "st")
    mid += M.ln_coef(PT) + M.ln_norm(X[0], TT[0], 0) + M.ln_norm(X[1], TT[1], 1)
    ytr = [f"ds_read_b64_tr_b16 v[{M.vY+4*P+2*t}:{M.vY+4*P+2*t+1}], v21 offset:{M.L_Y + 32*P + 1024*t}" for P in range(2) for t in range(2)]
    yrd = [f"ds_read_b128 v[{VY+4*P}:{VY+4*P+3}], v22 offset:{M.L_Y + 1024*P}" for P in range(2)]
    yck = [f"v_max_u32 v23, v{VY+3}, v{VY+7}", "v_cmp_eq_u32 vcc, -1, v23"]
    ytag = G.poll(ydma, yrd + ytr, yck, "y", mid)
    G.stamp("yret")
    for P in range(2):
        for l in M.unpack(YU + 8*P, M.vY + 4*P, 4) + M.gate_out(X[P], TT[P], YU + 8*P, P, sT + 2 + P): p(l)
    if HN: p(G.hint_st(2, M.vTG))
    G.stamp("x1st")
    if G.stamps and "xack" in G.skip:
        p("s_waitcnt vmcnt(0)"); G.stamp("xack")
    pub = M.st_base(sT + 2, WS_STA[0])
    for P in range(2): pub += M.psum1(X[P], 128 + 2*P, 132) + M.fold1(128 + 2*P) + M.st1_st(128 + 2*P, sT + 2, P)
    for l in sprinkle(pub, rest, G.opt.get("pe", 4)) + rest: p(l)
    t2, t3 = w_tr(2), w_tr(3)
    if wpf == 4:
        for l in wd_l2(G): p(l)
    p("@wv w2" + ("," + ytag if G.nf[0] > 2 else "") + "\ns_waitcnt lgkmcnt(0)\ns_barrier")
    a_ = t2[:12] + weave(w_cs(2), [[(i // 2, t) for i, t in enumerate(t2[12:])]])
    b_ = ["@wv w3", "s_barrier"] + t3[:12] + weave(w_cs(3), [[(i // 2, t) for i, t in enumerate(t3[12:])]])
    xat = G.opt.get("xat", 2)
    if HN:
        for l in M.x_hint_addr() + a_ + ["s_waitcnt lgkmcnt(0)"] + G.hint_ld(14, M.x_hint_offs(2)): p(l)
        if xat == 2:
            for l in b_: p(l)
            b_ = []
        G.stamp("xpre")
        for l in G.hint_wait(14, M.x_hint_offs(2), "hint"): p(l)
        G.stamp("xdma")
        return b_
    if xat == 0: return a_ + b_
    for l in a_: p(l)
    if xat == 2:
        for l in b_: p(l)
        b_ = []
    G.stamp("xdma")
    return b_ + (wd_l2(G) if wpf == 3 else []) + (wd_slow(G) if G.opt.get("wsl", 2) == 3 else [])
```

```python
import sys
sys.path.insert(0, "tools")
from pg import weave, Weaver
import pg
from gen import *

WS = srd(SRD_WS)
vMS, vL16, vVF, vSTG, vSG, vFO = 3, 4, 5, 6, 7, 8
vWT = 9
vWG = 24
vH2, vH1, vHA, vHB = 28, 29, 30, 31
vCS = 32
vSTW, vSTR, vOA, vMR = 44, 45, 46, 47
vXR = 48
vY = 56
vR2 = 64
vTG = 71
vFL, vFA = 221, 222
sLM = 16
sFL = 22
RING = 72
def ACC(g): return 72 + 12 * g if g < 6 else 160 + 12 * (g - 6)
vVER = 144
XF = 184
vTM = 208
vM = 212
vPOI = 176
vVA = 220
vMT = 223
AP = (224, 160)
WF = 192
sXB, sHF, sSA, sWD, sM0X, sOB = 8, 9, 10, 11, 12, 63
sHL = 82
sXO, sWO, sHS, sHC = sT + 12, sT + 13, sT + 14, sT + 15
WID = {4: 4, 5: 5, 6: 6, 7: 7, 8: 8, 9: 0, 10: 1}
L_Y = 43008

def dma_unit(m0off, ins): return f"s_add_u32 m0, s{sM0X}, {m0off}\n{ins}"

def x_dma(g, L):
    o = [f"s_add_u32 s{sXO}, s{sXB}, {g*XP}"]
    for i in range(4): o.append(dma_unit((g % 4)*16384, f"buffer_load_dwordx4 v{vVF}, {WS}, s{sXO} offen offset:{1024*i} sc1 lds @x{L}_{g}"))
    return o

def x_verify(G, g, L, also=()):
    rd = [f"ds_read_b128 v[{vVER+4*i}:{vVER+4*i+3}], v{vVF} offset:{(g % 4)*16384 + 1024*i}" for i in range(4)]
    ck = [f"v_max3_u32 v{vVA}, v{vVER+3}, v{vVER+7}, v{vVER+11}", f"v_max_u32 v{vVA}, v{vVA}, v{vVER+15}", f"v_cmp_eq_u32 vcc, -1, v{vVA}"]
    rl = []
    for gg in (g,) + tuple(also):
        rl += [l.split(" @")[0].replace(f"s{sXO},", "s13,").replace(f"s{sXO} ", "s13 ") for l in x_dma(gg, L)]
    lf, lb = G.add_fix(["s_mov_b32 s14, m0"] + rl + ["s_waitcnt vmcnt(0)", "s_mov_b32 m0, s14"] + rd, ck, "x0")
    return [f"@wv x{L}_{g}"] + rd, ck + [f"s_cbranch_vccnz {lf}", lb + ":"]

def wd_dma(k, slot, so=sWO):
    o = [f"s_add_u32 s{so}, s{sWD}, {k*32768}"]
    for b in range(4): o.append(dma_unit(slot*16384, f"buffer_load_dwordx4 v{vWG+b}, {srd(SRD_WD)}, s{so} offen offset:{1024*b} lds @wd{k}"))
    return o

def wd_tr(slot, dst, agpr, tag=""):
    o = []
    for cs in range(4):
        for t in range(2):
            a = slot*16384 + t*2048
            d = (ar if agpr else vr)(dst + 4*cs + 2*t, 2)
            o.append(f"ds_read_b64_tr_b16 {d}, v{vWT + 4*(a // 65536) + cs} offset:{a % 65536}" + (f" @{tag}" if tag else ""))
    return o

def x_rd(n, L):
    g, kk = n // 16, n % 16
    return [f"ds_read_b128 {vr(XF + 4*(n % 6), 4)}, v{vL16} offset:{(g % 4)*16384 + kk*1024}"]

def setup_early():
    out = []
    def p(t): out.extend(t.split("\n"))
    p(f"v_and_b32 v21, 15, v0\nv_lshlrev_b32 v{vSG}, 3, v21")
    p("v_and_b32 v21, 15, v0\nv_lshlrev_b32 v21, 4, v21")
    p(f"""v_lshrrev_b32 v22, 1, v2
v_lshl_add_u32 v21, v22, 12, v21
v_bfe_u32 v23, v0, 4, 2
v_lshl_add_u32 v{vSTR}, v23, 10, v21
v_lshl_add_u32 v21, v23, 2, v21
v_and_b32 v23, 1, v2
v_lshl_add_u32 v21, v23, 8, v21
s_lshl_b32 s{sT+2}, s{sCT}, 9
v_add_u32 v{vSTW}, s{sT+2}, v21""")
    p(f"""v_mul_u32_u24 v21, {2*XP}, v22
v_add_u32 v21, v21, v{vL16}
v_lshl_add_u32 v21, v23, 10, v21
s_lshl_b32 s{sT+2}, s{sCT}, 11
v_add_u32 v{vFO}, s{sT+2}, v21""")
    return out

def setup_late():
    out = []
    def p(t): out.extend(t.split("\n"))
    p(f"v_lshlrev_b32 v{vVF}, 4, v1\nv_lshl_add_u32 v{vVF}, v2, 12, v{vVF}")
    p(f"""v_bfe_u32 v21, v0, 5, 1
v_bfe_u32 v22, v0, 3, 2
v_lshl_add_u32 v21, v21, 3, v22
v_lshlrev_b32 v21, 10, v21
v_bfe_u32 v22, v0, 1, 2
v_bfe_u32 v23, v0, 4, 2
v_xor_b32 v22, v22, v23
v_lshl_add_u32 v21, v22, 5, v21
v_and_b32 v22, 1, v0
v_lshl_add_u32 v21, v22, 4, v21
s_lshl_b32 s{sT+2}, s{sCT}, 7
v_add_u32 v{vWG}, s{sT+2}, v21
v_add_u32 v{vWG+1}, 15360, v{vWG}
v_add_u32 v{vWG+2}, 2048, v{vWG}
v_add_u32 v{vWG+3}, 17408, v{vWG}
s_mul_i32 s{sWD}, s{sW}, {11*32768}""")
    p(f"""v_bfe_u32 v21, v0, 2, 3
v_lshlrev_b32 v22, 7, v21
v_bfe_u32 v23, v0, 5, 1
v_lshl_add_u32 v22, v23, 10, v22
v_and_b32 v23, 3, v0
v_lshl_add_u32 v22, v23, 3, v22
v_lshl_add_u32 v22, v2, 12, v22
v_lshrrev_b32 v21, 1, v21
v_and_b32 v23, 1, v2
v_lshlrev_b32 v23, 1, v23
v_xor_b32 v21, v21, v23""")
    for cs in range(4):
        p(f"v_xor_b32 v23, {cs}, v21\nv_lshl_add_u32 v{vWT+cs}, v23, 5, v22\nv_add_u32 v{vWT+4+cs}, 0x10000, v{vWT+cs}\nv_add_u32 v{vWT+8+cs}, 0x20000, v{vWT+cs}")
    p(f"""v_and_b32 v21, 15, v0
v_lshlrev_b32 v{vSG}, 3, v21
v_lshlrev_b32 v21, 4, v21
v_bfe_u32 v22, v0, 4, 1
v_bfe_u32 v23, v0, 5, 1
v_lshl_add_u32 v{vH2}, v22, 3, v21
v_lshl_add_u32 v{vH2}, v23, 8, v{vH2}
v_lshl_add_u32 v{vH2}, v2, 9, v{vH2}
v_lshl_add_u32 v{vH1}, v22, 3, v21
v_lshl_add_u32 v{vH1}, v23, 2, v{vH1}
v_lshl_add_u32 v{vH1}, v2, 8, v{vH1}
v_add_u32 v{vH1}, 2048, v{vH1}""")
    p("v_lshrrev_b32 v22, 1, v2\nv_and_b32 v23, 1, v2")
    p(f"""v_and_b32 v21, 15, v0
v_lshlrev_b32 v{vSTG}, 3, v21
v_bfe_u32 v{vMS}, v0, 4, 2
v_lshl_add_u32 v{vSTG}, v{vMS}, 9, v{vSTG}
v_lshl_add_u32 v{vSTG}, v2, 12, v{vSTG}
v_lshlrev_b32 v21, 6, v21
v_add_u32 v21, {L_MISC}, v21
v_lshl_add_u32 v{vMR}, v22, 3, v21
s_lshl_b32 s{sT+2}, s{sHB}, 2
v_add_u32 v{vMR}, s{sT+2}, v{vMR}
v_lshl_add_u32 v21, v22, 2, v21
v_lshl_add_u32 v21, v23, 3, v21
v_bfe_u32 v{vMS}, v0, 5, 1
v_lshl_add_u32 v{vMS}, v{vMS}, 5, v21""")
    p(f"""v_mul_u32_u24 v21, 11264, v2
v_add_u32 v21, v21, v{vL16}
v_mul_u32_u24 v{vHA}, {2*HF_PITCH}, v22
v_add_u32 v{vHA}, v21, v{vHA}
v_xor_b32 v{vHB}, 1, v22
v_mul_u32_u24 v{vHB}, {2*HF_PITCH}, v{vHB}
v_add_u32 v{vHB}, v21, v{vHB}""")
    return out

def early_lines():
    return f"""v_lshlrev_b32 v{vL16}, 4, v1
v_and_b32 v21, 15, v0
v_lshrrev_b32 v22, 1, v2
v_lshl_add_u32 v21, v22, 5, v21
v_lshlrev_b32 v21, 10, v21
v_bfe_u32 v22, v0, 4, 1
v_lshl_add_u32 v21, v22, 5, v21
v_bfe_u32 v22, v0, 5, 1
v_lshl_add_u32 v21, v22, 4, v21
v_and_b32 v22, 1, v2
v_lshl_add_u32 v{vOA}, v22, 6, v21
s_add_u32 s{sOB}, s{sR0}, s{sHB}
s_lshl_b32 s{sOB}, s{sOB}, 14
s_lshl_b32 s{sT+3}, s{sCT}, 7
s_add_u32 s{sOB}, s{sOB}, s{sT+3}""".split("\n")

def layer_scalars(L):
    xb = WS_X1B if L == 0 else WS_X3B
    return f"""s_mul_i32 s{sXB}, s{sR0}, {XP}
s_add_u32 s{sXB}, s{sXB}, 0x{xb:x}
s_mul_i32 s{sHF}, s{sR0}, {HF_PITCH}
s_add_u32 s{sHF}, s{sHF}, 0x{WS_HF[L]:x}
s_lshl_b32 s{sSA}, s{sR0}, 11
s_add_u32 s{sSA}, s{sSA}, 0x{WS_STA[L]:x}
s_lshl_b32 s{sM0X}, s{sW}, 12
s_lshl_b32 s{sFL}, s{sR0}, 10
s_add_u32 s{sFL}, s{sFL}, 0x{WS_HFL + 4096*L:x}
s_lshl_b32 s{sFL+1}, s{sC}, 7
s_add_u32 s{sFL+1}, s{sFL+1}, s{sFL}
s_mul_i32 s{sHC}, s{sC}, 3072
s_add_u32 s{sHC}, s{sHC}, s{sHF}
s_cmp_eq_u32 s{sC}, 15
s_cselect_b32 s{sHC}, 0x{WS_SIZE:x}, s{sHC}""".split("\n")

def st_base(r, region):
    return [f"s_lshl_b32 s{r}, s{sR0}, 11", f"s_lshl_b32 s13, s{sHB}, 13", f"s_add_u32 s{r}, s{r}, s13", f"s_add_u32 s{r}, s{r}, 0x{region:x}"]

def xtile_base(r, region):
    return [f"s_add_u32 s{r}, s{sR0}, s{sHB}", f"s_mul_i32 s{r}, s{r}, {XP}", f"s_add_u32 s{r}, s{r}, 0x{region:x}", f"s_add_u32 s{r+1}, s{r}, {4*XP}"]

def s1_addr(vS1W=70, vS1R=69):
    return [f"v_lshrrev_b32 v21, 1, v2", f"v_lshl_add_u32 v21, v21, 12, v{vSG}", "v_bfe_u32 v23, v0, 4, 2", f"v_lshl_add_u32 v{vS1R}, v23, 9, v21",
            "v_lshrrev_b32 v23, 1, v23", "v_lshl_add_u32 v21, v23, 2, v21", "v_and_b32 v23, 1, v2", "v_lshl_add_u32 v21, v23, 7, v21",
            f"s_lshl_b32 s13, s{sCT}, 8", f"v_add_u32 v{vS1W}, s13, v21"]

def s1_both(r, w=70): return [f"v_bfe_u32 v{r}, v0, 4, 1", f"v_lshl_add_u32 v{r}, v{r}, 11, v{w}"]

def poison_l2():
    o = [f"v_mov_b32 v{vPOI+i}, -1" for i in range(4)]
    o += xtile_base(sT + 2, WS_X3B) + [f"buffer_store_dwordx4 v[{vPOI}:{vPOI+3}], v{vFO}, {WS}, s{sT+2+P} offen {SC('c')} @poi" for P in range(2)]
    o += s1_both(21)
    o += st_base(sT + 2, WS_STX) + [f"buffer_store_dword v{vPOI}, v21, {WS}, s{sT+2} offen {SC('g')} @poi",
          f"s_add_u32 s{sT+2}, s{sT+2}, 0x{WS_STA[1]-WS_STX:x}", f"buffer_store_dword v{vPOI}, v21, {WS}, s{sT+2} offen {SC('c')} @poi"]
    return o

SS = 128
def psum(x, P):
    return [f"v_pk_add_f32 v[132:133], v[{x}:{x+1}], v[{x+2}:{x+3}]", f"v_pk_add_f32 v[134:135], v[{x+4}:{x+5}], v[{x+6}:{x+7}]",
            f"v_pk_mul_f32 v[136:137], v[{x}:{x+1}], v[{x}:{x+1}]", f"v_pk_mul_f32 v[138:139], v[{x+2}:{x+3}], v[{x+2}:{x+3}]",
            f"v_pk_add_f32 v[132:133], v[132:133], v[134:135]",
            f"v_pk_fma_f32 v[136:137], v[{x+4}:{x+5}], v[{x+4}:{x+5}], v[136:137]", f"v_pk_fma_f32 v[138:139], v[{x+6}:{x+7}], v[{x+6}:{x+7}], v[138:139]",
            f"v_add_f32 v{SS+2*P}, v132, v133", "v_pk_add_f32 v[136:137], v[136:137], v[138:139]", f"v_add_f32 v{SS+2*P+1}, v136, v137"]
def fold(r, pk=True):
    add = [f"v_pk_add_f32 v[{r}:{r+1}], v[{r}:{r+1}], v[{r+2}:{r+3}]"] if pk else [f"v_add_f32 v{r}, v{r}, v{r+2}", f"v_add_f32 v{r+1}, v{r+1}, v{r+3}"]
    return [f"v_permlane32_swap_b32 v{r}, v{r+2}", f"v_permlane32_swap_b32 v{r+1}, v{r+3}"] + add + \
           [f"v_permlane16_swap_b32 v{r}, v{r+1}", f"v_add_f32 v{r}, v{r}, v{r+1}"]
def st_ld(PT, va, so): return [f"buffer_load_dwordx4 v[{PT+4*i}:{PT+4*i+3}], v{va}, {WS}, s{so} offen offset:{256*i} sc1" for i in range(4)]
def st_ck(PT, acc):
    return [f"v_max3_u32 v{acc}, v{PT}, v{PT+1}, v{PT+2}"] + [f"v_max3_u32 v{acc}, v{acc}, v{PT+k}, v{PT+k+1}" for k in range(3, 15, 2)] + \
           [f"v_max_u32 v{acc}, v{acc}, v{PT+15}", f"v_cmp_eq_u32 vcc, -1, v{acc}"]
def ln_coef(PT):
    o = []
    for h in range(2):
        o += [f"v_pk_add_f32 v[{SS+2*h}:{SS+2*h+1}], v[{PT+2*h}:{PT+2*h+1}], v[{PT+4+2*h}:{PT+4+2*h+1}]",
              f"v_pk_add_f32 v[{132+2*h}:{133+2*h}], v[{PT+8+2*h}:{PT+8+2*h+1}], v[{PT+12+2*h}:{PT+12+2*h+1}]"]
    o += [f"v_pk_add_f32 v[{SS+2*h}:{SS+2*h+1}], v[{SS+2*h}:{SS+2*h+1}], v[{132+2*h}:{133+2*h}]" for h in range(2)]
    o += fold(SS)
    o += f"""v_mul_f32 v{SS}, 0x3b000000, v{SS}
v_mov_b32 v{SS+2}, v{SS}
v_permlane16_swap_b32 v{SS}, v{SS+2}
v_mov_b32 v{SS+1}, v{SS}
v_mov_b32 v{SS+3}, v{SS+2}
v_permlane32_swap_b32 v{SS}, v{SS+1}
v_permlane32_swap_b32 v{SS+2}, v{SS+3}
v_pk_fma_f32 v[{SS+2}:{SS+3}], v[{SS}:{SS+1}], v[{SS}:{SS+1}], v[{SS+2}:{SS+3}] neg_lo:[1,0,0] neg_hi:[1,0,0]
v_max_f32 v{SS+2}, 0, v{SS+2}
v_max_f32 v{SS+3}, 0, v{SS+3}
v_add_f32 v{SS+2}, 0x3727c5ac, v{SS+2}
v_add_f32 v{SS+3}, 0x3727c5ac, v{SS+3}
v_rsq_f32 v{SS+2}, v{SS+2}
v_rsq_f32 v{SS+3}, v{SS+3}
s_nop 0
v_pk_mul_f32 v[{SS}:{SS+1}], v[{SS}:{SS+1}], v[{SS+2}:{SS+3}]""".split("\n")
    return o
def ln_norm(x, t, P):
    return [f"v_pk_fma_f32 v[{t+i}:{t+i+1}], v[{x+i}:{x+i+1}], v[{SS+2}:{SS+3}], v[{SS}:{SS+1}] op_sel:[0,{P},{P}] op_sel_hi:[1,{P},{P}] neg_lo:[0,0,1] neg_hi:[0,0,1]" for i in range(0, 8, 2)]
def unpack(dst, src, n):
    return [l for k in range(n) for l in (f"v_lshlrev_b32 v{dst+2*k}, 16, v{src+k}", f"v_and_b32 v{dst+2*k+1}, 0xffff0000, v{src+k}")]
def gate_out(x, t, y, P, so):
    return [f"v_pk_fma_f32 v[{x+i}:{x+i+1}], v[{t+i}:{t+i+1}], v[{y+i}:{y+i+1}], v[{x+i}:{x+i+1}]" for i in range(0, 8, 2)] + \
           [f"v_cvt_pk_bf16_f32 v{vXR+4*P+i}, v{x+2*i}, v{x+2*i+1}" for i in range(4)] + \
           [f"buffer_store_dwordx4 v[{vXR+4*P}:{vXR+4*P+3}], v{vFO}, {WS}, s{so} offen {SC('c')}"]
def publish(X, so):
    return psum(X[0], 0) + psum(X[1], 1) + fold(SS) + [f"buffer_store_dword v{SS}, v{vSTW}, {WS}, s{so} offen sc1"]

vS1W, vS1R = 70, 69
def psum1(x, r, t):
    return [f"v_pk_add_f32 v[{r}:{r+1}], v[{x}:{x+1}], v[{x+2}:{x+3}]", f"v_pk_add_f32 v[{t}:{t+1}], v[{x+4}:{x+5}], v[{x+6}:{x+7}]",
            f"v_pk_mul_f32 v[{t+2}:{t+3}], v[{x}:{x+1}], v[{x}:{x+1}]", f"v_pk_add_f32 v[{r}:{r+1}], v[{r}:{r+1}], v[{t}:{t+1}]",
            f"v_pk_fma_f32 v[{t+2}:{t+3}], v[{x+2}:{x+3}], v[{x+2}:{x+3}], v[{t+2}:{t+3}]",
            f"v_pk_fma_f32 v[{t+2}:{t+3}], v[{x+4}:{x+5}], v[{x+4}:{x+5}], v[{t+2}:{t+3}]",
            f"v_add_f32 v{r}, v{r}, v{r+1}", f"v_pk_fma_f32 v[{t+2}:{t+3}], v[{x+6}:{x+7}], v[{x+6}:{x+7}], v[{t+2}:{t+3}]",
            f"v_add_f32 v{r+1}, v{t+2}, v{t+3}"]
def fold1(r):
    return [f"v_permlane32_swap_b32 v{r}, v{r+1}", f"v_add_f32 v{r}, v{r}, v{r+1}", f"v_mov_b32 v{r+1}, v{r}",
            f"v_permlane16_swap_b32 v{r}, v{r+1}", f"v_add_f32 v{r}, v{r}, v{r+1}"]
def st1_st(r, so, P, kind="c"): return [f"buffer_store_dword v{r}, v{vS1W}, {WS}, s{so} offen offset:{2048*P} {SC(kind)}"]
def st1_ld(PT, so, P): return [f"buffer_load_dwordx2 v[{PT+2*i}:{PT+2*i+1}], v{vS1R}, {WS}, s{so} offen offset:{2048*P + 128*i} sc1" for i in range(4)]
def st1_ck(PT, acc):
    return [f"v_max3_u32 v{acc}, v{PT}, v{PT+1}, v{PT+2}", f"v_max3_u32 v{acc}, v{acc}, v{PT+3}, v{PT+4}", f"v_max3_u32 v{acc}, v{acc}, v{PT+5}, v{PT+6}",
            f"v_max_u32 v{acc}, v{acc}, v{PT+7}", f"v_cmp_eq_u32 vcc, -1, v{acc}"]
def coef1(PT, r):
    return [f"v_pk_add_f32 v[{r}:{r+1}], v[{PT}:{PT+1}], v[{PT+2}:{PT+3}]", f"v_pk_add_f32 v[{r+2}:{r+3}], v[{PT+4}:{PT+5}], v[{PT+6}:{PT+7}]",
            f"v_pk_add_f32 v[{r}:{r+1}], v[{r}:{r+1}], v[{r+2}:{r+3}]"] + fold1(r) + \
           [f"v_mul_f32 v{r}, 0x3b000000, v{r}", f"v_mov_b32 v{r+1}, v{r}", f"v_permlane32_swap_b32 v{r}, v{r+1}",
            f"v_fma_f32 v{r+1}, -v{r}, v{r}, v{r+1}", f"v_max_f32 v{r+1}, 0, v{r+1}", f"v_add_f32 v{r+1}, 0x3727c5ac, v{r+1}",
            f"v_rsq_f32 v{r+1}, v{r+1}", f"v_mul_f32 v{r}, v{r}, v{r+1}"]
def norm1(x, t, r):
    return [f"v_pk_fma_f32 v[{t+i}:{t+i+1}], v[{x+i}:{x+i+1}], v[{r}:{r+1}], v[{r}:{r+1}] op_sel:[0,1,0] op_sel_hi:[1,1,0] neg_lo:[0,0,1] neg_hi:[0,0,1]" for i in range(0, 8, 2)]

def plain(lines):
    import re
    o = []
    for l in lines:
        m = re.match(r"v_pk_(add|mul|fma)_f32 (.*)", l)
        if not m: o.append(l); continue
        body = m.group(2); ops = [int(x) for x in re.findall(r"v\[(\d+):\d+\]", body)]
        n = len(ops) - 1
        g = lambda key, d: [int(x) for x in re.search(key + r":\[([\d,]+)\]", body).group(1).split(",")] if re.search(r"\b" + key + r":", body) else [d]*n
        lo, hi, nl, nh = g("op_sel", 0), g("op_sel_hi", 1), g("neg_lo", 0), g("neg_hi", 0)
        for h, (sel, ng) in enumerate(((lo, nl), (hi, nh))):
            src = ", ".join(("-" if ng[i] else "") + f"v{ops[1+i] + sel[i]}" for i in range(n))
            o.append(f"v_{m.group(1)}_f32 v{ops[0] + h}, {src}")
    return o

PTG = 160
def mean_ld(P): return [f"buffer_load_dwordx2 v[{PTG+8*P+2*i}:{PTG+8*P+2*i+1}], v{vSTG}, {WS}, s{sSA} offen offset:{2048*P + 128*i} sc1" for i in range(4)]
def mean_stream(G, P):
    r = PTG + 8*P; t = vMT
    ck = st1_ck(r, t)
    lf, lb = G.add_fix(mean_ld(P), ck, "m")
    a = ck + ["+1", f"s_cbranch_vccnz {lf}", lb + ":"]
    a += plain([f"v_pk_add_f32 v[{r}:{r+1}], v[{r}:{r+1}], v[{r+2}:{r+3}]", f"v_pk_add_f32 v[{r+4}:{r+5}], v[{r+4}:{r+5}], v[{r+6}:{r+7}]",
                f"v_pk_add_f32 v[{r}:{r+1}], v[{r}:{r+1}], v[{r+4}:{r+5}]"])
    a += spaced(fold1(r)) + [f"v_mul_f32 v{r}, 0x3b000000, v{r}", f"ds_write_b32 v{vMS}, v{r} offset:{16*P} @msw{P}", "+6", f"@wl msw{P}"]
    q = vR2 + 2*P
    b = [f"v_lshlrev_b32 v{t}, 3, v{vSG}", f"v_add_u32 v{t}, {L_MISC}, v{t}", f"ds_read_b128 v[{vM+4*P}:{vM+4*P+3}], v{t} offset:{16*P}",
         f"ds_read2_b32 v[{q}:{q+1}], v{vMR} offset0:{4*P} offset1:{8+4*P}", "+8",
         f"v_fma_f32 v{q+1}, -v{q}, v{q}, v{q+1}", f"v_max_f32 v{q+1}, 0, v{q+1}", f"v_add_f32 v{q+1}, 0x3727c5ac, v{q+1}", f"v_rcp_f32 v{q+1}, v{q+1}"]
    return a, b
def spaced(lines):
    o = []
    for l in lines:
        if l.startswith("v_permlane"): o.append("+1")
        o.append(l)
    return o

def epi(G, g, L):
    a = ACC(g); r = vM + g
    o = []
    for t in (2, 0, 1):
        for i in range(4): o.append(f"v_fma_f32 v{a+4*t+i}, -v{r}, v{vCS+4*t+i}, v{a+4*t+i}")
    m = a + 8
    o += [f"v_permlane32_swap_b32 v{m}, v{m+2}", f"v_permlane32_swap_b32 v{m+1}, v{m+3}"]
    for i in range(4): o.append(f"v_max_f32 v{a+i}, 0, v{a+i}")
    for i in range(4): o.append(f"v_mul_f32 v{a+i}, v{a+i}, v{a+4+i}")
    o += [f"v_cvt_pk_bf16_f32 v{vTM}, v{a}, v{a+1}", f"v_cvt_pk_bf16_f32 v{vTM+1}, v{a+2}, v{a+3}",
          f"s_add_u32 s{sHS}, s{sHC}, {g*HF_PITCH}",
          f"!buffer_store_dwordx2 v[{vTM}:{vTM+1}], v{vH2}, {WS}, s{sHS} offen {SC('ch%d' % L)} @hs{g}"]
    o += [f"v_max_f32 v{m}, 0, v{m}", f"v_max_f32 v{m+1}, 0, v{m+1}", f"v_mul_f32 v{m}, v{m}, v{m+2}", f"v_mul_f32 v{m+1}, v{m+1}, v{m+3}",
          f"v_cvt_pk_bf16_f32 v{vTM+2}, v{m}, v{m+1}", f"!buffer_store_dword v{vTM+2}, v{vH1}, {WS}, s{sHS} offen {SC('ch%d' % L)} @hs{g}"]
    return o

EPI_AT = {3: [0], 4: [1, 2], 5: [3], 6: [4, 5], 7: [6]}

class WdFeed:
    def __init__(self, L, tlag):
        self.sw = []; self.st = []; self.nt = 0; self.nd = 0; self.on = (L == 0); self.tlag = tlag; self.done_at = {}
        if self.on:
            for k in range(2): self.sw += [(0, t) for t in wd_dma(k, 4 + k)]
            self.sw += [(0, t) for t in poison_l2()]
            for k in range(2, 4): self.sw += [(0, t) for t in wd_dma(k, 4 + k)]
            self.sw += [(0, t) for t in wd_dma(8, 8)]
    def update(self, g):
        if not self.on: return
        for k in range(4):
            if k not in self.done_at and not any(f"@wd{k}" in t for (_, t) in self.sw): self.done_at[k] = g
        while self.nt < 4 and self.nt in self.done_at and g - self.done_at[self.nt] >= self.tlag:
            k = self.nt; self.nt += 1
            self.st += [(0, f"@wv wd{k}")] + [(0, t) for t in wd_tr(4 + k, 192 + 16*k, True, f"ta{k}")]
        while self.nd < self.nt and not any(f"@ta{self.nd}" in t for (_, t) in self.st):
            k = self.nd; self.nd += 1
            self.sw += [(0, f"@wl ta{k}")] + [(0, t) for t in wd_dma(4 + k, 4 + k)]
    def rest(self):
        o = []
        while True:
            o += [t for (_, t) in self.st + self.sw]; self.sw.clear(); self.st.clear()
            self.update(10**6)
            if not (self.st or self.sw): return o

def h_ld(P, k, rs):
    e = RING + 8*k + 4*rs
    return f"buffer_load_dwordx4 v[{e}:{e+3}], v{vHA if rs == 0 else vHB}, {WS}, s{sHL + 3*P + k//4} offen offset:{1024*(k%4)} sc1"

def h_scalars():
    o = [f"s_mul_i32 s{sHL+1}, s{sHB}, {HF_PITCH}", f"s_add_u32 s{sHL}, s{sHF}, s{sHL+1}", f"s_add_u32 s{sHL+1}, s{sHL}, 4096", f"s_add_u32 s{sHL+2}, s{sHL}, 8192"]
    return o + [f"s_add_u32 s{sHL+3+i}, s{sHL+i}, {4*HF_PITCH}" for i in range(3)]

def one_lane(ins): return f"s_mov_b64 exec, s[{sLM}:{sLM+1}]\n{ins}\ns_mov_b64 exec, -1"
def hflag_st(b): return one_lane(f"buffer_store_dword v{vTG}, v{vFA}, {WS}, s{sFL+1} offen offset:{2048*b} {SC('c')}")
def hflag_ld(b): return [f"v_lshlrev_b32 v{vFA}, 4, v{vSG}", f"!buffer_load_dword v{vFL}, v{vFA}, {WS}, s{sFL} offen offset:{2048*b} sc1"]
def hflag_chk(G, b):
    ck = [f"v_cmp_ne_u32 vcc, s{sTAG}, v{vFL}"]
    lf, lb = G.add_fix(hflag_ld(b), ck, "h0")
    return ck + [f"s_cbranch_vccnz {lf}", lb + ":"]

def HFL(G): return G.opt.get("hfl", 1)
def HFA(G, L): return HFL(G) if L == 0 else G.opt.get("hfa1", 0)

def gemm1_normal(G, L):
    p = G.p
    W = Weaver(vm_space=G.opt.get("vs1", 4), no_s=lambda g: g % 3 == 2)
    for n in range(4):
        for l in x_rd(n, L): p(l)
    feed = WdFeed(L, G.opt.get('tlag', 48)); allout = []; sw = feed.sw; stt = feed.st
    fa = G.opt.get("fa0", 5) if L == 0 else (5 if HFA(G, 1) else -1)
    pf = G.opt.get(f"pf{L}", 380 if L == 0 else 312); ml = G.opt.get("ml", 8); mc = G.opt.get("mc", 44)
    ml1 = G.opt.get("ml1", 120); mc1 = G.opt.get("mc1", 150)
    sf = [(G.opt.get("sfg", 12), t) for t in getattr(G, "slot0", [])]; G.slot0 = []; sm = []; smb = []
    sp = []
    if L == 0 and G.opt.get("hp2", 20) == 30:
        n = 0
        for t in poison_h2(180, vFL):
            if t.startswith("buffer"): sp.append((G.opt.get("hpa0", 56) + G.opt.get("hpd", 36)*n, "!" + t.replace("@hp2", "@poi"))); n += 1
            else: sp.append((0, t))
    sx = [(0, t) for t in x_dma(2, L) + getattr(G, "slot0p", []) + x_dma(3, L)]; s2 = []; spf = []; G.slot0p = []
    assert G.nf[L] == 2
    for g in range(8):
        mf = []
        for kk in range(16):
            n = 16*g + kk
            for t in range(3):
                mf.append(mfma(ACC(g) + 4*t, ar(64*t + 4*kk, 4), vr(XF + 4*(n % 6), 4), "0" if kk == 0 else None))
        s0 = []
        for kk in range(16):
            n = 16*g + kk + 4
            if n < 128: s0 += [(3*kk + i, t) for i, t in enumerate(x_rd(n, L))]
        s1 = []
        if g < 7 or g == fa:
            if g < 7 and g + 1 >= G.nf[L]:
                rd, ck = x_verify(G, g + 1, L)
                s1 += [(G.opt.get(f"vr{g}", G.opt.get("vr", 6)), t) for t in rd] + [(0, "+8")] + [(0, t) for t in ck[:-2]] + [(0, "+1")] + [(0, t) for t in ck[-2:]]
            if g == fa:
                assert not any("@poi" in t for (_, t) in sw + sp)
                assert not any("@hs3" in t for (_, t) in s2)
                s1 += [(20, f"v_lshlrev_b32 v{vFA}, 2, v1"), (G.opt.get("fag", 28), "@wv poi,hs0,hs1,hs2,hs3")]
            if g not in (1, 3): s1 += [(G.opt.get("bg", 24), "s_barrier")]
            if g == fa: s1 += [(0, hflag_st(0))]
        post = []
        if 1 <= g <= 4: post = x_dma(g + 3, L)
        if g == 5: post = wd_dma(9, 0, sXO)
        if g == 6: post = wd_dma(10, 1, sXO)
        if g == 0:
            ma, mb = mean_stream(G, 0)
            sm += [(ml, "!" + t) for t in mean_ld(0)] + [(mc, t) for t in ma]
        if g == 2:
            assert not sf
            txt0 = "\n".join(allout)
            assert "@hp2" not in txt0 or txt0.rindex("@hp2") < txt0.index("@wv hp2")
            ma, mb = mean_stream(G, 1)
            sm += [(ml1 - 96, "!" + t) for t in mean_ld(1)] + [(mc1 - 96, t) for t in ma]
        if g >= 2: s2 += [(G.opt.get("eg", 6), t) for t in epi(G, g - 1, L)]
        if g == pf // 48: spf += [(0, t) for t in h_scalars()] + [(pf % 48, h_ld(0, k, rs)) for k in range(9) for rs in range(2)]
        if g == 7: spf += [(0, h_ld(0, k, rs)) for k in range(9, 11) for rs in range(2)]
        if HFA(G, L):
            fla = G.opt.get(f"fla{L}", 340 if L == 0 else 292)
            assert fla < pf - 8
            if g == pf // 48:
                i0 = min(i for i, (_, t) in enumerate(spf) if t.startswith("buffer_load_dwordx4"))
                spf[i0:i0] = [(pf % 48, t) for t in hflag_chk(G, 0)]
            if g == fla // 48: sp += [(fla % 48, t) for t in hflag_ld(0)]
        if L == 1:
            if G.opt.get("noepi"): s2.clear()
            if G.opt.get("nost"): s2[:] = [x for x in s2 if "buffer_store" not in x[1]]
            if G.opt.get("nover"): s1 = [x for x in s1 if not (x[1].startswith("ds_read_b128 v[14") or x[1].startswith("ds_read_b128 v[15") or f"v{vVA}" in x[1] or (g != 1 and ("cbranch" in x[1] or x[1].endswith(":"))))]
            if G.opt.get("nodma"): post = []; sx.clear()
            if G.opt.get("nopf"): spf[:] = [x for x in spf if not x[1].startswith("buffer")] + ([(99, h_ld(0, 10, 1))] if g == 7 else [])
            if G.opt.get("nomean"): sm.clear(); mb = []; sf.clear()
            if G.opt.get("nobar"): s1 = [x for x in s1 if x[1] != "s_barrier"]
        mb_slot = g in (1, 3)
        cut = 35 if mb_slot else (30 if g == fa else G.opt.get("cut", 30))
        out = []
        for lo in range(0, cut, 6):
            feed.update(W.g)
            out += W.run(mf[lo:min(cut, lo + 6)], [s0, sp, sx, s1, sf, sm, spf, sw, s2, stt])
            if mb_slot and not s1 and not sm and "s_barrier" not in out and not any("@hp2" in t for (_, t) in sx): s1 += [(0, "@wv hp2"), (0, "s_barrier")]
        if mb_slot and "s_barrier" not in out and not any(t == "s_barrier" for (_, t) in s1):
            assert not any("@hp2" in t for (_, t) in sx)
            s1 += list(sm) + [(0, "@wv hp2"), (0, "s_barrier")]; sm.clear()
        if s1: print("slot", g, "barrier stream flushed:", len(s1)); out += [t for (_, t) in s1]; s1.clear()
        sx += [(G.opt.get("x4d", 24) if (g == 1 and L == 1 and G.opt.get("inslot", 1)) else 0, t) for t in post]
        if g == 1: s2 += [(0, t) for t in mb + epi(G, 0, L)]
        if g == 3: smb += [(0, t) for t in mb]
        for lo in range(cut, 48, 6):
            feed.update(W.g)
            out += W.run(mf[lo:lo + 6], [s0, sp, sx, sf, sm, smb, spf, sw, s2, stt])
        if g == 4: assert not smb
        if g == 7: out += [t for (_, t) in s2]; s2.clear()
        assert not s0
        for l in out: p(l)
        allout += out
        G.stamp(f"s{L}{g}")
    tail = epi(G, 7, L) + [t for (_, t) in sx] + feed.rest()
    while not spf[0][1].startswith("buffer_load_dwordx4"): tail.append(spf.pop(0)[1])
    for l in tail: p(l)
    allout += tail
    ins = [pg.Ins(x.split(" @")[0].lstrip("!")) for l in allout for x in l.split("\n") if not (x.startswith(("@", "+")) or x.endswith(":"))]
    pfs = {h_ld(0, k, rs) for k in range(11) for rs in range(2)}
    txt = [a0.text for a0 in ins]
    i5 = min(i for i, t in enumerate(txt) if t.startswith(f"v_mfma_f32_16x16x32_bf16 v[{ACC(7)}:"))
    assert not any(t.startswith("buffer_store") and (f"v{vPOI}," in t or f"v[{vPOI}:" in t) for t in txt[i5:])
    for i, a0 in enumerate(ins):
        if a0.text in pfs:
            for b0 in ins[i+1:]: assert not (a0.wr & (b0.rd | b0.wr)), (a0.text, b0.text)
    gi = 0; pos = {}
    for l in allout:
        if l.startswith("v_mfma"): gi += 1
        if "@hs" in l: pos[l.split("@")[-1]] = "%.1f" % (gi/48)
        if "@wd" in l: pos[l.split("@")[-1]] = "%.1f" % (gi/48)
    print("leftover L%d positions" % L, pos)
    print("L%d leftover: tail %d, prefetch left %d" % (L, len(tail), len(spf)))
    return [t for (_, t) in spf]

def h_verify(G, P, k):
    e = RING + 8*k
    ck = [f"v_max3_u32 v23, v{e}, v{e+1}, v{e+2}", f"v_max3_u32 v23, v23, v{e+3}, v{e+4}",
          f"v_max3_u32 v23, v23, v{e+5}, v{e+6}", f"v_max_u32 v23, v23, v{e+7}", f"v_cmp_eq_u32 vcc, -1, v23"]
    lf, lb = G.add_fix([h_ld(P, k, 0), h_ld(P, k, 1)], ck, f'h{P}')
    return ck + [f"s_cbranch_vccnz {lf}", lb + ":"]

def red_imm(P, j):
    b = 32768
    return b + 1024*j if j < 4 else b + 16384 + 1024*(j - 4)

def red_writes(P):
    o = []
    for rel in (1, 2, 3):
        for tl in range(2):
            a = AP[P] + 16*(rel >> 1) + 4*(2*(rel & 1) + tl)
            o.append(f"ds_write_b128 v{vVF}, v[{a}:{a+3}] offset:{red_imm(P, 2*(rel - 1) + tl)}")
    return o

RA = 21
def red_reads(P, RD):
    return [f"ds_read_b128 v[{RD+4*j}:{RD+4*j+3}], v{(21, 22, 68)[j//2]} offset:{red_imm(P, j)}" for j in range(6)]

def red_adds(P, RD, pk, mid=()):
    o = []
    a = AP[P]
    if pk:
        for base in (0, 8, 16):
            for i in range(0, 8, 2): o.append(f"v_pk_add_f32 v[{a+i}:{a+i+1}], v[{a+i}:{a+i+1}], v[{RD+base+i}:{RD+base+i+1}]")
    else:
        for base in (0, 8, 16):
            for i in range(8): o.append(f"v_add_f32 v{a+i}, v{a+i}, v{RD+base+i}")
    o += list(mid)
    for i in range(4): o += [f"v_lshlrev_b32 v{RD+2*i}, 16, v{vXR+4*P+i}", f"v_and_b32 v{RD+2*i+1}, 0xffff0000, v{vXR+4*P+i}"]
    if pk:
        for i in range(0, 8, 2): o.append(f"v_pk_fma_f32 v[{RD+i}:{RD+i+1}], v[{a+i}:{a+i+1}], v[{vR2+2*P}:{vR2+2*P+1}], v[{RD+i}:{RD+i+1}] op_sel:[0,1,0] op_sel_hi:[1,1,1]")
    else:
        for i in range(8): o.append(f"v_fmac_f32 v{RD+i}, v{a+i}, v{vR2+2*P+1}")
    return o

def poison_h2(c, a):
    o = [f"v_mov_b32 v{c+i}, -1" for i in range(4)] + [f"v_mul_u32_u24 v{a}, {HF_PITCH}, v2", f"v_add_u32 v{a}, v{a}, v{vL16}"]
    for h in range(2):
        o.append(f"s_add_u32 s{sT+8}, s{sHC}, 0x{WS_HF[1]-WS_HF[0] + 4*h*HF_PITCH:x}")
        for i in range(3): o.append(f"buffer_store_dwordx4 v[{c}:{c+3}], v{a}, {WS}, s{sT+8} offen offset:{1024*i} {SC('cp1')} @hp2")
    return o

def fin_x(P, RD, X, U):
    a = AP[P]; o = []
    for base in (0, 8, 16):
        o += [f"v_pk_add_f32 v[{a+i}:{a+i+1}], v[{a+i}:{a+i+1}], v[{RD+base+i}:{RD+base+i+1}]" for i in range(0, 8, 2)]
        if base == 0: o += unpack(U, vXR + 4*P, 4)
    o += [f"v_pk_fma_f32 v[{X+i}:{X+i+1}], v[{a+i}:{a+i+1}], v[{vR2+2*P}:{vR2+2*P+1}], v[{U+i}:{U+i+1}] op_sel:[0,1,0] op_sel_hi:[1,1,1]" for i in range(0, 8, 2)]
    return o

OFL = ['']
def out_store(x, o, so):
    return [f"v_cvt_pk_bf16_f32 v{o+i}, v{x+2*i}, v{x+2*i+1}" for i in range(4)] + \
           [f"v_permlane16_swap_b32 v{o}, v{o+2}", f"v_permlane16_swap_b32 v{o+1}, v{o+3}", f"buffer_store_dwordx4 v[{o}:{o+3}], v{vOA}, {srd(SRD_O)}, s{so} offen {OFL[0]}"]

def gemm2(G, L, left):
    from gen_front import sprinkle
    OFL[0] = ["", "sc1", "sc0 sc1", "nt", "sc1 nt"][G.opt.get("ofl", 1)]
    p = G.p
    p("s_barrier")
    G.stamp(f"g1end{L}")
    W = Weaver(vm_space=G.opt.get("vs2", 4))
    sv = [(0, t) for t in left]
    side = []
    for rel, r in ((1, 21), (2, 22), (3, 68)): side += [f"v_xor_b32 v{r}, {rel}, v2", f"v_lshl_add_u32 v{r}, v{r}, 12, v{vL16}"]
    if L == 0: side += st_base(sT + 2, WS_STX) + xtile_base(sT + 4, WS_X3B) + [f"s_add_u32 s{sT+3}, s{sT+2}, 0x{WS_STA[1]-WS_STX:x}"]
    else: side += [f"s_add_u32 s{sT+2}, s{sOB}, {4*16384}"]
    X0 = AP[0]; R0 = AP[0] + 8
    GP, YU0, C0 = 232, 240, 248
    p1s = G.opt.get(f"p1s{L}", 9 if L == 0 else 8); back = []
    def step_mf(P, k):
        mf = []
        for cs in range(4):
            for rs in range(2):
                w = ar(192 + 16*k + 4*cs, 4) if k < 4 else vr(WF + 16*(k % 2) + 4*cs, 4)
                mf.append(mfma(AP[P] + 16*rs + 4*cs, w, vr(RING + 8*k + 4*rs, 4), "0" if k == 0 else None))
        return mf
    def step_tr(k): return [(i, t) for i, t in enumerate(wd_tr(WID[k + 1], WF + 16*((k + 1) % 2), False))] if 3 <= k < 10 else []
    def nan_check(P, issued):
        ck = [f"v_cmp_u_f32 vcc, v{AP[P]}, v{AP[P]+16}"]
        redo = ["s_waitcnt vmcnt(0)"] + [h_ld(P, k, rs) for k in range(11) for rs in range(2)]
        Wr = Weaver()
        for k in range(11): redo += Wr.run(step_mf(P, k), [step_tr(k)], flush=[0])
        lf, lb = G.add_fix(redo, ck, f"h{P}", after=issued)
        return ck + [f"s_cbranch_vccnz {lf}", lb + ":"]
    for P in range(2):
        s3 = []; s4 = []; issued = []
        for k in range(11):
            s0 = ([(0, f"@wv wd{k+1}")] if (P == 0 and 3 <= k < 10) else []) + step_tr(k)
            s1 = []
            pev = (P == 0 and G.opt.get(f"hv{L}", 0))
            if pev:
                if k == 0:
                    while any(t in (h_ld(0, 0, 0), h_ld(0, 0, 1)) for (_, t) in sv): p(sv.pop(0)[1])
                    for l in h_verify(G, 0, 0): p(l)
                if k < pev - 1:
                    while any(t in (h_ld(0, k + 1, 0), h_ld(0, k + 1, 1)) for (_, t) in sv): p(sv.pop(0)[1])
                    hv = h_verify(G, 0, k + 1)
                    s1 = [(2, t) for t in hv[:-2]] + [(0, "+1")] + [(0, t) for t in hv[-2:]]
            if P == 0:
                if k >= 1: back += [(0, h_ld(1, k - 1, 0)), (0, h_ld(1, k - 1, 1))]
                if k >= p1s: sv += back; back = []
                if k == 0: s3 += [(0, t) for t in side]
                if L == 0 and G.opt.get("hp2", 20) == 40 and k == G.opt.get("hpk", 4):
                    for t in poison_h2(160, 164): s4.append((0, "!" + t if t.startswith("buffer") else t)); s4 += [(0, "+%d" % G.opt.get("hpg", 5))] if t.startswith("buffer") else []
                if L == 0 and not HFL(G):
                    if k == 0: s1 = [(0, t) for t in hflag_ld(0)] + s1
                    if k == 3: s1 = [(0, t) for t in hflag_chk(G, 0)] + s1
                if L == 0 and HFL(G):
                    if k == G.opt.get("fb", 1): s1 = [(0, "v_lshlrev_b32 v71, 2, v1"), (1, "@wv hs4,hs5,hs6,hs7"), (1, "s_barrier"), (2, f"v_mov_b32 v23, s{sTAG}"), (3, hflag_st(1).replace(f"v{vTG}, v{vFA}", "v23, v71")), (4, f"v_mov_b32 v{vTG}, s{sTAG}")]
                    if k == p1s - 3: s1 = [(0, t.replace(f"v{vFA}", "v23").replace(f"v{vFL}", "v23")) for t in hflag_ld(1)]
                    if k == p1s - 1:
                        ck = [f"v_cmp_ne_u32 vcc, s{sTAG}, v23"]
                        lf, lb = G.add_fix([t.replace(f"v{vFA}", "v23").replace(f"v{vFL}", "v23") for t in hflag_ld(1)], ck, "h1")
                        s1 = [(4, ck[0]), (6, f"s_cbranch_vccnz {lf}"), (6, lb + ":")]
                W.vm_space = G.opt.get("vsb", 2)
            else:
                W.vm_space = G.opt.get("vs2", 4)
                if L == 0 and k == G.opt.get("hp2", 20): s4 += [(0, t) for t in poison_h2(252, 251)]
                if k == 2: s3 += [(1, "s_barrier")]
                if L == 0 and k == G.opt.get("gs", 8): s3 += [(0, "!" + t) for t in st1_ld(GP, sT + 2, 0)]
            need = (h_ld(P, k, 0), h_ld(P, k, 1))
            while any(t in need for (_, t) in sv): l = sv.pop(0)[1]; p(l); issued.append(l)
            out = W.run(step_mf(P, k), [sv, s0, s1, s3, s4], flush=[1, 2])
            for l in out: p(l)
            issued += out
        for (_, t) in s3 + s4: p(t)
        p1set = {h_ld(1, k, rs) for k in range(11) for rs in range(2)}
        if (L == 1 and not (P == 0 and HFA(G, 1))) or (L == 0 and not HFL(G)):
            for l in nan_check(P, [l for l in issued if l in p1set] if P == 0 else []): p(l)
        if P == 0:
            G.stamp(f"p0end{L}")
            sv += back + [(0, h_ld(1, 10, 0)), (0, h_ld(1, 10, 1))]
            gap = red_writes(0) + ["s_waitcnt lgkmcnt(0)", "s_barrier"] + red_reads(0, R0) + fin_x(0, R0, X0, WF)
            if L == 0: gap += psum1(X0, C0, C0 + 2) + fold1(C0) + st1_st(C0, sT + 2, 0, 'g') + unpack(YU0, vY, 4)
            else: gap += out_store(X0, R0, sOB)
            u = [t for (_, t) in sv[:G.opt.get("gapn", 10)]]; del sv[:len(u)]
            for l in sprinkle(gap, u, G.opt.get("gape", 5)) + u: p(l)
            G.stamp(f"gap{L}")
    G.stamp(f"g2mm{L}")
    RD1, X1 = 96, 120
    for l in red_writes(1): p(l)
    if L == 0:
        for l in G.poll_end_lines(None, st1_ld(GP, sT + 2, 0), [], st1_ck(GP, 23), "st") + coef1(GP, C0) + norm1(X0, GP, C0) + gate_out(X0, GP, YU0, 0, sT + 4): p(l)
        G.stamp("x3a")
    p("s_waitcnt lgkmcnt(0)\ns_barrier")
    for l in red_reads(1, RD1): p(l)
    if L == 0 and G.opt.get("xe", 0):
        for l in layer_scalars(1)[:2]: p(l)
        G.xtag = G.poll_begin([l for g in range(2) for l in x_dma(g, 1)])
    if L == 0:
        for l in psum1(X0, C0, GP): p(l)
    for l in fin_x(1, RD1, X1, 128): p(l)
    if L == 1:
        for l in out_store(X1, 128, sT + 2): p(l)
        return
    for l in psum1(X1, 128, 130) + fold1(128) + st1_st(128, sT + 2, 1, 'g'): p(l)
    G.stamp("stpub")
    for l in fold1(C0) + unpack(128, vY + 4, 4) + st1_st(C0, sT + 3, 0): p(l)
    hp = poison_h2(252, 251) if G.opt.get("hp2", 20) == 20 else []
    k0 = 7
    for l in hp[:k0] + ([f"s_add_u32 s{sT+9}, s{sT+8}, {4*HF_PITCH}"] if hp else []) + layer_scalars(1): p(l)
    hp = [l.replace(f"s{sT+8} ", f"s{sT+9} ") if i >= 4 else l for i, l in enumerate(hp[k0:]) if l.startswith("buffer")]
    if HFA(G, 1): hp = hp[3:]
    G1_, C1 = 104, 112
    fin = lambda: G.poll_end_lines(None, st1_ld(G1_, sT + 2, 1), [], st1_ck(G1_, vMT), "st") + coef1(G1_, C1) + norm1(X1, 136, C1) + \
        gate_out(X1, 136, 128, 1, sT + 5) + psum1(X1, C1, 116) + fold1(C1) + ["@wv hp2"] + st1_st(C1, sT + 3, 1)
    if G.opt.get("inslot", 1):
        hs0 = G.opt.get("hps", 0)
        G.between = st1_ld(G1_, sT + 2, 1) + ([] if hs0 else hp)
        G.slot0p = hp if hs0 else []
        f = []
        for l in spaced(plain(fin())):
            if l.startswith("s_cbranch"): f.append("+1")
            f.append("!" + l if l.startswith("buffer") else l)
        G.slot0 = f
    else:
        G.between = st1_ld(G1_, sT + 2, 1) + hp + fin()

def x_hint_addr():
    return [f"s_and_b32 s14, s{sJ}, 24", f"s_lshl_b32 s13, s{sW}, 1", "s_add_u32 s14, s14, s13", "s_lshl_b32 s14, s14, 15",
            f"s_and_b32 s13, s{sX}, 6", "s_lshl_b32 s13, s13, 12", "s_add_u32 s14, s14, s13"]
def x_hint_offs(kind): return [32768*c + 4096*h + 1024*wv + 128*kind for c in range(2) for h in range(2) for wv in range(2)]

def x_start(G, L, between):
    n = G.nf[L]
    att = [l for g in range(n) for l in x_dma(g, L)]
    VR2 = 72
    rd = [f"ds_read_b128 v[{VR2+16*g+4*i}:{VR2+16*g+4*i+3}], v{vVF} offset:{g*16384 + 1024*i}" for g in range(n) for i in range(4)]
    rs = [VR2 + 4*k + 3 for k in range(4*n)]
    ck = [f"v_max3_u32 v{vVA}, v{rs[0]}, v{rs[1]}, v{rs[2]}"]
    k = 3
    while k + 1 < len(rs): ck.append(f"v_max3_u32 v{vVA}, v{vVA}, v{rs[k]}, v{rs[k+1]}"); k += 2
    if k < len(rs): ck.append(f"v_max_u32 v{vVA}, v{vVA}, v{rs[k]}")
    ck.append(f"v_cmp_eq_u32 vcc, -1, v{vVA}")
    if L == 1 and G.opt.get("xe", 0):
        for l in between + G.poll_end_lines(G.xtag, att, rd, ck, "x0"): G.p(l)
    else: G.poll(att, rd, ck, "x0", between)

def mlp(G):
    p = G.p
    G.nf = (G.opt.get("nf0", 2), G.opt.get("nf1", 2))
    for L in range(2):
        if L == 0:
            from gen_front import handover
            between = handover(G)
        else:
            between = G.between
        x_start(G, L, between)
        p("s_waitcnt lgkmcnt(0)\ns_barrier")
        G.stamp(f"g1go{L}")
        left = gemm1_normal(G, L)
        if G.stop == "g1" or (G.stop == "g1b" and L == 1): return
        gemm2(G, L, left)
        if G.stop == "g2": return
```

```python
import sys, os
sys.path.insert(0, "tools")
from pg import Prog, weave

NAME = "interleave_layers__ssm_conv_h3__glu_gated_reglu__prompt_kernel"
HEADER = open("interleave_layers__ssm_conv_h3__glu_gated_reglu__prompt.s.ref").read().split("; Override")[0].rstrip()
S, D, F = 2048, 512, 1376

WS_EPOCH = 0x0
WS_FLAGS = 0x20000
WS_HFL = 0x60000
WS_STQ, WS_STX = 0xE80000, 0xEC0000
WS_STA = (0xF00000, 0xF40000)
WS_HINT = 0x500000
KP = int(os.environ.get('KP', 12416))
WS_KVG = 0x100000
import os
XP = int(os.environ.get('XP', 16512))
QP = int(os.environ.get('QP', 16512))
WS_X1B = 0x820000
WS_YB = 0xA40000
WS_X3B = 0xC60000
WS_HF = (0x1000000, 0x1600000)
HF_PITCH = 180 * 256
WS_DBG = 0x1C00000
WS_SIZE = 0x2000000

L_TC = 0; TC_STRIDE = 4160; TC_CH = 4 * TC_STRIDE
L_RS = 0
L_U = 33280; U_CH = 4608
L_WST = 61408; WST_UP = 49152 + 16
L_XS = 0
L_A = 114688
L_SP = 147456
L_MISC = 159744
LDS_SIZE = 163840

sX, sJ, sW, sTAG, sC = 3, 4, 5, 6, 7
sQP, sSKP, sDP = 16, 20, 22
SRD_K, SRD_V, SRD_H, SRD_WG, SRD_WU, SRD_WD, SRD_WS, SRD_O = 24, 28, 32, 36, 40, 44, 48, 52
sD0, sD1 = 56, 57
sDEAD, sSPIN = 58, 59
sR0 = 60
sHB, sCT = 61, 62
sT = 64
sM = 80
sST = 90
SPIN_MAX = 400000

LOC = [0]
WT = set()
def SC(kind): return "" if kind not in WT and ((kind[0] == "g" and LOC[0] >= 1) or (kind[0] == "c" and LOC[0] >= 2)) else "sc1"
def srd(n): return "s[%d:%d]" % (n, n + 3)
def vr(a, n=1): return "v%d" % a if n == 1 else "v[%d:%d]" % (a, a + n - 1)
def ar(a, n=1): return "a%d" % a if n == 1 else "a[%d:%d]" % (a, a + n - 1)
def mfma(d, a, b, c=None):
    return "v_mfma_f32_16x16x32_bf16 %s, %s, %s, %s" % (vr(d, 4), a, b, vr(d, 4) if c is None else c)

class Gen:
    def __init__(self, stop=None, stamps=False, skip=()):
        self.skip = set(skip)
        self.p = Prog()
        self.fix = []
        self.stop = stop
        self.stamps = stamps
        self.nst = 0
        self.stnames = []
        self.extra = []
        self.probe = None
        self.opt = {}

    def stamp(self, name):
        if not self.stamps: return
        p = self.p
        if name not in self.skip and name != "end": return
        if name in self.stnames: idx = self.stnames.index(name)
        else:
            assert self.nst < 12
            idx = self.nst; self.nst += 1; self.stnames.append(name)
        p("s_waitcnt lgkmcnt(0)\ns_memrealtime s[80:81]\ns_waitcnt lgkmcnt(0)\ns_mov_b32 s%d, s80" % (sST + idx))

    def spin_guard(self, lback):
        return ["s_cmp_lg_u32 s%d, 0" % sDEAD, "s_cbranch_scc1 %s" % lback,
                "s_add_u32 s%d, s%d, 1" % (sSPIN, sSPIN), "s_cmp_lt_u32 s%d, %d" % (sSPIN, SPIN_MAX),
                "s_cselect_b32 s%d, 0, 1" % sDEAD]

    CATS = ["kvg", "y", "x0", "hint", "m", "h0", "h1", "st"]
    def add_fix(self, body_reload, body_check, cat="st", after=()):
        p = self.p
        lf = p.new("FIX"); lb = p.new("BACK")
        ci = self.CATS.index(cat)
        cnt = [f"s_add_u32 s{88 + ci // 4}, s{88 + ci // 4}, {1 << (8 * (ci % 4))}"] if self.stamps else []
        blk = [lf + ":"] + cnt + self.spin_guard(lb + "_x") + body_reload + ["s_waitcnt vmcnt(0) lgkmcnt(0)"] + body_check + \
              ["s_cbranch_vccnz %s" % lf] + list(after) + [lb + "_x:", "s_waitcnt vmcnt(0) lgkmcnt(0)", "s_nop 7", "s_branch %s" % lb]
        self.fix.append(blk)
        return lf, lb

    def poll(self, att, mid, check, cat, between=()):
        p = self.p
        n = sum(1 for l in att for x in l.split("\n") if x.startswith(("buffer_", "global_")))
        tag = p.new("at")
        def tagged(t): return ["\n".join((x.split(" @")[0] + " @" + t) if x.lstrip("!").startswith(("buffer_", "global_")) else x for x in l.split("\n")) for l in att]
        lf = p.new("FIX"); lb = p.new("BACK")
        ci = self.CATS.index(cat)
        cnt = [f"s_add_u32 s{88 + ci // 4}, s{88 + ci // 4}, {1 << (8 * (ci % 4))}"] if self.stamps else []
        blk = [lf + ":"] + cnt + self.spin_guard(lb + "_x") + tagged(tag + "~") + [f"s_waitcnt vmcnt({n})"] + mid + ["s_waitcnt lgkmcnt(0)"] + check + \
              ["s_cbranch_vccnz %s" % lf, lb + "_x:", "s_waitcnt lgkmcnt(0)", "s_nop 7", "s_branch %s" % lb]
        self.fix.append(blk)
        if cat in self.opt.get("single", ("kvg", "y", "x0", "st")):
            blk[blk.index(f"s_waitcnt vmcnt({n})")] = "s_waitcnt vmcnt(0)"
            for l in tagged(tag): p(l)
            for l in between: p(l)
            p(f"@wv {tag}")
            for l in mid + check: p(l)
            p(f"s_cbranch_vccnz {lf}\n{lb}:")
            return tag
        for l in tagged(tag): p(l)
        for l in between: p(l)
        for l in tagged(tag + "~"): p(l)
        p(f"@wv {tag}")
        for l in mid + check: p(l)
        p(f"s_cbranch_vccnz {lf}\n{lb}:")
        return tag + "~"

    HREG = list(range(24, 36)) + [18, 19, 20, 21]
    sHB_, sHO = 0, 15
    def hint_init(self):
        return [f"s_add_u32 s0, s{SRD_WS}, 0x{WS_HINT:x}", f"s_addc_u32 s1, s{SRD_WS+1}, 0", f"s_lshl_b32 s{self.sHO}, s2, 12", f"s_lshl_b32 s13, s{sW}, 10",
                f"s_add_u32 s{self.sHO}, s{self.sHO}, s13", f"s_add_u32 s{self.sHO}, s{self.sHO}, 0x{WS_HINT:x}"]
    def hint_st(self, kind, vtag):
        return f"s_mov_b64 exec, 1\nbuffer_store_dword v{vtag}, off, {srd(SRD_WS)}, s{self.sHO} offset:{128*kind} sc1\ns_mov_b64 exec, -1"
    def hint_ld(self, so, offs):
        return [f"s_load_dword s{self.HREG[i]}, s[0:1], s{so} offset:0x{o:x} glc" for i, o in enumerate(offs)]
    def hint_wait(self, so, offs, cat):
        p = self.p; r = self.HREG
        ck = ["s_waitcnt lgkmcnt(0)"] + [f"s_and_b32 s{r[0]}, s{r[0]}, s{r[i]}" for i in range(1, len(offs))] + [f"s_cmp_lg_u32 s{r[0]}, s{sTAG}"]
        lf = p.new("FIX"); lb = p.new("BACK")
        ci = self.CATS.index(cat)
        cnt = [f"s_add_u32 s{88 + ci // 4}, s{88 + ci // 4}, {1 << (8 * (ci % 4))}"] if self.stamps else []
        self.fix.append([lf + ":"] + cnt + self.spin_guard(lb) + self.hint_ld(so, offs) + ck + [f"s_cbranch_scc1 {lf}", f"s_branch {lb}"])
        return ck + [f"s_cbranch_scc1 {lf}", lb + ":"]

    def poll_begin(self, att):
        tag = self.p.new("at")
        for l in att:
            self.p("\n".join((x.split(" @")[0] + " @" + tag) if x.lstrip("!").startswith(("buffer_", "global_")) else x for x in l.split("\n")))
        return tag
    def poll_end_lines(self, tag, att, mid, check, cat):
        lf, lb = self.add_fix([l.split(" @")[0] for l in att] + ["s_waitcnt vmcnt(0)"] + mid, check, cat)
        return ([f"@wv {tag}"] if tag else []) + mid + check + [f"s_cbranch_vccnz {lf}", lb + ":"]

    def finish(self):
        p = self.p
        p(f"""s_cmp_lg_u32 s2, 0
s_cbranch_scc1 L_NOEP
v_mov_b32 v21, 0
v_mov_b32 v22, s{sTAG}
s_mov_b64 exec, 1
buffer_store_dword v22, v21, {srd(SRD_WS)}, 0 offen sc1
s_mov_b64 exec, -1
L_NOEP:""")
        if self.stamps:
            p("s_waitcnt vmcnt(0)")
            self.stamp("end")
            p(f"s_cmp_lg_u32 s{sW}, 0\ns_cbranch_scc1 L_END")
            p(f"s_lshl_b32 s{sT}, s2, 6\ns_add_u32 s{sT}, s{sT}, 0x{WS_DBG:x}\nv_mov_b32 v21, 0\ns_mov_b64 exec, 1")
            for i in range(self.nst):
                p(f"v_mov_b32 v22, s{sST+i}\nbuffer_store_dword v22, v21, {srd(SRD_WS)}, s{sT} offen offset:{4*i}")
            p(f"v_mov_b32 v22, s88\nbuffer_store_dword v22, v21, {srd(SRD_WS)}, s{sT} offen offset:52\nv_mov_b32 v22, s89\nbuffer_store_dword v22, v21, {srd(SRD_WS)}, s{sT} offen offset:56")
            p(f"v_mov_b32 v22, s{sSPIN}\nbuffer_store_dword v22, v21, {srd(SRD_WS)}, s{sT} offen offset:60")
        p("L_END:\ns_endpgm")
        labels = {it.arg for pr in [p] + self.extra for it in pr.items if getattr(it, "kind", "") == "label"}
        for blk in self.fix:
            if blk[-1].split()[-1] not in labels: continue
            p.fresh()
            for l in blk: p(l)

    def build(self):
        self.code_kb = 64
        import gen as _g
        _g.LOC[0] = self.opt.get("loc", 0); _g.WT.update(self.opt.get("wt", ()))
        import pg as _pg
        _pg.EXCL[0] = self.opt.get("excl", 0)
        from gen_front import front, conv
        front(self)
        conv(self)
        if self.stop != "conv":
            from gen_mlp import mlp
            mlp(self)
        self.finish()
        body = self.p.finalize()
        for e in self.extra: body += e.finalize()
        if self.opt.get("aln", 0):
            from align import align
            body, a_, b_ = align(body)
            print("align: promoted", a_, "nops", b_)
        txt = [HEADER, f"; @launch grid=(256,1,1) block=(256,1,1) lds={LDS_SIZE}", '.amdgcn_target "amdgcn-amd-amdhsa--gfx950"', ".text",
               f".globl {NAME}", ".p2align 8", f".type {NAME},@function", NAME + ":"] + body
        txt += [".p2align 8", f".fill (65536 + 2048 - (. - {NAME})) / 4, 4, 0xbf800000"]
        txt += ['.section .rodata,"a"', ".p2align 6", f".amdhsa_kernel {NAME}", "  .amdhsa_next_free_vgpr 512", "  .amdhsa_next_free_sgpr 102",
                "  .amdhsa_accum_offset 256", "  .amdhsa_group_segment_fixed_size 0", "  .amdhsa_kernarg_size 104", "  .amdhsa_user_sgpr_count 2",
                "  .amdhsa_user_sgpr_kernarg_segment_ptr 1", "  .amdhsa_system_sgpr_workgroup_id_x 1", ".end_amdhsa_kernel"]
        t = "\n".join(txt) + "\n"
        if self.probe is not None: t = add_probe(t, *self.probe)
        return t

def add_probe(t, col, K, mode="max"):
    t = t.replace(f"; @launch grid=(256,1,1) block=(256,1,1) lds={LDS_SIZE}",
                  f"; @launch kernel={NAME} grid=(256,1,1) block=(256,1,1) lds={LDS_SIZE}\n; @launch kernel=probe_kernel grid=(1,1,1) block=(64,1,1) lds=0")
    red = "v_max_u32" if mode == "max" else "v_add_u32"
    code = [".text", ".globl probe_kernel", ".p2align 8", ".type probe_kernel,@function", "probe_kernel:",
            "s_cmp_ge_u32 s2, 1", "s_cbranch_scc1 PR_END", "s_load_dwordx2 s[4:5], s[0:1], 96", "s_waitcnt lgkmcnt(0)",
            f"s_add_u32 s4, s4, 0x{WS_DBG:x}", "s_addc_u32 s5, s5, 0", "v_lshlrev_b32 v1, 8, v0"]
    for i in range(4):
        code += [f"global_load_dword v{2+i}, v1, s[4:5] offset:{64*i}", f"global_load_dword v{6+i}, v1, s[4:5] offset:{64*i + 4*col}"]
    code += ["s_waitcnt vmcnt(0)", "v_min_u32 v2, v2, v3", "v_min_u32 v4, v4, v5", "v_min_u32 v2, v2, v4"]
    code += ["s_mov_b32 s10, -1", "s_nop 2"]
    for l in range(64): code += [f"v_readlane_b32 s11, v2, {l}", "s_nop 0", "s_min_u32 s10, s10, s11"]
    for i in range(4): code += [f"v_subrev_u32 v{6+i}, s10, v{6+i}"]
    code += [f"{red} v6, v6, v7", f"{red} v8, v8, v9", f"{red} v6, v6, v8", "s_mov_b32 s12, 0", "s_nop 2"]
    for l in range(64): code += [f"v_readlane_b32 s11, v6, {l}", "s_nop 0", ("s_max_u32" if mode == "max" else "s_add_u32") + " s12, s12, s11"]
    if mode != "max": code += ["s_lshr_b32 s12, s12, 8"]
    code += [f"s_mul_i32 s12, s12, {K}", "s_min_u32 s12, s12, 200000", "s_memrealtime s[14:15]", "s_waitcnt lgkmcnt(0)",
             "PR_LOOP:", "s_memrealtime s[16:17]", "s_waitcnt lgkmcnt(0)", "s_sub_u32 s16, s16, s14", "s_cmp_lt_u32 s16, s12", "s_cbranch_scc1 PR_LOOP",
             "PR_END:", "s_endpgm"]
    kd = [".p2align 6", ".amdhsa_kernel probe_kernel", "  .amdhsa_next_free_vgpr 32", "  .amdhsa_next_free_sgpr 32", "  .amdhsa_accum_offset 32",
          "  .amdhsa_group_segment_fixed_size 0", "  .amdhsa_kernarg_size 104", "  .amdhsa_user_sgpr_count 2",
          "  .amdhsa_user_sgpr_kernarg_segment_ptr 1", "  .amdhsa_system_sgpr_workgroup_id_x 1", ".end_amdhsa_kernel"]
    t = t.replace('.section .rodata,"a"', "\n".join(code) + '\n.section .rodata,"a"')
    return t + "\n".join(kd) + "\n"

if __name__ == "__main__":
    import argparse
    ap = argparse.ArgumentParser()
    ap.add_argument("-o", default="k.s")
    ap.add_argument("--stop", default=None)
    ap.add_argument("--stamps", action="store_true")
    ap.add_argument("--st", default="")
    ap.add_argument("--probe", default="")
    ap.add_argument("--opt", default="")
    a = ap.parse_args()
    g = Gen(stop=a.stop, stamps=a.stamps, skip=a.st.split(','))
    for kv in a.opt.split(","):
        if kv:
            k_, v_ = kv.split("=")
            g.opt[k_] = v_.split("+") if k_ in ("single", "wt") else int(v_)
    if a.probe:
        q = a.probe.split(","); g.probe = (int(q[0]), int(q[1]), q[2] if len(q) > 2 else "max")
    t = g.build()
    open(a.o, "w").write(t)
    open(a.o + ".stamps", "w").write(" ".join(g.stnames))
    print("lines", g.p.stats, "stamps", g.stnames)
```

```python
import sys
sys.path.insert(0, "tools")
from pg import weave, Weaver
from gen import *

WS = srd(SRD_WS)
fTW, fUZ, fRSW, fRSR, fKVR, fHP, fFA, fFB = range(220, 228)
QT8 = 228
fK, fKh, fK4, fSK, fKVG, fH, fPF = range(236, 243)
fWD = 243
fWT = 246
fCO, fCA, fCB, fT16 = 252, 253, 254, 255
ONE = 212
POI = 236
GR = 208
CS = 32
WH = (61376, 110560); WUP = 24576 + 16
sP = sT
sWs, sWm = sT + 6, sT + 7

NOW = [0]; ASC = [0]
KVMAP = ["""v_and_b32 v21, 15, v0
v_bfe_u32 v22, v0, 6, 1
v_lshl_add_u32 v21, v22, 4, v21
v_bfe_u32 v22, v0, 4, 2
v_lshrrev_b32 v23, 7, v0
v_lshl_add_u32 v22, v23, 2, v22""", """v_and_b32 v21, 7, v0
v_lshl_add_u32 v21, v2, 3, v21
v_bfe_u32 v22, v0, 3, 3""", """v_lshrrev_b32 v21, 3, v0
v_and_b32 v22, 7, v0""", """v_and_b32 v21, 31, v0
v_lshrrev_b32 v22, 5, v0"""]
MAPS = [f"""s_and_b32 s{sHB}, s{sX}, 1
s_lshl_b32 s{sC}, s{sHB}, 3
s_add_u32 s{sC}, s{sC}, s{sCT}
s_and_b32 s{sR0}, s{sJ}, 24
s_lshr_b32 s{sT+2}, s{sX}, 1
s_lshl_b32 s{sT+2}, s{sT+2}, 5
s_add_u32 s{sR0}, s{sR0}, s{sT+2}""", f"""s_bfe_u32 s{sHB}, s{sJ}, 0x10003
s_and_b32 s{sC}, s{sJ}, 15
s_lshr_b32 s{sR0}, s{sJ}, 4
s_lshl_b32 s{sR0}, s{sR0}, 3
s_lshl_b32 s{sT+2}, s{sX}, 4
s_add_u32 s{sR0}, s{sR0}, s{sT+2}"""]
YP = 2 * XP
def w_round(r):
    if NOW[0] == 2: return []
    o = [f"s_mul_i32 s{sWs}, s{sW}, {2*44032}", f"s_add_u32 s{sWs}, s{sWs}, {r*8*44032}"]
    for blk in range(2):
        for (sr, lo) in ((SRD_WG, 0), (SRD_WU, WUP)):
            for ph in range(3):
                o.append(f"s_add_u32 m0, s{sWm}, {WH[r % 2] + lo + blk*3072 + ph*1024}\nbuffer_load_dwordx4 v{fWD+ph}, {srd(sr)}, s{sWs} offen lds @w{r}")
        if blk == 0: o.append(f"s_add_u32 s{sWs}, s{sWs}, 44032")
    return o

def w_tr(r):
    return [f"ds_read_b64_tr_b16 {ar(64*t + 4*(4*r + k) + 2*h, 2)}, v{fWT + 3*(r % 2) + t} offset:{k*6144 + h*3072} @t{r}"
            for k in range(4) for t in range(3) for h in range(2)]

def w_cs(r):
    return [mfma(CS + 4*t, ar(64*t + 4*(4*r + k), 4), vr(ONE, 4), "0" if (r == 0 and k == 0) else None) for k in range(4) for t in range(3)]

def sprinkle(lines, extra, every, start=0):
    out = []; due = 0
    for i, l in enumerate(lines):
        out.append(l)
        if i >= start and (i - start) % every == 0: due = 1
        if due and not (i + 1 < len(lines) and lines[i + 1].startswith(("s_cselect", "s_cbranch", "s_addc"))):
            due = 0
            while extra and "\n" not in extra[0] and not extra[0].startswith(("buffer", "global")): out.append(extra.pop(0))
            if extra: out.append(extra.pop(0))
    return out

def front(G):
    import gen_mlp as M
    p = G.p
    NOW[0] = G.opt.get("nw", 0); ASC[0] = G.opt.get("asc", 0)
    if G.stamps:
        p("s_memrealtime s[80:81]\ns_waitcnt lgkmcnt(0)\ns_mov_b32 s%d, s80" % sST); G.nst = 1; G.stnames = ["start"]
    p("s_cmp_ge_u32 s2, 256\ns_cbranch_scc1 L_END")
    for reg, off in ((SRD_K, 8), (SRD_V, 16), (sSKP, 24), (SRD_WS, 96), (SRD_H, 32), (sQP, 0), (sDP, 40),
                     (SRD_WG, 56), (SRD_WU, 64), (SRD_WD, 72), (SRD_O, 80)):
        p("s_load_dwordx2 s[%d:%d], s[0:1], %d" % (reg, reg + 1, off))
    if G.opt.get("ipf", 0):
        p(f"s_getpc_b64 s[{sT+4}:{sT+5}]\nv_lshlrev_b32 v21, 7, v0\nglobal_load_dword a251, v21, s[{sT+4}:{sT+5}]")
    p(f"""s_and_b32 s{sX}, s2, 7
s_lshr_b32 s{sJ}, s2, 3
v_lshrrev_b32 v2, 6, v0
v_and_b32 v1, 63, v0
{KVMAP[G.opt.get("kfull", 3)]}
s_add_u32 s{sT+1}, s{sX}, {"s%d" % sJ if G.opt.get("rotk", 0) else 0}
s_and_b32 s{sT+1}, s{sT+1}, 7
s_lshl_b32 s{sT+1}, s{sT+1}, 5
v_add_u32 v21, s{sT+1}, v21
s_lshl_b32 s{sT+1}, s{sX}, 5
s_lshl_b32 s{sT+2}, s{sJ}, 3
v_add_u32 v22, s{sT+2}, v22
v_lshlrev_b32 v{fK}, 13, v22
v_lshl_add_u32 v{fK}, v21, 2, v{fK}
v_subrev_u32 v{fKh}, 3072, v{fK}
v_add_u32 v{fK4}, 4096, v{fK}
v_lshlrev_b32 v{fSK}, 4, v21
v_mul_u32_u24 v{fKVG}, {KP}, v21
v_lshl_add_u32 v{fKVG}, v22, 4, v{fKVG}
s_add_u32 s{sP}, s{sT+1}, s{sJ}""")
    for reg, size in ((SRD_K, S*D*2), (SRD_V, S*D*2), (SRD_H, S*D*2), (SRD_WG, D*F*2), (SRD_WU, D*F*2), (SRD_WD, D*F*2),
                      (SRD_WS, WS_SIZE), (SRD_O, S*D*2), (sQP, S*D*2)):
        p("s_mov_b32 s%d, 0x%x\ns_mov_b32 s%d, 0x00020000" % (reg + 2, size, reg + 3))
    p(f"""v_readfirstlane_b32 s{sW}, v2
s_lshl_b32 s{sT+2}, s{sP}, 13
v_lshlrev_b32 v{fH}, 5, v0
v_add_u32 v{fH}, s{sT+2}, v{fH}
s_xor_b32 s{sCT}, s{sJ}, {G.opt.get("rot", 0)}
s_and_b32 s{sCT}, s{sCT}, 7
{MAPS[G.opt.get("one", 1)]}
s_waitcnt lgkmcnt(0)""")
    KR, VR, SK, HA, HB_ = 48, 59, 68, 88, 98
    for i in range(3): p(f"buffer_load_dword v{KR+i}, v{fKh}, {srd(SRD_K)}, 0 offen offset:{1024*i}")
    for i in range(8): p(f"buffer_load_dword v{KR+3+i}, v{fK if i < 4 else fK4}, {srd(SRD_K)}, 0 offen offset:{1024*(i%4)}")
    p(f"global_load_dwordx4 v[{SK}:{SK+3}], v{fSK}, s[{sSKP}:{sSKP+1}]")
    for i in range(8): p(f"buffer_load_dword v{VR+i}, v{fK if i < 4 else fK4}, {srd(SRD_V)}, 0 offen offset:{1024*(i%4)}")
    p(f"""s_load_dword s{sTAG}, s[{SRD_WS}:{SRD_WS+1}], {WS_EPOCH}
s_lshl_b32 s{sT+1}, s{sP}, 2
s_load_dword s{sD0}, s[{sDP}:{sDP+1}], s{sT+1}""")
    if G.opt.get("ipf", 0):
        p(f"""s_lshl_b32 s{sT+2}, s{sJ}, 10
s_add_u32 s{sT+2}, s{sT+2}, 0x8000
v_and_b32 v{fPF}, 7, v0""")
    else:
        p(f"""s_getpc_b64 s[{sT+4}:{sT+5}]
s_lshl_b32 s{sT+2}, s{sJ}, 11
v_and_b32 v{fPF}, 15, v0""")
    p(f"""v_lshlrev_b32 v{fPF}, 7, v{fPF}
v_add_u32 v{fPF}, s{sT+2}, v{fPF}
global_load_dword a255, v{fPF}, s[{sT+4}:{sT+5}]""")
    if G.opt.get("kw", 0):
        p("v_mov_b32 v108, 0\nv_mov_b32 v109, 0\nv_mov_b32 v110, 0\nv_mov_b32 v111, 0")
        for pl in range(3): p(f"s_mov_b32 s{sT+2}, 0x{WS_KVG + 4096*pl:x}\nbuffer_store_dwordx4 v[108:111], v{fKVG}, {WS}, s{sT+2} offen sc1")
    TW = f"""v_min_u32 v21, 10, v1
v_mad_u32_u24 v21, v2, 11, v21
v_min_u32 v21, 42, v21
v_lshlrev_b32 v21, 7, v21
s_mul_i32 s{sT+2}, s2, 5504
buffer_load_dword a252, v21, {srd(SRD_WG)}, s{sT+2} offen
buffer_load_dword a253, v21, {srd(SRD_WU)}, s{sT+2} offen
buffer_load_dword a254, v21, {srd(SRD_WD)}, s{sT+2} offen""".split("\n")
    tw = G.opt.get("tw", 3)
    if tw == 1:
        for l in TW: p(l)
    LD = f"""buffer_load_dwordx4 v[{HA}:{HA+3}], v{fH}, {srd(SRD_H)}, 0 offen
buffer_load_dwordx4 v[{HA+4}:{HA+7}], v{fH}, {srd(SRD_H)}, 0 offen offset:16
buffer_load_dwordx2 v[{HA+8}:{HA+9}], v{fH}, {srd(SRD_H)}, 0 offen offset:32
buffer_load_dwordx4 v[{HB_}:{HB_+3}], v{fH}, {srd(SRD_H)}, 0 offen offset:4
buffer_load_dwordx4 v[{HB_+4}:{HB_+7}], v{fH}, {srd(SRD_H)}, 0 offen offset:20""".split("\n")
    A0 = M.early_lines() + [f"v_add_u32 v23, s{M.sOB}, v{M.vOA}", "v_add_u32 v22, 0x10000, v23"]
    ql = G.opt.get("ql", 0)
    if ql: A0[-2:] = [f"v_add_u32 v{QT8}, s{M.sOB}, v{M.vOA}", f"v_add_u32 v{QT8+4}, 0x10000, v{QT8}"]
    QL = [f"buffer_load_dwordx4 v[{QT8+4*P}:{QT8+4*P+3}], v{QT8+4*P}, {srd(sQP)}, 0 offen" for P in range(2)]
    for l in sprinkle(A0, LD, 4) + LD: p(l)
    if not ql: p(f"buffer_load_dwordx4 v[{QT8}:{QT8+3}], v23, {srd(sQP)}, 0 offen\nbuffer_load_dwordx4 v[{QT8+4}:{QT8+7}], v22, {srd(sQP)}, 0 offen")
    if tw == 2:
        for l in TW: p(l)
    A = f"""s_mov_b32 s{sDEAD}, 0
s_mov_b32 s{sSPIN}, 0
s_cmp_ge_u32 s{sC}, {0 if NOW[0] else 15}
s_cselect_b32 s{SRD_WG+2}, 0, s{SRD_WG+2}
s_cselect_b32 s{SRD_WU+2}, 0, s{SRD_WU+2}
s_mul_i32 s{sT+2}, s{sC}, 192
s_mul_i32 s{sWm}, s{sW}, {2*3072}""".split("\n")
    if G.stamps: A += ["s_mov_b32 s88, 0", "s_mov_b32 s89, 0"]
    for ph in range(3):
        A += f"""v_add_u32 v21, {64*ph}, v1
v_mul_u32_u24 v22, 5462, v21
v_lshrrev_b32 v22, 16, v22
v_mul_u32_u24 v23, 12, v22
v_sub_u32 v21, v21, v23
v_bfe_u32 v23, v22, 2, 1
v_lshlrev_b32 v23, 1, v23
v_xor_b32 v21, v21, v23
v_mul_u32_u24 v22, 2752, v22
v_lshl_add_u32 v22, v21, 4, v22
v_add_u32 v{fWD+ph}, s{sT+2}, v22""".split("\n")
    HN = G.opt.get("hint", 0)
    if HN:
        A += G.hint_init() + [f"v_mov_b32 v{108+i}, 0" for i in range(4)]
        A += [f"buffer_store_dwordx4 v[108:111], v{M.vL16}, {WS}, s{G.sHO} offen sc1"]
    k3 = G.opt.get("kfull", 3) == 3
    L_KX = 43008
    if k3:
        A += f"""v_and_b32 v21, 31, v0
v_lshrrev_b32 v22, 5, v0
v_add_u32 v22, v22, v21
v_and_b32 v22, 7, v22
v_lshlrev_b32 v22, 4, v22
v_lshl_add_u32 v{fRSW}, v21, 7, v22
v_lshrrev_b32 v21, 3, v0
v_add_u32 v22, v0, v21
v_and_b32 v22, 7, v22
v_lshlrev_b32 v22, 4, v22
v_lshl_add_u32 v{fRSR}, v21, 7, v22
s_add_u32 s{sT+2}, s{sX}, {"s%d" % sJ if G.opt.get("rotk", 0) else 0}
s_and_b32 s{sT+2}, s{sT+2}, 7
s_lshl_b32 s{sT+2}, s{sT+2}, 5
v_add_u32 v21, s{sT+2}, v21
v_mul_u32_u24 v{fKVG}, {KP}, v21
v_and_b32 v22, 7, v0
v_lshl_add_u32 v{fKVG}, v22, 4, v{fKVG}
s_lshl_b32 s{sT+2}, s{sJ}, 7
v_add_u32 v{fKVG}, s{sT+2}, v{fKVG}""".split("\n")
    nA = len(A)
    A += [f"v_mov_b32 v{POI+i}, -1" for i in range(4)]
    A += f"""v_bfe_u32 v21, v0, 4, 1
v_bfe_u32 v22, v0, 5, 1
v_and_b32 v23, 15, v0
v_bfe_u32 v{fCO}, v0, 3, 1
v_lshl_add_u32 v{fCO}, v2, 2, v{fCO}
v_and_b32 v{fKVR}, 3, v0
v_lshl_add_u32 v{fCO}, v{fCO}, 2, v{fKVR}
v_mul_u32_u24 v{fCO}, {YP}, v{fCO}
v_lshl_add_u32 v{fCO}, v21, 6, v{fCO}
v_lshl_add_u32 v{fCO}, v22, 4, v{fCO}
v_bfe_u32 v{fKVR}, v0, 2, 1
v_lshl_add_u32 v{fCO}, v{fKVR}, 5, v{fCO}
s_lshl_b32 s{sT+2}, s{sP}, 7
v_add_u32 v{fCO}, s{sT+2}, v{fCO}
v_lshlrev_b32 v{fKVR}, 5, v23
v_lshl_add_u32 v{fKVR}, v22, 4, v{fKVR}
v_xor_b32 v21, 1, v21
v_lshl_add_u32 v{fKVR}, v21, 3, v{fKVR}
v_lshl_add_u32 v{fKVR}, v2, 10, v{fKVR}
v_lshrrev_b32 v21, 7, v0
v_mul_u32_u24 v{fTW}, {TC_CH}, v21
v_and_b32 v22, 127, v0
v_lshl_add_u32 v{fTW}, v22, 5, v{fTW}
v_cmp_eq_u32 s[{sM+2}:{sM+3}], 0, v22
v_bfe_u32 v21, v0, 5, 1
v_mul_u32_u24 v{fUZ}, {U_CH}, v21
v_and_b32 v22, 31, v0
v_lshl_add_u32 v{fUZ}, v22, 4, v{fUZ}
v_lshlrev_b32 v{fT16}, 4, v0""".split("\n")
    A += M.setup_early()
    G.late = M.setup_late()
    A2 = f"""v_bfe_u32 v21, v0, 2, 4
v_mul_u32_u24 v{fWT}, 192, v21
v_bfe_u32 v22, v0, 4, 1
v_xor_b32 v23, v22, v2
v_lshl_add_u32 v{fWT+1}, v23, 5, v{fWT}
v_and_b32 v23, 3, v0
v_lshl_add_u32 v{fWT+1}, v23, 3, v{fWT+1}
v_lshlrev_b32 v22, 1, v22
v_add_u32 v23, 8, v2
v_xor_b32 v23, v23, v22
v_lshl_add_u32 v{fWT+2}, v23, 4, v{fWT}
v_and_b32 v23, 1, v0
v_lshl_add_u32 v{fWT+2}, v23, 3, v{fWT+2}
v_bfe_u32 v23, v0, 1, 1
v_mul_u32_u24 v23, {WUP}, v23
v_add_u32 v{fWT+2}, v{fWT+2}, v23
v_add_u32 v{fWT+2}, {WH[0]}, v{fWT+2}
v_add_u32 v{fWT}, {WH[0]}, v{fWT+1}
v_add_u32 v{fWT+1}, {WH[0] + WUP}, v{fWT+1}""".split("\n")
    A2 += [f"v_add_u32 v{fWT+3+t}, {WH[1]-WH[0]}, v{fWT+t}" for t in range(3)]
    A2 += f"""v_lshl_add_u32 v{fRSW}, v2, 13, v{M.vL16}
v_lshl_add_u32 v{fRSR}, v2, 11, v{M.vL16}
v_mul_u32_u24 v22, {HF_PITCH}, v2
v_add_u32 v{fHP}, v{M.vL16}, v22
v_and_b32 v23, 15, v0
v_add_u32 v22, 1, v23
v_and_b32 v21, 3, v22
v_mul_u32_u24 v{fCA}, {TC_STRIDE}, v21
v_and_b32 v22, 28, v22
v_bfe_u32 v21, v0, 4, 2
v_lshl_add_u32 v{fCB}, v23, 1, v21
v_lshlrev_b32 v{fCB}, 4, v{fCB}
v_lshlrev_b32 v21, 3, v21
v_sub_u32 v22, v22, v21
v_add_u32 v22, 8, v22
v_lshl_add_u32 v{fCA}, v22, 1, v{fCA}
s_lshr_b32 s{sT+2}, s{sW}, 1
s_and_b32 s{sT+3}, s{sW}, 1
s_mul_i32 s{sT+4}, s{sT+2}, {TC_CH}
s_lshl_b32 s{sT+5}, s{sT+3}, 8
s_add_u32 s{sT+4}, s{sT+4}, s{sT+5}
v_add_u32 v{fCA}, s{sT+4}, v{fCA}
s_mul_i32 s{sT+4}, s{sT+2}, {U_CH}
s_sub_u32 s{sT+4}, s{sT+4}, s{sT+5}
s_add_u32 s{sT+4}, s{sT+4}, {L_U}
v_add_u32 v{fCB}, s{sT+4}, v{fCB}
v_and_b32 v21, 7, v0
v_lshl_add_u32 v22, v2, 3, v21
v_lshlrev_b32 v{fFA}, 10, v22
s_lshr_b32 s{sT+2}, s{sR0}, 5
s_lshl_b32 s{sT+2}, s{sT+2}, 15
s_lshl_b32 s{sT+3}, s{sCT}, 7
s_add_u32 s{sT+2}, s{sT+2}, s{sT+3}
v_add_u32 v{fFA}, s{sT+2}, v{fFA}
v_lshlrev_b32 v{fFB}, 15, v2
v_lshl_add_u32 v{fFB}, v21, 10, v{fFB}
v_bfe_u32 v21, v0, 3, 1
v_lshl_add_u32 v{fFB}, v21, {13 if G.opt.get("one", 1) else 7}, v{fFB}
s_and_b32 s{sT+2}, s{sJ}, {16 if G.opt.get("one", 1) else 24}
s_lshl_b32 s{sT+2}, s{sT+2}, 10
s_and_b32 s{sT+3}, s{sX}, {7 if G.opt.get("one", 1) else 6}
s_lshl_b32 s{sT+3}, s{sT+3}, 7
s_add_u32 s{sT+2}, s{sT+2}, s{sT+3}
v_add_u32 v{fFB}, s{sT+2}, v{fFB}
v_bfe_u32 v21, v0, 4, 1
v_cmp_eq_u32 vcc, 1, v21
v_cndmask_b32 v{fFA}, v{fFB}, v{fFA}, vcc""".split("\n")
    WQ = w_round(0) + w_round(1)
    def take(n):
        o = []
        while WQ and (n > 0 or "\n" not in WQ[0]):
            if "\n" in WQ[0]: n -= 1
            o.append(WQ.pop(0))
        return o
    lt = G.opt.get("late", 2)
    if lt == 1: A += G.late; G.late = []
    if lt == 2: A2 += G.late; G.late = []
    assert not (k3 and lt >= 3)
    if lt == 3: A += A2 + G.late; G.late = []; A2 = []
    if lt == 4: A += A2; A2 = G.late; G.late = []
    u = take(G.opt.get("n0", 0))
    for l in sprinkle(A, u, G.opt.get("n0e", 14), nA) + u: p(l)
    print("front: A", len(A), "A2", len(A2))
    G.stamp("issued")
    if G.stamps and "kvin" in G.skip:
        p(f"v_mov_b32 v21, v{VR+7}"); G.stamp("kvin")
    KU, VU, WU_, AC, KD = 108, 130, 146, 154, 172
    for t in range(4):
        s0, s1 = SK + t // 2, SK + 2 + t // 2
        if t % 2 == 0: p(f"v_lshlrev_b32 v{WU_+2*t}, 16, v{s0}\nv_lshlrev_b32 v{WU_+2*t+1}, 16, v{s1}")
        else: p(f"v_and_b32 v{WU_+2*t}, 0xffff0000, v{s0}\nv_and_b32 v{WU_+2*t+1}, 0xffff0000, v{s1}")
    for i in range(11): p(f"v_lshlrev_b32 v{KU+2*i}, 16, v{KR+i}\nv_and_b32 v{KU+2*i+1}, 0xffff0000, v{KR+i}")
    if ql == 1:
        for l in QL: p(l)
    if tw == 5:
        for l in TW: p(l)
    for s in range(8):
        p(f"v_pk_mul_f32 v[{AC+2*s}:{AC+2*s+1}], v[{KU+2*s}:{KU+2*s+1}], v[{WU_+6}:{WU_+7}]")
    for t in (2, 1, 0):
        for s in range(8):
            k = KU + 2 * (s + 3 - t)
            p(f"v_pk_fma_f32 v[{AC+2*s}:{AC+2*s+1}], v[{k}:{k+1}], v[{WU_+2*t}:{WU_+2*t+1}], v[{AC+2*s}:{AC+2*s+1}]")
    p(f"""s_waitcnt lgkmcnt(0)
s_mul_i32 s{sTAG}, s{sTAG}, 0x9E3779B1
s_add_u32 s{sTAG}, s{sTAG}, 0x7F4A7C15
s_max_u32 s{sTAG}, s{sTAG}, 1
v_mov_b32 v{KD+3}, s{sTAG}
v_mov_b32 v{KD+7}, s{sTAG}
v_mov_b32 v{KD+10}, s{sTAG}
v_mov_b32 v{KD+11}, s{sTAG}""")
    for pl in range(3):
        for s in range(3 * pl, min(8, 3 * pl + 3)):
            p(f"v_lshlrev_b32 v{VU+2*s}, 16, v{VR+s}\nv_and_b32 v{VU+2*s+1}, 0xffff0000, v{VR+s}")
        for s in range(3 * pl, min(8, 3 * pl + 3)):
            p(f"v_pk_mul_f32 v[{AC+2*s}:{AC+2*s+1}], v[{AC+2*s}:{AC+2*s+1}], v[{VU+2*s}:{VU+2*s+1}]")
        for s in range(3 * pl, min(8, 3 * pl + 3)):
            p(f"v_cvt_pk_bf16_f32 v{KD+4*pl+s-3*pl}, v{AC+2*s}, v{AC+2*s+1}")
        if k3:
            p(f"ds_write_b128 v{fRSW}, v[{KD+4*pl}:{KD+4*pl+3}] offset:{L_KX + 4096*pl}"); continue
        p(f"s_mov_b32 s{sT+2}, 0x{WS_KVG + 4096*pl:x}")
        p(f"buffer_store_dwordx4 v[{KD+4*pl}:{KD+4*pl+3}], v{fKVG}, {WS}, s{sT+2} offen {SC('g')}")
    if k3:
        p("s_waitcnt lgkmcnt(0)\ns_barrier")
        for pl in range(3): p(f"ds_read_b128 v[{KD+12+4*pl}:{KD+15+4*pl}], v{fRSR} offset:{L_KX + 4096*pl}")
        for pl in range(3): p(f"s_mov_b32 s{sT+2}, 0x{WS_KVG + 4096*pl:x}\nbuffer_store_dwordx4 v[{KD+12+4*pl}:{KD+15+4*pl}], v{fKVG}, {WS}, s{sT+2} offen {SC('g')}")
    if ql == 2:
        for l in QL: p(l)
    if HN: p(G.hint_st(0, KD + 3))
    if tw == 3:
        for l in TW: p(l)
    G.stamp("kvst")
    if G.stamps and "kvack" in G.skip:
        p("s_waitcnt vmcnt(0)"); G.stamp("kvack")
    E0, E1, Z = 140, 148, 156
    X = (72, 80); QS = 240
    B = [f"v_permlane16_swap_b32 v{QT8+4*P}, v{QT8+4*P+2}" for P in range(2)] + [f"v_permlane16_swap_b32 v{QT8+4*P+1}, v{QT8+4*P+3}" for P in range(2)]
    B += M.unpack(X[0], QT8, 8) + M.publish(X, 0)[:-1] + [f"v_mov_b32 v{QS}, v{M.SS}"]
    B += M.s1_addr(QS + 2, QS + 1) + M.s1_both(QS + 1, QS + 2)
    B += [f"s_and_b32 s{sD1}, s{sD0}, 0xffff0000", f"s_lshl_b32 s{sD0}, s{sD0}, 16"]
    G.bconv = []; G.blate = []
    if G.opt.get("bq", 0):
        i0 = B.index("v_lshrrev_b32 v21, 1, v2")
        G.blate = B[:i0 - 1]; B = B[i0:]
    if G.opt.get("bc", 0):
        i0 = B.index("v_lshrrev_b32 v21, 1, v2")
        R_, T_ = 210, 214
        bq = M.spaced(B[:4])
        for P in range(2):
            for k in range(4):
                q = QT8 + 4*P + k
                bq += [f"v_lshlrev_b32 v{T_}, 16, v{q}", f"v_and_b32 v{T_+1}, 0xffff0000, v{q}"]
                if k == 0: bq += [f"v_add_f32 v{R_+2*P}, v{T_}, v{T_+1}", f"v_mul_f32 v{R_+2*P+1}, v{T_}, v{T_}"]
                else: bq += [f"v_add_f32 v{R_+2*P}, v{R_+2*P}, v{T_}", f"v_fmac_f32 v{R_+2*P+1}, v{T_}, v{T_}", f"v_add_f32 v{R_+2*P}, v{R_+2*P}, v{T_+1}"]
                bq += [f"v_fmac_f32 v{R_+2*P+1}, v{T_+1}, v{T_+1}"]
        bq += M.spaced(M.fold(R_, False)) + M.st_base(sT + 2, WS_STQ) + [f"!buffer_store_dword v{R_}, v{M.vSTW}, {WS}, s{sT+2} offen {SC('g')} @es"]
        G.bconv = bq
        B = B[i0:]
    ES = []
    for qq in range(2):
        ES += [f"s_mov_b32 s{sT+2}, 0x{WS_YB + qq*8*YP:x}", f"buffer_store_dwordx4 v[{POI}:{POI+3}], v{fCO}, {WS}, s{sT+2} offen sc1 @es"]
    ES += M.xtile_base(sT + 2, WS_X1B) + [f"buffer_store_dwordx4 v[{POI}:{POI+3}], v{M.vFO}, {WS}, s{sT+2+P} offen {SC('c')} @es" for P in range(2)]
    ES += M.st_base(sT + 2, WS_STQ) + ([] if G.bconv else [f"buffer_store_dword v{POI if G.blate else QS}, v{M.vSTW}, {WS}, s{sT+2} offen {SC('g')} @es"]) + [
           f"s_add_u32 s{sT+2}, s{sT+2}, 0x{WS_STA[0]-WS_STQ:x}"] + [f"buffer_store_dword v{POI}, v{QS+1}, {WS}, s{sT+2} offen {SC('c')} @es"]
    if G.opt.get("fwarm", 0):
        ES += [f"s_lshl_b32 s{sT+2}, s{sR0}, 10", f"s_lshl_b32 s{sT+3}, s{sC}, 7", f"s_add_u32 s{sT+2}, s{sT+2}, s{sT+3}", f"s_add_u32 s{sT+2}, s{sT+2}, 0x{WS_HFL:x}",
               "v_and_b32 v21, 31, v0", "v_lshlrev_b32 v21, 2, v21", "v_bfe_u32 v22, v0, 5, 1", "v_lshl_add_u32 v21, v22, 11, v21", "v_mov_b32 v22, 0",
               f"buffer_store_dword v22, v21, {WS}, s{sT+2} offen sc1 @es"]
    G.es = ES
    G.flag = [f"s_lshl_b32 s{sT+2}, s{sW}, 15", f"s_lshl_b32 s{sT+3}, s2, 7", f"s_add_u32 s{sT+2}, s{sT+2}, s{sT+3}",
              f"s_add_u32 s{sT+2}, s{sT+2}, 0x{WS_FLAGS:x}", f"v_mov_b32 v{QS}, s{sTAG}", f"v_lshlrev_b32 v{QS+1}, 2, v1", "@wv es",
              f"s_mov_b32 exec_hi, 0\nbuffer_store_dword v{QS}, v{QS+1}, {WS}, s{sT+2} offen sc1\ns_mov_b32 exec_hi, -1"]
    C = [f"v_alignbit_b32 v{E0+k}, v{HA+k+1}, v{HA+k}, 16" for k in range(8)] + [f"v_alignbit_b32 v{E1+k}, v{HA+k+2}, v{HA+k+1}, 16" for k in range(8)]
    for c, r in enumerate((HA, E0, HB_, E1)):
        C += [f"ds_write_b128 v{fTW}, v[{r}:{r+3}] offset:{L_TC + c*TC_STRIDE + 32}", f"ds_write_b128 v{fTW}, v[{r+4}:{r+7}] offset:{L_TC + c*TC_STRIDE + 48}"]
    C += [f"v_mov_b32 v{Z+i}, 0" for i in (0, 1, 2, 3, 4, 5, 6, 8, 9, 10, 12, 13)]
    C += [f"v_lshlrev_b32 v{Z+7}, 16, v{HA}", f"v_mov_b32 v{Z+11}, v{HA}", f"v_lshlrev_b32 v{Z+14}, 16, v{HA}", f"v_mov_b32 v{Z+15}, v{E0}",
          f"ds_write_b128 v{fUZ}, v[{Z}:{Z+3}] offset:{L_U}", f"s_mov_b64 exec, s[{sM+2}:{sM+3}]"]
    for c in range(4):
        C += [f"ds_write_b128 v{fTW}, v[{Z}:{Z+3}] offset:{L_TC + c*TC_STRIDE}", f"ds_write_b128 v{fTW}, v[{Z+4*c}:{Z+4*c+3}] offset:{L_TC + c*TC_STRIDE + 16}"]
    C += ["s_mov_b64 exec, -1"]
    if G.opt.get("esearly"):
        for l in B + ES: p(l)
        B = []; G.es = []
    ie = C.index(f"s_mov_b64 exec, s[{sM+2}:{sM+3}]")
    u = take(G.opt.get("nc", 3))
    for l in sprinkle(C[:ie], u, 12) + u + C[ie:]: p(l)
    G.stamp("cdone")
    p(f"s_mul_i32 s{sT+13}, s{sP}, {KP}\ns_add_u32 s{sT+13}, s{sT+13}, 0x{WS_KVG:x}\ns_add_u32 s{sT+14}, s{sT+13}, 4096\ns_add_u32 s{sT+15}, s{sT+13}, 8192")
    ld = [f"buffer_load_dwordx4 v[{GR+4*pl}:{GR+4*pl+3}], v{fT16}, {WS}, s{sT+13+pl} offen sc1" for pl in range(3)]
    chk = [f"v_xor_b32 v21, s{sTAG}, v{GR+3}", f"v_xor_b32 v22, s{sTAG}, v{GR+7}", f"v_xor_b32 v23, s{sTAG}, v{GR+11}",
           f"v_or3_b32 v21, v21, v22, v23", f"v_cmp_ne_u32 vcc, 0, v21"]
    work = (A2 + B if G.opt.get("blast", 0) else B + A2) + [f"s_mov_b32 s{sT+9}, 0x05040100", f"s_mov_b32 s{sT+10}, 0x07060302"]
    npre = G.opt.get("kpre", 200)
    pre, mid = work[:npre], work[npre:]
    while mid and mid[0].startswith(("s_cselect", "s_addc")): pre.append(mid.pop(0))
    if HN:
        ho = [32768*i for i in range(8)]
        p(f"s_lshl_b32 s14, s{sW}, 18\ns_lshl_b32 s13, s{sX}, 12\ns_add_u32 s14, s14, s13\ns_lshr_b32 s13, s{sJ}, 3\ns_lshl_b32 s13, s13, 10\ns_add_u32 s14, s14, s13")
        k0 = G.opt.get("hk", 60)
        pre = pre[:len(pre) - k0] + G.hint_ld(14, ho) + pre[len(pre) - k0:]
    u0 = take(G.opt.get("n1a", 4))
    for l in sprinkle(pre, u0, max(1, len(pre) // max(1, G.opt.get("n1a", 4)))) + u0: p(l)
    u = take(G.opt.get("n1", 2))
    G.stamp("pre")
    if HN:
        for l in G.hint_wait(14, ho, "hint"): p(l)
    G.stamp("att")
    if G.opt.get("esmid", 1):
        mid = mid + G.es; G.es = []
    mid = sprinkle(mid, u, max(1, len(mid) // max(1, G.opt.get("n1", 2)))) + u
    if tw == 4: mid = TW + mid
    if ql == 3:
        assert not any(f"v{QT8}" in l for l in pre)
        mid = QL + mid
    G.w_left = WQ
    G.poll(ld, [], chk, "kvg", mid)
    G.stamp("kvret")
    if tw == 6:
        for l in TW: p(l)
    if G.opt.get("esearly"):
        for l in G.flag: p(l)
        G.flag = []
    dpos = lambda s: GR + 4 * (s // 3) + s % 3
    UO = 124
    for ch in range(2):
        for jj in range(4):
            p(f"v_perm_b32 v{UO+4*ch+jj}, v{dpos(6-2*jj)}, v{dpos(7-2*jj)}, s{sT+9+ch}")
        p(f"ds_write_b128 v{fT16}, v[{UO+4*ch}:{UO+4*ch+3}] offset:{L_U + ch*U_CH + 512}")
    p("s_waitcnt lgkmcnt(0)\ns_barrier")
    G.esv = G.opt.get("esv", 2)
    G.stamp("kvg")

def conv_order(it):
    if it == 3 or ASC[0]: return [(q, r) for q in range(8) for r in range(q + 1)]
    left = {q: list(range(q + 1)) for q in range(8)}
    out = []
    while any(left.values()):
        recent = [q for (q, _) in out[-2:]]
        n = 36 - len(out)
        cand = [q for q in left if left[q] and q not in recent] or [q for q in left if left[q] and q != out[-1][0]] or [q for q in left if left[q]]
        urgent = [q for q in cand if 3*len(left[q]) - 2 >= n]
        if urgent: q = max(urgent, key=lambda q: len(left[q]))
        elif it == 0: q = min(cand, key=lambda q: (min(max(r, q - r) for r in left[q]), -len(left[q])))
        elif it == 3: q = min(cand, key=lambda q: len(left[q])) if len(out) % 3 == 2 else max(cand, key=lambda q: len(left[q]))
        else: q = max(cand, key=lambda q: len(left[q]))
        r = min(left[q], key=lambda r: max(r, q - r))
        left[q].remove(r); out.append((q, r))
    return out

def conv(G):
    import gen_mlp as M
    p = G.p
    ACC = 48
    FA = (80, 144); FB = (112, 176)
    FLG = 208
    def loads(it):
        eo = 2 * it + 1
        L = []
        for r in range(8):
            L.append(f"ds_read_b128 v[{FB[it%2]+4*r}:{FB[it%2]+4*r+3}], v{fCB} offset:{512*r - 32*eo + 512}")
            L.append(f"ds_read_b64 v[{FA[it%2]+4*r}:{FA[it%2]+4*r+1}], v{fCA} offset:{512*r + 32*eo}")
            L.append(f"ds_read_b64 v[{FA[it%2]+4*r+2}:{FA[it%2]+4*r+3}], v{fCA} offset:{512*r + 32*eo + 8}")
        return L
    for l in loads(0)[:12]: p(l)
    G.fl_ld = [f"!buffer_load_dword v{FLG}, v{fFA}, {WS}, s{sT+10} offen sc1"]
    G.fl_chk = [f"v_cmp_ne_u32 vcc, s{sTAG}, v{FLG}"]
    pois = [f"s_mul_i32 s{sT+8}, s{sR0}, {HF_PITCH}", f"s_mul_i32 s{sT+12}, s{sC}, 3072",
            f"s_add_u32 s{sT+8}, s{sT+8}, s{sT+12}", f"s_add_u32 s{sT+8}, s{sT+8}, 0x{WS_HF[0]:x}",
            f"s_cmp_eq_u32 s{sC}, 15\ns_cselect_b32 s{sT+8}, 0x{WS_SIZE:x}, s{sT+8}\ns_nop 0"]
    for h in range(2):
        pois += [f"buffer_store_dwordx4 v[{POI}:{POI+3}], v{fHP}, {WS}, s{sT+8} offen offset:{1024*i} {SC('cp0')} @hp" for i in range(3)]
        pois += [f"s_add_u32 s{sT+8}, s{sT+8}, {4*HF_PITCH}"]
    W = Weaver(vm_space=G.opt.get("vsc", 5)); W.excl = G.opt.get("exc", 0)
    sw = [(0, t) for t in G.w_left]
    sq = []; st = []
    for it in range(4):
        order = conv_order(it); seen = set(); mf = []
        for (q, r) in order:
            mf.append(mfma(ACC + 4*q, vr(FA[it%2] + 4*r, 4), vr(FB[it%2] + 4*(q - r), 4), "0" if (it == 0 and q not in seen) else None))
            seen.add(q)
        s0 = []
        if it == 0: s0 += [(i // 2, t) for i, t in enumerate(loads(0)[12:])]
        if it < 3: s0 += [(8 + i, t) for i, t in enumerate(loads(it + 1))]
        if it == 0:
            n = 0
            for t in G.es:
                if t.startswith("buffer"): sq.append((2 + G.esv*n, "!" + t)); n += 1
                else: sq.append((0, t))
        if it == 0: sq += [(G.opt.get("bcg", 10), t) for t in G.bconv]
        flg = G.opt.get("flg", 90 if G.bconv else 20)
        if it == flg // 36: sq += [(flg % 36, t) for t in G.flag]
        if it == 3 and G.opt.get("wpf", 0) == 1: sq += [(10, t) for t in wd_l2(G)]
        if it == 3 and G.opt.get("wsl", 2) == 1: sq += [(10, t) for t in wd_slow(G)]
        hpa = G.opt.get("hpa", 80)
        if it == hpa // 36 and not M.HFL(G): sq += [(hpa % 36, t) for t in pois]
        if it == 3: sq += [(8, f"s_mov_b32 s{sT+10}, 0x{WS_FLAGS:x}")] + ([(G.opt.get("fll", 40), t) for t in G.fl_ld] if G.opt.get("fll", 40) < 36 else [])
        early = G.opt.get("t0e", 1)
        if it == 2 and early:
            x2 = G.opt.get("x2", 2)
            out = W.run(mf[:x2], [s0, st, sq, sw])
            while any("@w0" in t for (_, t) in sw): out.append(sw.pop(0)[1]); print("forced w0")
            out += ["@wv w0", "s_barrier"]
            st += [(i, t) for i, t in enumerate(w_tr(0))]
            out += W.run(mf[x2:], [s0, st, sq, sw], flush=[0, 1])
        elif it == 3:
            out = W.run(mf[:1], [s0, st, sq, sw])
            while any("@w0" in t for (_, t) in sw): out.append(sw.pop(0)[1]); print("forced w0")
            out += ["@wv w0", "s_waitcnt lgkmcnt(0)", "s_barrier"]
            sT1 = [] if early else [(i, t) for i, t in enumerate(w_tr(0))]
            if early: sw += [(0, t) for t in w_round(2)]
            for g, q in sorted((max(i for i, (qq, _) in enumerate(order) if qq == q), q) for q in range(8)):
                st.append((g + 7, f"ds_write_b128 v{fRSW}, v[{ACC+4*q}:{ACC+4*q+3}] offset:{L_RS + 1024*q}"))
            out += W.run(mf[1:], [st, sT1, sq, sw], flush=[1, 0, 2])
        else:
            out = W.run(mf, [s0, st, sq, sw], flush=[0])
        if G.opt.get("cnot"): out = [l for l in out if "_tr_b16" not in l]
        if G.opt.get("cnob"): out = [l for l in out if l != "s_barrier"]
        if G.opt.get("cnow"): out = [l for l in out if not l.startswith("ds_write")]
        if G.opt.get("cnoa"): out = [l for l in out if not l.startswith("ds_read_b64 ")]
        if G.opt.get("cnod"): out = [l for l in out if not l.startswith("ds_read_b128")]
        for l in out: p(l)
        G.stamp(f"it{it}")
    while any("@w1" in t for (_, t) in sw): p(sw.pop(0)[1]); print("forced w1")
    rest = [t for (_, t) in sw] if G.opt.get("t0e", 1) else w_round(2)
    print("conv: W units left", sum("\n" in t for t in rest))
    G.stamp("convloop")
    p("@wv w1\ns_waitcnt lgkmcnt(0)\ns_barrier")
    T = 80; KV = 112; Y = 136; YO = 160; TM = 168
    E = []
    for qq in range(2):
        for sw_ in range(4):
            E.append(f"ds_read_b128 v[{T+16*qq+4*sw_}:{T+16*qq+4*sw_+3}], v{fRSR} offset:{L_RS + 8192*sw_ + 1024*qq}")
        for ch in range(2):
            E.append(f"ds_read_b64 v[{KV+4*qq+2*ch}:{KV+4*qq+2*ch+1}], v{fKVR} offset:{L_U + ch*U_CH + 512 + 512*qq}")
    for qq in range(2):
        for ch in range(2):
            a0 = T + 16*qq + 8*ch; y = Y + 8*qq + 4*ch; kv = KV + 4*qq + 2*ch; o = YO + 4*qq + 2*ch
            E += [f"v_pk_add_f32 v[{y+r}:{y+r+1}], v[{a0+r}:{a0+r+1}], v[{a0+4+r}:{a0+5+r}]" for r in (0, 2)]
            E += [f"v_and_b32 v{TM}, 0xffff0000, v{kv+1}", f"v_lshlrev_b32 v{TM+1}, 16, v{kv+1}", f"v_and_b32 v{TM+2}, 0xffff0000, v{kv}", f"v_lshlrev_b32 v{TM+3}, 16, v{kv}"]
            E += [f"v_pk_fma_f32 v[{y+r}:{y+r+1}], v[{TM+r}:{TM+r+1}], s[{sD0}:{sD1}], v[{y+r}:{y+r+1}] op_sel:[0,{ch},0] op_sel_hi:[1,{ch},1]" for r in (0, 2)]
            E += [f"v_cvt_pk_bf16_f32 v{o}, v{y}, v{y+1}", f"v_cvt_pk_bf16_f32 v{o+1}, v{y+2}, v{y+3}"]
        o = YO + 4*qq
        E += [f"s_mov_b32 s{sT+2}, 0x{WS_YB + qq*8*YP:x}", f"v_permlane16_swap_b32 v{o}, v{o+2}", f"v_permlane16_swap_b32 v{o+1}, v{o+3}",
              f"buffer_store_dwordx4 v[{o}:{o+3}], v{fCO}, {WS}, s{sT+2} offen sc1"]
    for l in E: p(l)
    if G.opt.get("hint", 0): p(f"v_mov_b32 v{M.vTG}, s{sTAG}\n" + G.hint_st(1, M.vTG))
    G.stamp("yst")
    if G.stamps and "yack" in G.skip:
        p("s_waitcnt vmcnt(0)"); G.stamp("yack")
    G.w_rest = rest
    G.pois = pois

def wd_l2(G):
    return [f"s_mul_i32 s{sT+1}, s{sJ}, 44032", "v_lshlrev_b32 v242, 7, v0", f"buffer_load_dword a254, v242, {srd(SRD_WD)}, s{sT+1} offen",
            "v_min_u32 v242, 87, v0", "v_lshlrev_b32 v242, 7, v242", f"s_add_u32 s{sT+1}, s{sT+1}, 32768", f"buffer_load_dword a255, v242, {srd(SRD_WD)}, s{sT+1} offen"]

def wd_slow(G):
    return [f"s_lshr_b32 s{sT+1}, s{SRD_WD}, 7", f"s_sub_u32 s{sT+1}, 3, s{sT+1}", f"s_and_b32 s{sT+1}, s{sT+1}, 7", f"s_lshl_b32 s{sT+1}, s{sT+1}, 7",
            f"s_mul_i32 s13, s{sJ}, 44032", f"s_add_u32 s{sT+1}, s{sT+1}, s13", "v_min_u32 v242, 10, v1", "v_mad_u32_u24 v242, v2, 11, v242",
            "v_min_u32 v242, 42, v242", "v_lshlrev_b32 v242, 10, v242", f"buffer_load_dword a254, v242, {srd(SRD_WD)}, s{sT+1} offen"]

def handover(G):
    import gen_mlp as M
    p = G.p
    rest = G.w_rest
    X, TT, PT, YU, VY = (72, 80), (88, 96), 104, 144, 160
    if G.opt.get("fll", 40) >= 36:
        for l in G.fl_ld: p(l)
    if G.blate:
        for l in M.st_base(sT + 11, WS_STQ) + G.blate + [f"buffer_store_dword v{M.SS}, v{M.vSTW}, {WS}, s{sT+11} offen {SC('g')}"]: p(l)
    for l in w_tr(1): p(l)
    ydma = [f"s_add_u32 m0, s{sT+9}, {M.L_Y}\nbuffer_load_dwordx4 v{M.vL16}, {WS}, s{sT+4} offen offset:{1024*P} sc1 lds @yr" for P in range(2)]
    H = f"""s_lshr_b32 s{sT+4}, s{sR0}, 1
s_add_u32 s{sT+4}, s{sT+4}, s{sHB}
s_and_b32 s{sT+5}, s{sW}, 2
s_add_u32 s{sT+4}, s{sT+4}, s{sT+5}
s_mul_i32 s{sT+4}, s{sT+4}, {YP}
s_and_b32 s{sT+5}, s{sW}, 1
s_lshl_b32 s{sT+5}, s{sT+5}, 11
s_add_u32 s{sT+4}, s{sT+4}, s{sT+5}
s_lshl_b32 s{sT+5}, s{sCT}, 12
s_add_u32 s{sT+4}, s{sT+4}, s{sT+5}
s_add_u32 s{sT+4}, s{sT+4}, 0x{WS_YB:x}
s_lshl_b32 s{sT+9}, s{sW}, 11""".split("\n") + M.layer_scalars(0) + ([] if G.blate else M.unpack(X[0], QT8, 8))
    H += f"""v_mov_b32 v{M.vTG}, s{sTAG}
s_cmp_eq_u32 s{sW}, 0
s_cselect_b32 s{M.sLM}, -1, 0
s_mov_b32 s{M.sLM+1}, 0
v_bfe_u32 v21, v0, 2, 4
v_lshlrev_b32 v21, 6, v21
v_and_b32 v22, 3, v0
v_lshl_add_u32 v21, v22, 3, v21
v_lshl_add_u32 v21, v2, 11, v21
v_lshl_add_u32 v22, v2, 11, v{M.vL16}""".split("\n")
    H = G.late + M.s1_addr() + [f"v_mov_b32 v{ONE+i}, 0x3f803f80" for i in range(4)] + M.xtile_base(sT + 2, WS_X1B) + M.st_base(sT + 11, WS_STQ) + H
    def take(n):
        o = []
        while rest and (n > 0 or "\n" not in rest[0]):
            if "\n" in rest[0]: n -= 1
            o.append(rest.pop(0))
        return o
    u = take(G.opt.get("ny", 4))
    for l in sprinkle(H, u, G.opt.get("he", 14), 2) + u: p(l)
    HN = G.opt.get("hint", 0)
    if HN:
        ho = [32768*i + 128 for i in range(16)]
        p(f"s_and_b32 s14, s{sW}, 1\ns_lshl_b32 s14, s14, 19\ns_lshl_b32 s13, s{sCT}, 12\ns_add_u32 s14, s14, s13\ns_lshr_b32 s13, s{sX}, 1\ns_lshl_b32 s13, s13, 10\ns_add_u32 s14, s14, s13")
        p("s_waitcnt lgkmcnt(0)")
        for l in G.hint_ld(14, ho): p(l)
    W = Weaver(vm_space=G.opt.get("vsy", 5))
    for l in W.run(w_cs(0), [[(0, t) for t in take(G.opt.get("ny2", 2))]], flush=[0]): p(l)
    lf, lb = G.add_fix(G.fl_ld, G.fl_chk, "st")
    for l in G.fl_chk: p(l)
    p(f"s_cbranch_vccnz {lf}\n{lb}:")
    G.stamp("flok")
    p("s_waitcnt lgkmcnt(0)\ns_barrier")
    if HN:
        for l in G.hint_wait(14, ho, "hint"): p(l)
    rest += w_round(3)
    for l in take(G.opt.get("nb", 3)): p(l)
    G.stamp("ydma")
    mid = M.st_ld(PT, M.vSTR, sT + 11) + W.run(w_cs(1), [[(0, t) for t in take(G.opt.get("nr", 4))]], flush=[0])
    wpf = G.opt.get("wpf", 0)
    if wpf == 2: mid += wd_l2(G)
    if G.opt.get("wsl", 2) == 2: mid += wd_slow(G)
    if G.blate: mid += G.poll_end_lines(None, M.st_ld(PT, M.vSTR, sT + 11), [], M.st_ck(PT, 23), "st")
    mid += M.ln_coef(PT) + M.ln_norm(X[0], TT[0], 0) + M.ln_norm(X[1], TT[1], 1)
    ytr = [f"ds_read_b64_tr_b16 v[{M.vY+4*P+2*t}:{M.vY+4*P+2*t+1}], v21 offset:{M.L_Y + 32*P + 1024*t}" for P in range(2) for t in range(2)]
    yrd = [f"ds_read_b128 v[{VY+4*P}:{VY+4*P+3}], v22 offset:{M.L_Y + 1024*P}" for P in range(2)]
    yck = [f"v_max_u32 v23, v{VY+3}, v{VY+7}", "v_cmp_eq_u32 vcc, -1, v23"]
    ytag = G.poll(ydma, yrd + ytr, yck, "y", mid)
    G.stamp("yret")
    for P in range(2):
        for l in M.unpack(YU + 8*P, M.vY + 4*P, 4) + M.gate_out(X[P], TT[P], YU + 8*P, P, sT + 2 + P): p(l)
    if HN: p(G.hint_st(2, M.vTG))
    G.stamp("x1st")
    if G.stamps and "xack" in G.skip:
        p("s_waitcnt vmcnt(0)"); G.stamp("xack")
    pub = M.pair_addr() + M.st_base(sT + 2, WS_STA[0])
    for P in range(2): pub += M.psum1(X[P], 128 + 2*P, 132) + M.fold1(128 + 2*P) + M.st1_st(128 + 2*P, sT + 2, P)
    for l in sprinkle(pub, rest, G.opt.get("pe", 4)) + rest: p(l)
    t2, t3 = w_tr(2), w_tr(3)
    if wpf == 4:
        for l in wd_l2(G): p(l)
    p("@wv w2" + ("," + ytag if G.nf[0] > 2 else "") + "\ns_waitcnt lgkmcnt(0)\ns_barrier")
    a_ = t2[:12] + weave(w_cs(2), [[(i // 2, t) for i, t in enumerate(t2[12:])]])
    b_ = ["@wv w3", "@wl t2", "s_barrier"] + t3[:12] + weave(w_cs(3), [[(i // 2, t) for i, t in enumerate(t3[12:])]])
    xat = G.opt.get("xat", 2)
    if HN:
        for l in M.x_hint_addr() + a_ + ["s_waitcnt lgkmcnt(0)"] + G.hint_ld(14, M.x_hint_offs(2)): p(l)
        if xat == 2:
            for l in b_: p(l)
            b_ = []
        G.stamp("xpre")
        for l in G.hint_wait(14, M.x_hint_offs(2), "hint"): p(l)
        G.stamp("xdma")
        return b_
    if xat == 0: return a_ + b_
    for l in a_: p(l)
    if xat == 2:
        for l in b_: p(l)
        b_ = []
    G.stamp("xdma")
    for k in range(G.opt.get("wpre", 0)): b_ = b_ + M.wd_dma(k, 4 + k)
    return b_ + (wd_l2(G) if wpf == 3 else []) + (wd_slow(G) if G.opt.get("wsl", 2) == 3 else [])
```

```python
import sys
sys.path.insert(0, "tools")
from pg import weave, Weaver
import pg
from gen import *

WS = srd(SRD_WS)
vMS, vL16, vVF, vSTG, vSG, vFO = 3, 4, 5, 6, 7, 8
vWT = 9
vWG = 24
vH2, vH1, vHA, vHB = 28, 29, 30, 31
vCS = 32
vSTW, vSTR, vOA, vMR = 44, 45, 46, 47
vXR = 48
vY = 56
vR2 = 64
vTG = 71
vFL, vFA = 221, 222
sLM = 16
sFL = 22
RING = 72
def ACC(g): return 72 + 12 * g if g < 6 else 160 + 12 * (g - 6)
vVER = 144
XF = 184
vTM = 208
vM = 212
vPOI = 176
vVA = 220
vH4, vHM = 44, 45
vMT = 223
AP = (224, 160)
WF = 192
sXB, sHF, sSA, sWD, sM0X, sOB = 8, 9, 10, 11, 12, 63
sHL = 82
sXO, sWO, sHS, sHC = sT + 12, sT + 13, sT + 14, sT + 15
WID = {4: 4, 5: 5, 6: 6, 7: 7, 8: 8, 9: 0, 10: 1}
K10 = [0]
L_Y = 43008

def dma_unit(m0off, ins): return f"s_add_u32 m0, s{sM0X}, {m0off}\n{ins}"

def x_dma(g, L):
    o = [f"s_add_u32 s{sXO}, s{sXB}, {g*XP}"]
    for i in range(4): o.append(dma_unit((g % 4)*16384, f"buffer_load_dwordx4 v{vVF}, {WS}, s{sXO} offen offset:{1024*i} sc1 lds @x{L}_{g}"))
    return o

def x_verify(G, g, L, also=()):
    rd = [f"ds_read_b128 v[{vVER+4*i}:{vVER+4*i+3}], v{vVF} offset:{(g % 4)*16384 + 1024*i}" for i in range(4)]
    ck = [f"v_max3_u32 v{vVA}, v{vVER+3}, v{vVER+7}, v{vVER+11}", f"v_max_u32 v{vVA}, v{vVA}, v{vVER+15}", f"v_cmp_eq_u32 vcc, -1, v{vVA}"]
    rl = []
    for gg in (g,) + tuple(also):
        rl += [l.split(" @")[0].replace(f"s{sXO},", "s13,").replace(f"s{sXO} ", "s13 ") for l in x_dma(gg, L)]
    lf, lb = G.add_fix(["s_mov_b32 s14, m0"] + rl + ["s_waitcnt vmcnt(0)", "s_mov_b32 m0, s14"] + rd, ck, "x0")
    return [f"@wv x{L}_{g}"] + rd, ck + [f"s_cbranch_vccnz {lf}", lb + ":"]

def wd_dma(k, slot, so=sWO):
    o = [f"s_add_u32 s{so}, s{sWD}, {k*32768}"]
    for b in range(4): o.append(dma_unit(slot*16384, f"buffer_load_dwordx4 v{vWG+b}, {srd(SRD_WD)}, s{so} offen offset:{1024*b} lds @wd{k}"))
    return o

def wd_dma10():
    o = [f"s_add_u32 s{sWO}, s{sWD}, {10*32768}", f"s_cmp_eq_u32 s{sW}, 3\ns_cselect_b32 s{sT+10}, {8*32768 - 10*32768 & 0xffffffff}, 0\ns_cselect_b32 s{sT+11}, 8, 9", f"s_lshl_b32 s{sT+11}, s{sT+11}, 14",
         f"s_add_u32 s{sWO}, s{sWO}, s{sT+10}", f"s_add_u32 s{sT+11}, s{sT+11}, s{sM0X}"]
    for b in range(4): o.append(f"s_mov_b32 m0, s{sT+11}\nbuffer_load_dwordx4 v{vWG+b}, {srd(SRD_WD)}, s{sWO} offen offset:{1024*b} lds @wd10")
    return o

def wd_tr(slot, dst, agpr, tag=""):
    o = []
    for cs in range(4):
        for t in range(2):
            a = slot*16384 + t*2048
            d = (ar if agpr else vr)(dst + 4*cs + 2*t, 2)
            o.append(f"ds_read_b64_tr_b16 {d}, v{vWT + 4*(a // 65536) + cs} offset:{a % 65536}" + (f" @{tag}" if tag else ""))
    return o

def x_rd(n, L):
    g, kk = n // 16, n % 16
    return [f"ds_read_b128 {vr(XF + 4*(n % 6), 4)}, v{vL16} offset:{(g % 4)*16384 + kk*1024}"]

def setup_early():
    out = []
    def p(t): out.extend(t.split("\n"))
    p(f"v_and_b32 v21, 15, v0\nv_lshlrev_b32 v{vSG}, 3, v21")
    p("v_and_b32 v21, 15, v0\nv_lshlrev_b32 v21, 4, v21")
    p(f"""v_lshrrev_b32 v22, 1, v2
v_lshl_add_u32 v21, v22, 12, v21
v_bfe_u32 v23, v0, 4, 2
v_lshl_add_u32 v{vSTR}, v23, 10, v21
v_lshl_add_u32 v21, v23, 2, v21
v_and_b32 v23, 1, v2
v_lshl_add_u32 v21, v23, 8, v21
s_lshl_b32 s{sT+2}, s{sCT}, 9
v_add_u32 v{vSTW}, s{sT+2}, v21""")
    p(f"""v_mul_u32_u24 v21, {2*XP}, v22
v_add_u32 v21, v21, v{vL16}
v_lshl_add_u32 v21, v23, 10, v21
s_lshl_b32 s{sT+2}, s{sCT}, 11
v_add_u32 v{vFO}, s{sT+2}, v21""")
    return out

def setup_late():
    out = []
    def p(t): out.extend(t.split("\n"))
    p(f"v_lshlrev_b32 v{vVF}, 4, v1\nv_lshl_add_u32 v{vVF}, v2, 12, v{vVF}")
    p(f"""v_bfe_u32 v21, v0, 5, 1
v_bfe_u32 v22, v0, 3, 2
v_lshl_add_u32 v21, v21, 3, v22
v_lshlrev_b32 v21, 10, v21
v_bfe_u32 v22, v0, 1, 2
v_bfe_u32 v23, v0, 4, 2
v_xor_b32 v22, v22, v23
v_lshl_add_u32 v21, v22, 5, v21
v_and_b32 v22, 1, v0
v_lshl_add_u32 v21, v22, 4, v21
s_lshl_b32 s{sT+2}, s{sCT}, 7
v_add_u32 v{vWG}, s{sT+2}, v21
v_add_u32 v{vWG+1}, 15360, v{vWG}
v_add_u32 v{vWG+2}, 2048, v{vWG}
v_add_u32 v{vWG+3}, 17408, v{vWG}
s_mul_i32 s{sWD}, s{sW}, {11*32768}""")
    p(f"""v_bfe_u32 v21, v0, 2, 3
v_lshlrev_b32 v22, 7, v21
v_bfe_u32 v23, v0, 5, 1
v_lshl_add_u32 v22, v23, 10, v22
v_and_b32 v23, 3, v0
v_lshl_add_u32 v22, v23, 3, v22
v_lshl_add_u32 v22, v2, 12, v22
v_lshrrev_b32 v21, 1, v21
v_and_b32 v23, 1, v2
v_lshlrev_b32 v23, 1, v23
v_xor_b32 v21, v21, v23""")
    for cs in range(4):
        p(f"v_xor_b32 v23, {cs}, v21\nv_lshl_add_u32 v{vWT+cs}, v23, 5, v22\nv_add_u32 v{vWT+4+cs}, 0x10000, v{vWT+cs}\nv_add_u32 v{vWT+8+cs}, 0x20000, v{vWT+cs}")
    p(f"""v_and_b32 v21, 15, v0
v_lshlrev_b32 v{vSG}, 3, v21
v_lshlrev_b32 v21, 4, v21
v_bfe_u32 v22, v0, 4, 1
v_bfe_u32 v23, v0, 5, 1
v_lshl_add_u32 v{vH2}, v22, 3, v21
v_lshl_add_u32 v{vH2}, v23, 8, v{vH2}
v_lshl_add_u32 v{vH2}, v2, 9, v{vH2}
v_lshl_add_u32 v{vH1}, v22, 3, v21
v_lshl_add_u32 v{vH1}, v23, 2, v{vH1}
v_lshl_add_u32 v{vH1}, v2, 8, v{vH1}
v_add_u32 v{vH1}, 2048, v{vH1}""")
    p("v_lshrrev_b32 v22, 1, v2\nv_and_b32 v23, 1, v2")
    p(f"""v_and_b32 v21, 15, v0
v_lshlrev_b32 v{vSTG}, 3, v21
v_bfe_u32 v{vMS}, v0, 4, 2
v_lshl_add_u32 v{vSTG}, v{vMS}, 9, v{vSTG}
v_lshl_add_u32 v{vSTG}, v2, 12, v{vSTG}
v_lshlrev_b32 v21, 6, v21
v_add_u32 v21, {L_MISC}, v21
v_lshl_add_u32 v{vMR}, v22, 3, v21
s_lshl_b32 s{sT+2}, s{sHB}, 2
v_add_u32 v{vMR}, s{sT+2}, v{vMR}
v_lshl_add_u32 v21, v22, 2, v21
v_lshl_add_u32 v21, v23, 3, v21
v_bfe_u32 v{vMS}, v0, 5, 1
v_lshl_add_u32 v{vMS}, v{vMS}, 5, v21""")
    p(f"""v_mul_u32_u24 v21, 11264, v2
v_add_u32 v21, v21, v{vL16}
v_mul_u32_u24 v{vHA}, {2*HF_PITCH}, v22
v_add_u32 v{vHA}, v21, v{vHA}
v_xor_b32 v{vHB}, 1, v22
v_mul_u32_u24 v{vHB}, {2*HF_PITCH}, v{vHB}
v_add_u32 v{vHB}, v21, v{vHB}""")
    return out

def early_lines():
    return f"""v_lshlrev_b32 v{vL16}, 4, v1
v_and_b32 v21, 15, v0
v_lshrrev_b32 v22, 1, v2
v_lshl_add_u32 v21, v22, 5, v21
v_lshlrev_b32 v21, 10, v21
v_bfe_u32 v22, v0, 4, 1
v_lshl_add_u32 v21, v22, 5, v21
v_bfe_u32 v22, v0, 5, 1
v_lshl_add_u32 v21, v22, 4, v21
v_and_b32 v22, 1, v2
v_lshl_add_u32 v{vOA}, v22, 6, v21
s_add_u32 s{sOB}, s{sR0}, s{sHB}
s_lshl_b32 s{sOB}, s{sOB}, 14
s_lshl_b32 s{sT+3}, s{sCT}, 7
s_add_u32 s{sOB}, s{sOB}, s{sT+3}""".split("\n")

def layer_scalars(L):
    xb = WS_X1B if L == 0 else WS_X3B
    return f"""s_mul_i32 s{sXB}, s{sR0}, {XP}
s_add_u32 s{sXB}, s{sXB}, 0x{xb:x}
s_mul_i32 s{sHF}, s{sR0}, {HF_PITCH}
s_add_u32 s{sHF}, s{sHF}, 0x{WS_HF[L]:x}
s_lshl_b32 s{sSA}, s{sR0}, 11
s_add_u32 s{sSA}, s{sSA}, 0x{WS_STA[L]:x}
s_lshl_b32 s{sM0X}, s{sW}, 12
s_lshl_b32 s{sFL}, s{sR0}, 10
s_add_u32 s{sFL}, s{sFL}, 0x{WS_HFL + 4096*L:x}
s_lshl_b32 s{sFL+1}, s{sC}, 7
s_add_u32 s{sFL+1}, s{sFL+1}, s{sFL}
s_mul_i32 s{sHC}, s{sC}, 3072
s_add_u32 s{sHC}, s{sHC}, s{sHF}
s_cmp_eq_u32 s{sC}, 15
s_cselect_b32 s{sHC}, 0x{WS_SIZE:x}, s{sHC}""".split("\n")

def st_base(r, region):
    return [f"s_lshl_b32 s{r}, s{sR0}, 11", f"s_lshl_b32 s13, s{sHB}, 13", f"s_add_u32 s{r}, s{r}, s13", f"s_add_u32 s{r}, s{r}, 0x{region:x}"]

def xtile_base(r, region):
    return [f"s_add_u32 s{r}, s{sR0}, s{sHB}", f"s_mul_i32 s{r}, s{r}, {XP}", f"s_add_u32 s{r}, s{r}, 0x{region:x}", f"s_add_u32 s{r+1}, s{r}, {4*XP}"]

def s1_addr(vS1W=70, vS1R=69):
    return [f"v_lshrrev_b32 v21, 1, v2", f"v_lshl_add_u32 v21, v21, 12, v{vSG}", "v_bfe_u32 v23, v0, 4, 2", f"v_lshl_add_u32 v{vS1R}, v23, 9, v21",
            "v_lshrrev_b32 v23, 1, v23", "v_lshl_add_u32 v21, v23, 2, v21", "v_and_b32 v23, 1, v2", "v_lshl_add_u32 v21, v23, 7, v21",
            f"s_lshl_b32 s13, s{sCT}, 8", f"v_add_u32 v{vS1W}, s13, v21"]

def s1_both(r, w=70): return [f"v_bfe_u32 v{r}, v0, 4, 1", f"v_lshl_add_u32 v{r}, v{r}, 11, v{w}"]

def poison_l2():
    o = [f"v_mov_b32 v{vPOI+i}, -1" for i in range(4)]
    o += xtile_base(sT + 2, WS_X3B) + [f"buffer_store_dwordx4 v[{vPOI}:{vPOI+3}], v{vFO}, {WS}, s{sT+2+P} offen {SC('c')} @poi" for P in range(2)]
    o += s1_both(21)
    o += st_base(sT + 2, WS_STX) + [f"buffer_store_dword v{vPOI}, v21, {WS}, s{sT+2} offen {SC('g')} @poi",
          f"s_add_u32 s{sT+2}, s{sT+2}, 0x{WS_STA[1]-WS_STX:x}", f"buffer_store_dword v{vPOI}, v21, {WS}, s{sT+2} offen {SC('c')} @poi"]
    return o

SS = 128
def psum(x, P):
    return [f"v_pk_add_f32 v[132:133], v[{x}:{x+1}], v[{x+2}:{x+3}]", f"v_pk_add_f32 v[134:135], v[{x+4}:{x+5}], v[{x+6}:{x+7}]",
            f"v_pk_mul_f32 v[136:137], v[{x}:{x+1}], v[{x}:{x+1}]", f"v_pk_mul_f32 v[138:139], v[{x+2}:{x+3}], v[{x+2}:{x+3}]",
            f"v_pk_add_f32 v[132:133], v[132:133], v[134:135]",
            f"v_pk_fma_f32 v[136:137], v[{x+4}:{x+5}], v[{x+4}:{x+5}], v[136:137]", f"v_pk_fma_f32 v[138:139], v[{x+6}:{x+7}], v[{x+6}:{x+7}], v[138:139]",
            f"v_add_f32 v{SS+2*P}, v132, v133", "v_pk_add_f32 v[136:137], v[136:137], v[138:139]", f"v_add_f32 v{SS+2*P+1}, v136, v137"]
def fold(r, pk=True):
    add = [f"v_pk_add_f32 v[{r}:{r+1}], v[{r}:{r+1}], v[{r+2}:{r+3}]"] if pk else [f"v_add_f32 v{r}, v{r}, v{r+2}", f"v_add_f32 v{r+1}, v{r+1}, v{r+3}"]
    return [f"v_permlane32_swap_b32 v{r}, v{r+2}", f"v_permlane32_swap_b32 v{r+1}, v{r+3}"] + add + \
           [f"v_permlane16_swap_b32 v{r}, v{r+1}", f"v_add_f32 v{r}, v{r}, v{r+1}"]
def st_ld(PT, va, so): return [f"buffer_load_dwordx4 v[{PT+4*i}:{PT+4*i+3}], v{va}, {WS}, s{so} offen offset:{256*i} sc1" for i in range(4)]
def st_ck(PT, acc):
    return [f"v_max3_u32 v{acc}, v{PT}, v{PT+1}, v{PT+2}"] + [f"v_max3_u32 v{acc}, v{acc}, v{PT+k}, v{PT+k+1}" for k in range(3, 15, 2)] + \
           [f"v_max_u32 v{acc}, v{acc}, v{PT+15}", f"v_cmp_eq_u32 vcc, -1, v{acc}"]
def ln_coef(PT):
    o = []
    for h in range(2):
        o += [f"v_pk_add_f32 v[{SS+2*h}:{SS+2*h+1}], v[{PT+2*h}:{PT+2*h+1}], v[{PT+4+2*h}:{PT+4+2*h+1}]",
              f"v_pk_add_f32 v[{132+2*h}:{133+2*h}], v[{PT+8+2*h}:{PT+8+2*h+1}], v[{PT+12+2*h}:{PT+12+2*h+1}]"]
    o += [f"v_pk_add_f32 v[{SS+2*h}:{SS+2*h+1}], v[{SS+2*h}:{SS+2*h+1}], v[{132+2*h}:{133+2*h}]" for h in range(2)]
    o += fold(SS)
    o += f"""v_mul_f32 v{SS}, 0x3b000000, v{SS}
v_mov_b32 v{SS+2}, v{SS}
v_permlane16_swap_b32 v{SS}, v{SS+2}
v_mov_b32 v{SS+1}, v{SS}
v_mov_b32 v{SS+3}, v{SS+2}
v_permlane32_swap_b32 v{SS}, v{SS+1}
v_permlane32_swap_b32 v{SS+2}, v{SS+3}
v_pk_fma_f32 v[{SS+2}:{SS+3}], v[{SS}:{SS+1}], v[{SS}:{SS+1}], v[{SS+2}:{SS+3}] neg_lo:[1,0,0] neg_hi:[1,0,0]
v_max_f32 v{SS+2}, 0, v{SS+2}
v_max_f32 v{SS+3}, 0, v{SS+3}
v_add_f32 v{SS+2}, 0x3727c5ac, v{SS+2}
v_add_f32 v{SS+3}, 0x3727c5ac, v{SS+3}
v_rsq_f32 v{SS+2}, v{SS+2}
v_rsq_f32 v{SS+3}, v{SS+3}
s_nop 0
v_pk_mul_f32 v[{SS}:{SS+1}], v[{SS}:{SS+1}], v[{SS+2}:{SS+3}]""".split("\n")
    return o
def ln_norm(x, t, P):
    return [f"v_pk_fma_f32 v[{t+i}:{t+i+1}], v[{x+i}:{x+i+1}], v[{SS+2}:{SS+3}], v[{SS}:{SS+1}] op_sel:[0,{P},{P}] op_sel_hi:[1,{P},{P}] neg_lo:[0,0,1] neg_hi:[0,0,1]" for i in range(0, 8, 2)]
def unpack(dst, src, n):
    return [l for k in range(n) for l in (f"v_lshlrev_b32 v{dst+2*k}, 16, v{src+k}", f"v_and_b32 v{dst+2*k+1}, 0xffff0000, v{src+k}")]
def gate_out(x, t, y, P, so):
    return [f"v_pk_fma_f32 v[{x+i}:{x+i+1}], v[{t+i}:{t+i+1}], v[{y+i}:{y+i+1}], v[{x+i}:{x+i+1}]" for i in range(0, 8, 2)] + \
           [f"v_cvt_pk_bf16_f32 v{vXR+4*P+i}, v{x+2*i}, v{x+2*i+1}" for i in range(4)] + \
           [f"buffer_store_dwordx4 v[{vXR+4*P}:{vXR+4*P+3}], v{vFO}, {WS}, s{so} offen {SC('c')}"]
def publish(X, so):
    return psum(X[0], 0) + psum(X[1], 1) + fold(SS) + [f"buffer_store_dword v{SS}, v{vSTW}, {WS}, s{so} offen sc1"]

vS1W, vS1R = 70, 69
def psum1(x, r, t):
    return [f"v_pk_add_f32 v[{r}:{r+1}], v[{x}:{x+1}], v[{x+2}:{x+3}]", f"v_pk_add_f32 v[{t}:{t+1}], v[{x+4}:{x+5}], v[{x+6}:{x+7}]",
            f"v_pk_mul_f32 v[{t+2}:{t+3}], v[{x}:{x+1}], v[{x}:{x+1}]", f"v_pk_add_f32 v[{r}:{r+1}], v[{r}:{r+1}], v[{t}:{t+1}]",
            f"v_pk_fma_f32 v[{t+2}:{t+3}], v[{x+2}:{x+3}], v[{x+2}:{x+3}], v[{t+2}:{t+3}]",
            f"v_pk_fma_f32 v[{t+2}:{t+3}], v[{x+4}:{x+5}], v[{x+4}:{x+5}], v[{t+2}:{t+3}]",
            f"v_add_f32 v{r}, v{r}, v{r+1}", f"v_pk_fma_f32 v[{t+2}:{t+3}], v[{x+6}:{x+7}], v[{x+6}:{x+7}], v[{t+2}:{t+3}]",
            f"v_add_f32 v{r+1}, v{t+2}, v{t+3}"]
def fold1(r):
    return [f"v_permlane32_swap_b32 v{r}, v{r+1}", f"v_add_f32 v{r}, v{r}, v{r+1}", f"v_mov_b32 v{r+1}, v{r}",
            f"v_permlane16_swap_b32 v{r}, v{r+1}", f"v_add_f32 v{r}, v{r}, v{r+1}"]
def st1_st(r, so, P, kind="c"): return [f"buffer_store_dword v{r}, v{vS1W}, {WS}, s{so} offen offset:{2048*P} {SC(kind)}"]
def st1_ld(PT, so, P): return [f"buffer_load_dwordx2 v[{PT+2*i}:{PT+2*i+1}], v{vS1R}, {WS}, s{so} offen offset:{2048*P + 128*i} sc1" for i in range(4)]
def st1_ck(PT, acc):
    return [f"v_max3_u32 v{acc}, v{PT}, v{PT+1}, v{PT+2}", f"v_max3_u32 v{acc}, v{acc}, v{PT+3}, v{PT+4}", f"v_max3_u32 v{acc}, v{acc}, v{PT+5}, v{PT+6}",
            f"v_max_u32 v{acc}, v{acc}, v{PT+7}", f"v_cmp_eq_u32 vcc, -1, v{acc}"]
def coef1(PT, r):
    return [f"v_pk_add_f32 v[{r}:{r+1}], v[{PT}:{PT+1}], v[{PT+2}:{PT+3}]", f"v_pk_add_f32 v[{r+2}:{r+3}], v[{PT+4}:{PT+5}], v[{PT+6}:{PT+7}]",
            f"v_pk_add_f32 v[{r}:{r+1}], v[{r}:{r+1}], v[{r+2}:{r+3}]"] + fold1(r) + \
           [f"v_mul_f32 v{r}, 0x3b000000, v{r}", f"v_mov_b32 v{r+1}, v{r}", f"v_permlane32_swap_b32 v{r}, v{r+1}",
            f"v_fma_f32 v{r+1}, -v{r}, v{r}, v{r+1}", f"v_max_f32 v{r+1}, 0, v{r+1}", f"v_add_f32 v{r+1}, 0x3727c5ac, v{r+1}",
            f"v_rsq_f32 v{r+1}, v{r+1}", f"v_mul_f32 v{r}, v{r}, v{r+1}"]
def norm1(x, t, r):
    return [f"v_pk_fma_f32 v[{t+i}:{t+i+1}], v[{x+i}:{x+i+1}], v[{r}:{r+1}], v[{r}:{r+1}] op_sel:[0,1,0] op_sel_hi:[1,1,0] neg_lo:[0,0,1] neg_hi:[0,0,1]" for i in range(0, 8, 2)]

def plain(lines):
    import re
    o = []
    for l in lines:
        m = re.match(r"v_pk_(add|mul|fma)_f32 (.*)", l)
        if not m: o.append(l); continue
        body = m.group(2); ops = [int(x) for x in re.findall(r"v\[(\d+):\d+\]", body)]
        n = len(ops) - 1
        g = lambda key, d: [int(x) for x in re.search(key + r":\[([\d,]+)\]", body).group(1).split(",")] if re.search(r"\b" + key + r":", body) else [d]*n
        lo, hi, nl, nh = g("op_sel", 0), g("op_sel_hi", 1), g("neg_lo", 0), g("neg_hi", 0)
        for h, (sel, ng) in enumerate(((lo, nl), (hi, nh))):
            src = ", ".join(("-" if ng[i] else "") + f"v{ops[1+i] + sel[i]}" for i in range(n))
            o.append(f"v_{m.group(1)}_f32 v{ops[0] + h}, {src}")
    return o

PTG = 160
def mean_ld(P): return [f"buffer_load_dwordx2 v[{PTG+8*P+2*i}:{PTG+8*P+2*i+1}], v{vSTG}, {WS}, s{sSA} offen offset:{2048*P + 128*i} sc1" for i in range(4)]
def mean_stream(G, P):
    r = PTG + 8*P; t = vMT
    ck = st1_ck(r, t)
    lf, lb = G.add_fix(mean_ld(P), ck, "m")
    a = ck + ["+1", f"s_cbranch_vccnz {lf}", lb + ":"]
    a += plain([f"v_pk_add_f32 v[{r}:{r+1}], v[{r}:{r+1}], v[{r+2}:{r+3}]", f"v_pk_add_f32 v[{r+4}:{r+5}], v[{r+4}:{r+5}], v[{r+6}:{r+7}]",
                f"v_pk_add_f32 v[{r}:{r+1}], v[{r}:{r+1}], v[{r+4}:{r+5}]"])
    a += spaced(fold1(r)) + [f"v_mul_f32 v{r}, 0x3b000000, v{r}", f"ds_write_b32 v{vMS}, v{r} offset:{16*P} @msw{P}", "+6", f"@wl msw{P}"]
    q = vR2 + 2*P
    b = [f"v_lshlrev_b32 v{t}, 3, v{vSG}", f"v_add_u32 v{t}, {L_MISC}, v{t}", f"ds_read_b128 v[{vM+4*P}:{vM+4*P+3}], v{t} offset:{16*P}",
         f"ds_read2_b32 v[{q}:{q+1}], v{vMR} offset0:{4*P} offset1:{8+4*P}", "+8",
         f"v_fma_f32 v{q+1}, -v{q}, v{q}, v{q+1}", f"v_max_f32 v{q+1}, 0, v{q+1}", f"v_add_f32 v{q+1}, 0x3727c5ac, v{q+1}", f"v_rcp_f32 v{q+1}, v{q+1}"]
    return a, b
def spaced(lines):
    o = []
    for l in lines:
        if l.startswith("v_permlane"): o.append("+1")
        o.append(l)
    return o

def epi(G, g, L):
    a = ACC(g); r = vM + g
    o = []
    for t in (2, 0, 1):
        for i in range(4): o.append(f"v_fma_f32 v{a+4*t+i}, -v{r}, v{vCS+4*t+i}, v{a+4*t+i}")
    m = a + 8
    o += [f"v_permlane32_swap_b32 v{m}, v{m+2}", f"v_permlane32_swap_b32 v{m+1}, v{m+3}"]
    for i in range(4): o.append(f"v_max_f32 v{a+i}, 0, v{a+i}")
    for i in range(4): o.append(f"v_mul_f32 v{a+i}, v{a+i}, v{a+4+i}")
    if g < G.opt.get("hb2", 6):
        e = ACC(g & ~1) + 4; k = g & 1
        o += [f"v_cvt_pk_bf16_f32 v{e+2*k}, v{a}, v{a+1}", f"v_cvt_pk_bf16_f32 v{e+2*k+1}, v{a+2}, v{a+3}"]
        if k: o += ["+1", f"v_permlane16_swap_b32 v{e}, v{e+2}", f"v_permlane16_swap_b32 v{e+1}, v{e+3}", f"s_add_u32 s{sHS}, s{sHC}, {(g-1)*HF_PITCH}",
                    f"!buffer_store_dwordx4 v[{e}:{e+3}], v{vH4}, {WS}, s{sHS} offen {SC('ch%d' % L)} @hs{g}"]
        e2 = ACC(g & ~1)
        o += [f"v_max_f32 v{m}, 0, v{m}", f"v_max_f32 v{m+1}, 0, v{m+1}", f"v_mul_f32 v{m}, v{m}, v{m+2}", f"v_mul_f32 v{m+1}, v{m+1}, v{m+3}",
              f"v_cvt_pk_bf16_f32 v{e2+k}, v{m}, v{m+1}"]
        if k: o += ["+1", f"v_permlane32_swap_b32 v{e2}, v{e2+1}", f"!buffer_store_dwordx2 v[{e2}:{e2+1}], v{vHM}, {WS}, s{sHS} offen {SC('ch%d' % L)} @hs{g}"]
        return o
    o += [f"v_cvt_pk_bf16_f32 v{vTM}, v{a}, v{a+1}", f"v_cvt_pk_bf16_f32 v{vTM+1}, v{a+2}, v{a+3}",
          f"s_add_u32 s{sHS}, s{sHC}, {g*HF_PITCH}",
          f"!buffer_store_dwordx2 v[{vTM}:{vTM+1}], v{vH2}, {WS}, s{sHS} offen {SC('ch%d' % L)} @hs{g}"]
    o += [f"v_max_f32 v{m}, 0, v{m}", f"v_max_f32 v{m+1}, 0, v{m+1}", f"v_mul_f32 v{m}, v{m}, v{m+2}", f"v_mul_f32 v{m+1}, v{m+1}, v{m+3}",
          f"v_cvt_pk_bf16_f32 v{vTM+2}, v{m}, v{m+1}", f"!buffer_store_dword v{vTM+2}, v{vH1}, {WS}, s{sHS} offen {SC('ch%d' % L)} @hs{g}"]
    return o

EPI_AT = {3: [0], 4: [1, 2], 5: [3], 6: [4, 5], 7: [6]}

class WdFeed:
    def __init__(self, L, tlag, pre=0):
        self.sw = []; self.st = []; self.nt = 0; self.nd = 0; self.on = (L == 0); self.tlag = tlag; self.done_at = {}
        if self.on:
            for k in range(pre, 2): self.sw += [(0, t) for t in wd_dma(k, 4 + k)]
            self.sw += [(0, t) for t in poison_l2()]
            for k in range(2, 4): self.sw += [(0, t) for t in wd_dma(k, 4 + k)]
            self.sw += [(0, t) for t in wd_dma(8, 8)]
            if K10[0]: self.sw += [(0, t) for t in wd_dma10()]
    def update(self, g):
        if not self.on: return
        for k in range(4):
            if k not in self.done_at and not any(f"@wd{k}" in t for (_, t) in self.sw): self.done_at[k] = g
        while self.nt < 4 and self.nt in self.done_at and g - self.done_at[self.nt] >= self.tlag:
            k = self.nt; self.nt += 1
            self.st += [(0, f"@wv wd{k}")] + [(0, t) for t in wd_tr(4 + k, 192 + 16*k, True, f"ta{k}")]
        while self.nd < self.nt and not any(f"@ta{self.nd}" in t for (_, t) in self.st):
            k = self.nd; self.nd += 1
            self.sw += [(0, f"@wl ta{k}")] + [(0, t) for t in wd_dma(4 + k, 4 + k)]
    def rest(self):
        o = []
        while True:
            o += [t for (_, t) in self.st + self.sw]; self.sw.clear(); self.st.clear()
            self.update(10**6)
            if not (self.st or self.sw): return o

def h_ld(P, k, rs):
    e = RING + 8*k + 4*rs
    return f"buffer_load_dwordx4 v[{e}:{e+3}], v{vHA if rs == 0 else vHB}, {WS}, s{sHL + 3*P + k//4} offen offset:{1024*(k%4)} sc1"

def h_scalars():
    o = [f"s_mul_i32 s{sHL+1}, s{sHB}, {HF_PITCH}", f"s_add_u32 s{sHL}, s{sHF}, s{sHL+1}", f"s_add_u32 s{sHL+1}, s{sHL}, 4096", f"s_add_u32 s{sHL+2}, s{sHL}, 8192"]
    return o + [f"s_add_u32 s{sHL+3+i}, s{sHL+i}, {4*HF_PITCH}" for i in range(3)]

def one_lane(ins): return f"s_mov_b64 exec, s[{sLM}:{sLM+1}]\n{ins}\ns_mov_b64 exec, -1"
def hflag_st(b): return one_lane(f"buffer_store_dword v{vTG}, v{vFA}, {WS}, s{sFL+1} offen offset:{2048*b} {SC('c')}")
def hflag_ld(b): return [f"v_lshlrev_b32 v{vFA}, 4, v{vSG}", f"!buffer_load_dword v{vFL}, v{vFA}, {WS}, s{sFL} offen offset:{2048*b} sc1"]
def hflag_chk(G, b):
    ck = [f"v_cmp_ne_u32 vcc, s{sTAG}, v{vFL}"]
    lf, lb = G.add_fix(hflag_ld(b), ck, "h0")
    return ck + [f"s_cbranch_vccnz {lf}", lb + ":"]

def HFL(G): return G.opt.get("hfl", 1)
def HFA(G, L): return HFL(G) if L == 0 else G.opt.get("hfa1", 0)

def gemm1_normal(G, L):
    p = G.p
    W = Weaver(vm_space=G.opt.get("vs1", 4), no_s=lambda g: g % 3 == 2)
    W.excl = G.opt.get(f"ex{L}", L)
    for n in range(4):
        for l in x_rd(n, L): p(l)
    feed = WdFeed(L, G.opt.get('tlag', 48), G.opt.get("wpre", 0)); allout = []; sw = feed.sw; stt = feed.st
    fa = G.opt.get("fa0", 5) if L == 0 else (5 if HFA(G, 1) else -1)
    pf = G.opt.get(f"pf{L}", 380 if L == 0 else 312); ml = G.opt.get("ml", 8); mc = G.opt.get("mc", 44)
    ml1 = G.opt.get("ml1", 120); mc1 = G.opt.get("mc1", 150)
    sf = [(G.opt.get("sfg", 12), t) for t in getattr(G, "slot0", [])]; G.slot0 = []; sm = []; smb = []
    sp = []
    if L == 0 and G.opt.get("hp2", 20) == 30:
        n = 0
        for t in poison_h2(180, vFL):
            if t.startswith("buffer"): sp.append((G.opt.get("hpa0", 56) + G.opt.get("hpd", 36)*n, "!" + t.replace("@hp2", "@poi"))); n += 1
            else: sp.append((0, t))
    sx = [(0, t) for t in x_dma(2, L) + getattr(G, "slot0p", []) + x_dma(3, L)]; s2 = []; spf = []; G.slot0p = []
    assert G.nf[L] == 2
    for g in range(8):
        mf = []
        for kk in range(16):
            n = 16*g + kk
            for t in range(3):
                mf.append(mfma(ACC(g) + 4*t, ar(64*t + 4*kk, 4), vr(XF + 4*(n % 6), 4), "0" if kk == 0 else None))
        s0 = []
        for kk in range(16):
            n = 16*g + kk + 4
            if n < 128: s0 += [(3*kk + i, t) for i, t in enumerate(x_rd(n, L))]
        s1 = []
        if g < 7 or g == fa:
            if g < 7 and g + 1 >= G.nf[L]:
                rd, ck = x_verify(G, g + 1, L)
                s1 += [(G.opt.get(f"vr{g}", G.opt.get("vr", 6)), t) for t in rd] + [(0, "+8")] + [(0, t) for t in ck[:-2]] + [(0, "+1")] + [(0, t) for t in ck[-2:]]
            if g == fa:
                assert not any("@poi" in t for (_, t) in sw + sp)
                s1 += [(20, f"v_lshlrev_b32 v{vFA}, 2, v1"), (G.opt.get("fag", 32), "@wv poi,hs0,hs1,hs2,hs3")]
            if g not in (1, 3): s1 += [(G.opt.get("bg", 24), "s_barrier")]
            if g == fa: s1 += [(0, hflag_st(0))]
        post = []
        if 1 <= g <= 4: post = x_dma(g + 3, L)
        if g == 5: post = wd_dma(9, 0, sXO)
        if g == 6 and not K10[0]: post = wd_dma(10, 1, sXO)
        if g == 0:
            ma, mb = mean_stream(G, 0)
            sm += [(ml, "!" + t) for t in mean_ld(0)] + [(mc, t) for t in ma]
        if g == 2:
            assert not sf
            txt0 = "\n".join(allout)
            assert "@hp2" not in txt0 or txt0.rindex("@hp2") < txt0.index("@wv hp2")
            ma, mb = mean_stream(G, 1)
            sm += [(ml1 - 96, "!" + t) for t in mean_ld(1)] + [(mc1 - 96, t) for t in ma]
        if g >= 2: s2 += [(G.opt.get("eg", 6), t) for t in epi(G, g - 1, L)]
        if g == pf // 48: spf += [(0, t) for t in h_scalars()] + [(pf % 48, h_ld(0, k, rs)) for k in range(9) for rs in range(2)]
        if g == 7: spf += [(0, h_ld(0, k, rs)) for k in range(9, 11) for rs in range(2)]
        if HFA(G, L):
            fla = G.opt.get(f"fla{L}", 340 if L == 0 else 292)
            assert fla < pf - 8
            if g == pf // 48:
                i0 = min(i for i, (_, t) in enumerate(spf) if t.startswith("buffer_load_dwordx4"))
                spf[i0:i0] = [(pf % 48, t) for t in hflag_chk(G, 0)]
            if g == fla // 48: sp += [(fla % 48, t) for t in hflag_ld(0)]
        if L == 1:
            if G.opt.get("noepi"): s2.clear()
            if G.opt.get("nost"): s2[:] = [x for x in s2 if "buffer_store" not in x[1]]
            if G.opt.get("nover"): s1 = [x for x in s1 if not (x[1].startswith("ds_read_b128 v[14") or x[1].startswith("ds_read_b128 v[15") or f"v{vVA}" in x[1] or (g != 1 and ("cbranch" in x[1] or x[1].endswith(":"))))]
            if G.opt.get("nodma"): post = []; sx.clear()
            if G.opt.get("nopf"): spf[:] = [x for x in spf if not x[1].startswith("buffer")] + ([(99, h_ld(0, 10, 1))] if g == 7 else [])
            if G.opt.get("nomean"): sm.clear(); mb = []; sf.clear()
            if G.opt.get("nobar"): s1 = [x for x in s1 if x[1] != "s_barrier"]
        mb_slot = g in (1, 3)
        cut = 35 if (mb_slot or g == fa) else G.opt.get("cut", 30)
        out = []
        for lo in range(0, cut, 6):
            feed.update(W.g)
            out += W.run(mf[lo:min(cut, lo + 6)], [s0, sp, sx, s1, sf, sm, spf, sw, s2, stt])
            if mb_slot and not s1 and not sm and "s_barrier" not in out and not any("@hp2" in t for (_, t) in sx): s1 += [(0, "@wv hp2"), (0, "s_barrier")]
        if mb_slot and "s_barrier" not in out and not any(t == "s_barrier" for (_, t) in s1):
            assert not any("@hp2" in t for (_, t) in sx)
            s1 += list(sm) + [(0, "@wv hp2"), (0, "s_barrier")]; sm.clear()
        if s1: print("slot", g, "barrier stream flushed:", len(s1)); out += [t for (_, t) in s1]; s1.clear()
        if g == fa:
            txt0 = "\n".join(allout + out)
            assert txt0.rindex("@hs3") < txt0.index("@wv poi,hs0") and not any("@hs3" in t for (_, t) in s2)
        sx += [(G.opt.get("x4d", 24) if (g == 1 and L == 1 and G.opt.get("inslot", 1)) else 0, t) for t in post]
        if g == 1: s2 += [(0, t) for t in mb + epi(G, 0, L)]
        if g == 3: smb += [(0, t) for t in mb]
        for lo in range(cut, 48, 6):
            feed.update(W.g)
            out += W.run(mf[lo:lo + 6], [s0, sp, sx, sf, sm, smb, spf, sw, s2, stt])
        if g == 4: assert not smb
        if g == 7: out += [t for (_, t) in s2]; s2.clear()
        out += [t for (_, t) in s0]; s0.clear()
        for l in out: p(l)
        allout += out
        G.stamp(f"s{L}{g}")
    tail = epi(G, 7, L) + [t for (_, t) in sx] + feed.rest()
    while not spf[0][1].startswith("buffer_load_dwordx4"): tail.append(spf.pop(0)[1])
    for l in tail: p(l)
    allout += tail
    ins = [pg.Ins(x.split(" @")[0].lstrip("!")) for l in allout for x in l.split("\n") if not (x.startswith(("@", "+")) or x.endswith(":"))]
    pfs = {h_ld(0, k, rs) for k in range(11) for rs in range(2)}
    txt = [a0.text for a0 in ins]
    i5 = min(i for i, t in enumerate(txt) if t.startswith(f"v_mfma_f32_16x16x32_bf16 v[{ACC(7)}:"))
    assert not any(t.startswith("buffer_store") and (f"v{vPOI}," in t or f"v[{vPOI}:" in t) for t in txt[i5:])
    for i, a0 in enumerate(ins):
        if a0.text in pfs:
            for b0 in ins[i+1:]: assert not (a0.wr & (b0.rd | b0.wr)), (a0.text, b0.text)
    gi = 0; pos = {}
    for l in allout:
        if l.startswith("v_mfma"): gi += 1
        if "@hs" in l: pos[l.split("@")[-1]] = "%.1f" % (gi/48)
        if "@wd" in l: pos[l.split("@")[-1]] = "%.1f" % (gi/48)
    print("leftover L%d positions" % L, pos)
    print("L%d leftover: tail %d, prefetch left %d" % (L, len(tail), len(spf)))
    return [t for (_, t) in spf]

def h_verify(G, P, k):
    e = RING + 8*k
    ck = [f"v_max3_u32 v23, v{e}, v{e+1}, v{e+2}", f"v_max3_u32 v23, v23, v{e+3}, v{e+4}",
          f"v_max3_u32 v23, v23, v{e+5}, v{e+6}", f"v_max_u32 v23, v23, v{e+7}", f"v_cmp_eq_u32 vcc, -1, v23"]
    lf, lb = G.add_fix([h_ld(P, k, 0), h_ld(P, k, 1)], ck, f'h{P}')
    return ck + [f"s_cbranch_vccnz {lf}", lb + ":"]

def red_imm(P, j):
    b = 32768
    return b + 1024*j if j < 4 else b + 16384 + 1024*(j - 4)

def red_writes(P):
    o = []
    for rel in (1, 2, 3):
        for tl in range(2):
            a = AP[P] + 16*(rel >> 1) + 4*(2*(rel & 1) + tl)
            o.append(f"ds_write_b128 v{vVF}, v[{a}:{a+3}] offset:{red_imm(P, 2*(rel - 1) + tl)}")
    return o

RA = 21
def red_reads(P, RD):
    return [f"ds_read_b128 v[{RD+4*j}:{RD+4*j+3}], v{(21, 22, 68)[j//2]} offset:{red_imm(P, j)}" for j in range(6)]

def red_adds(P, RD, pk, mid=()):
    o = []
    a = AP[P]
    if pk:
        for base in (0, 8, 16):
            for i in range(0, 8, 2): o.append(f"v_pk_add_f32 v[{a+i}:{a+i+1}], v[{a+i}:{a+i+1}], v[{RD+base+i}:{RD+base+i+1}]")
    else:
        for base in (0, 8, 16):
            for i in range(8): o.append(f"v_add_f32 v{a+i}, v{a+i}, v{RD+base+i}")
    o += list(mid)
    for i in range(4): o += [f"v_lshlrev_b32 v{RD+2*i}, 16, v{vXR+4*P+i}", f"v_and_b32 v{RD+2*i+1}, 0xffff0000, v{vXR+4*P+i}"]
    if pk:
        for i in range(0, 8, 2): o.append(f"v_pk_fma_f32 v[{RD+i}:{RD+i+1}], v[{a+i}:{a+i+1}], v[{vR2+2*P}:{vR2+2*P+1}], v[{RD+i}:{RD+i+1}] op_sel:[0,1,0] op_sel_hi:[1,1,1]")
    else:
        for i in range(8): o.append(f"v_fmac_f32 v{RD+i}, v{a+i}, v{vR2+2*P+1}")
    return o

def poison_h2(c, a):
    o = [f"v_mov_b32 v{c+i}, -1" for i in range(4)] + [f"v_mul_u32_u24 v{a}, {HF_PITCH}, v2", f"v_add_u32 v{a}, v{a}, v{vL16}"]
    for h in range(2):
        o.append(f"s_add_u32 s{sT+8}, s{sHC}, 0x{WS_HF[1]-WS_HF[0] + 4*h*HF_PITCH:x}")
        for i in range(3): o.append(f"buffer_store_dwordx4 v[{c}:{c+3}], v{a}, {WS}, s{sT+8} offen offset:{1024*i} {SC('cp1')} @hp2")
    return o

def fin_x(P, RD, X, U):
    a = AP[P]; o = []
    for base in (0, 8, 16):
        o += [f"v_pk_add_f32 v[{a+i}:{a+i+1}], v[{a+i}:{a+i+1}], v[{RD+base+i}:{RD+base+i+1}]" for i in range(0, 8, 2)]
        if base == 0: o += unpack(U, vXR + 4*P, 4)
    o += [f"v_pk_fma_f32 v[{X+i}:{X+i+1}], v[{a+i}:{a+i+1}], v[{vR2+2*P}:{vR2+2*P+1}], v[{U+i}:{U+i+1}] op_sel:[0,1,0] op_sel_hi:[1,1,1]" for i in range(0, 8, 2)]
    return o

OFL = ['']
def out_store(x, o, so):
    return [f"v_cvt_pk_bf16_f32 v{o+i}, v{x+2*i}, v{x+2*i+1}" for i in range(4)] + \
           [f"v_permlane16_swap_b32 v{o}, v{o+2}", f"v_permlane16_swap_b32 v{o+1}, v{o+3}", f"buffer_store_dwordx4 v[{o}:{o+3}], v{vOA}, {srd(SRD_O)}, s{so} offen {OFL[0]}"]

def gemm2(G, L, left):
    from gen_front import sprinkle
    OFL[0] = ["", "sc1", "sc0 sc1", "nt", "sc1 nt"][G.opt.get("ofl", 1)]
    p = G.p
    p("s_barrier")
    G.stamp(f"g1end{L}")
    W = Weaver(vm_space=G.opt.get("vs2", 4)); W.excl = G.opt.get("ex2", 0)
    sv = [(0, t) for t in left]
    for _ in range(min(len(sv), G.opt.get(f"burst{L}", 0))): p(sv.pop(0)[1])
    side = []
    for rel, r in ((1, 21), (2, 22), (3, 68)): side += [f"v_xor_b32 v{r}, {rel}, v2", f"v_lshl_add_u32 v{r}, v{r}, 12, v{vL16}"]
    if L == 0: side += st_base(sT + 2, WS_STX) + xtile_base(sT + 4, WS_X3B) + [f"s_add_u32 s{sT+3}, s{sT+2}, 0x{WS_STA[1]-WS_STX:x}"]
    else: side += [f"s_add_u32 s{sT+2}, s{sOB}, {4*16384}"]
    X0 = AP[0]; R0 = AP[0] + 8
    GP, YU0, C0 = 232, 240, 248
    p1s = G.opt.get(f"p1s{L}", 9 if L == 0 else 8); back = []
    def step_mf(P, k):
        mf = []
        for cs in range(4):
            for rs in range(2):
                w = ar(192 + 16*k + 4*cs, 4) if k < 4 else vr(WF + 16*(k % 2) + 4*cs, 4)
                mf.append(mfma(AP[P] + 16*rs + 4*cs, w, vr(RING + 8*k + 4*rs, 4), "0" if k == 0 else None))
        return mf
    def step_tr(k): return [(i, t) for i, t in enumerate(wd_tr(WID[k + 1], WF + 16*((k + 1) % 2), False))] if 3 <= k < 10 else []
    def nan_check(P, issued):
        ck = [f"v_cmp_u_f32 vcc, v{AP[P]}, v{AP[P]+16}"]
        redo = ["s_waitcnt vmcnt(0)"] + [h_ld(P, k, rs) for k in range(11) for rs in range(2)]
        Wr = Weaver()
        for k in range(11):
            if k == 10 and K10[0]:
                ls = p.new("SK"); redo += ["s_waitcnt vmcnt(0) lgkmcnt(0)", f"s_cmp_eq_u32 s{sW}, 3", f"s_cbranch_scc1 {ls}"] + step_mf(P, k) + [ls + ":", "s_nop 7"]
            else: redo += Wr.run(step_mf(P, k), [step_tr(k)], flush=[0])
        lf, lb = G.add_fix(redo, ck, f"h{P}", after=issued)
        return ck + [f"s_cbranch_vccnz {lf}", lb + ":"]
    for P in range(2):
        s3 = []; s4 = []; issued = []
        for k in range(11):
            s0 = ([(0, f"@wv wd{k+1}")] if (P == 0 and 3 <= k < 10) else []) + step_tr(k)
            s1 = []
            pev = (P == 0 and G.opt.get(f"hv{L}", 0))
            if pev:
                if k == 0:
                    while any(t in (h_ld(0, 0, 0), h_ld(0, 0, 1)) for (_, t) in sv): p(sv.pop(0)[1])
                    for l in h_verify(G, 0, 0): p(l)
                if k < pev - 1:
                    while any(t in (h_ld(0, k + 1, 0), h_ld(0, k + 1, 1)) for (_, t) in sv): p(sv.pop(0)[1])
                    hv = h_verify(G, 0, k + 1)
                    s1 = [(2, t) for t in hv[:-2]] + [(0, "+1")] + [(0, t) for t in hv[-2:]]
            if P == 0:
                if k >= 1: back += [(0, h_ld(1, k - 1, 0)), (0, h_ld(1, k - 1, 1))]
                if k >= p1s: sv += back; back = []
                if k == 0: s3 += [(0, t) for t in side]
                if L == 0 and G.opt.get("hp2", 20) == 40 and k == G.opt.get("hpk", 4):
                    for t in poison_h2(160, 164): s4.append((0, "!" + t if t.startswith("buffer") else t)); s4 += [(0, "+%d" % G.opt.get("hpg", 5))] if t.startswith("buffer") else []
                if L == 0 and not HFL(G):
                    if k == 0: s1 = [(0, t) for t in hflag_ld(0)] + s1
                    if k == 3: s1 = [(0, t) for t in hflag_chk(G, 0)] + s1
                if L == 0 and HFL(G):
                    if k == G.opt.get("fb", 1): s1 = [(0, "v_lshlrev_b32 v71, 2, v1"), (1, "@wv hs4,hs5,hs6,hs7"), (1, "s_barrier"), (2, f"v_mov_b32 v23, s{sTAG}"), (3, hflag_st(1).replace(f"v{vTG}, v{vFA}", "v23, v71")), (4, f"v_mov_b32 v{vTG}, s{sTAG}")]
                    if k == p1s - 3: s1 = [(0, t.replace(f"v{vFA}", "v23").replace(f"v{vFL}", "v23")) for t in hflag_ld(1)]
                    if p1s >= 12 and k == G.opt.get("flb", 9): s1 = [(0, t.replace(f"v{vFA}", "v23").replace(f"v{vFL}", "v23")) for t in hflag_ld(1)]
                    if k == p1s - 1:
                        ck = [f"v_cmp_ne_u32 vcc, s{sTAG}, v23"]
                        lf, lb = G.add_fix([t.replace(f"v{vFA}", "v23").replace(f"v{vFL}", "v23") for t in hflag_ld(1)], ck, "h1")
                        s1 = [(4, ck[0]), (6, f"s_cbranch_vccnz {lf}"), (6, lb + ":")]
                W.vm_space = G.opt.get("vsb", 2)
            else:
                W.vm_space = G.opt.get("vs2", 4)
                if L == 0 and k == G.opt.get("hp2", 20): s4 += [(0, t) for t in poison_h2(252, 251)]
                if k == 2: s3 += [(1, "s_barrier")]
                if L == 0 and k == G.opt.get("gs", 8): s3 += [(0, "!" + t) for t in st1_ld(GP, sT + 2, 0)]
            need = (h_ld(P, k, 0), h_ld(P, k, 1))
            while any(t in need for (_, t) in sv): l = sv.pop(0)[1]; p(l); issued.append(l)
            if k == 10 and K10[0]:
                ls = p.new("SK"); lb = p.new("BACK")
                G.fix.append([ls + ":", "s_waitcnt vmcnt(0) lgkmcnt(0)" if False else "s_waitcnt lgkmcnt(0)", "s_nop 7", f"s_branch {lb}"])
                out = [f"s_cmp_eq_u32 s{sW}, 3", f"s_cbranch_scc1 {ls}"] + step_mf(P, k) + [lb + ":"]
            else: out = W.run(step_mf(P, k), [sv, s0, s1, s3, s4], flush=[1, 2])
            for l in out: p(l)
            G.stamp(f"k{L}{P}_{k}")
            issued += out
        for (_, t) in s3 + s4: p(t)
        p1set = {h_ld(1, k, rs) for k in range(11) for rs in range(2)}
        if (L == 1 and not (P == 0 and HFA(G, 1))) or (L == 0 and not HFL(G)):
            for l in nan_check(P, [l for l in issued if l in p1set] if P == 0 else []): p(l)
        if P == 0:
            G.stamp(f"p0end{L}")
            sv += back + [(0, h_ld(1, 10, 0)), (0, h_ld(1, 10, 1))]
            gap = red_writes(0) + ["s_waitcnt lgkmcnt(0)", "s_barrier"] + red_reads(0, R0) + fin_x(0, R0, X0, WF)
            if L == 0: gap += psum1(X0, C0, C0 + 2) + fold1(C0) + st1_st(C0, sT + 2, 0, 'g') + unpack(YU0, vY, 4)
            else: gap += out_store(X0, R0, sOB)
            u = [t for (_, t) in sv[:G.opt.get("gapn", 10)]]; del sv[:len(u)]
            i0 = 0
            if L == 0 and HFL(G) and p1s >= 12:
                ck = [f"v_cmp_ne_u32 vcc, s{sTAG}, v23"]
                lf, lb = G.add_fix([t.replace(f"v{vFA}", "v23").replace(f"v{vFL}", "v23") for t in hflag_ld(1)], ck, "h1")
                i0 = G.opt.get("flg0", 8)
                gap[i0:i0] = ck + [f"s_cbranch_vccnz {lf}", lb + ":"]; i0 += 3
            for l in gap[:i0] + sprinkle(gap[i0:], u, G.opt.get("gape", 5)) + u: p(l)
            G.stamp(f"gap{L}")
    G.stamp(f"g2mm{L}")
    RD1, X1 = 96, 120
    for l in red_writes(1): p(l)
    if L == 0:
        for l in G.poll_end_lines(None, st1_ld(GP, sT + 2, 0), [], st1_ck(GP, 23), "st") + coef1(GP, C0) + norm1(X0, GP, C0) + gate_out(X0, GP, YU0, 0, sT + 4): p(l)
        G.stamp("x3a")
    p("s_waitcnt lgkmcnt(0)\ns_barrier")
    for l in red_reads(1, RD1): p(l)
    if L == 0 and G.opt.get("xe", 0):
        for l in layer_scalars(1)[:2]: p(l)
        G.xtag = G.poll_begin([l for g in range(2) for l in x_dma(g, 1)])
    if L == 0:
        for l in psum1(X0, C0, GP): p(l)
    for l in fin_x(1, RD1, X1, 128): p(l)
    if L == 1:
        for l in out_store(X1, 128, sT + 2): p(l)
        return
    for l in psum1(X1, 128, 130) + fold1(128) + st1_st(128, sT + 2, 1, 'g'): p(l)
    G.stamp("stpub")
    for l in fold1(C0) + unpack(128, vY + 4, 4) + st1_st(C0, sT + 3, 0): p(l)
    hp = poison_h2(252, 251) if G.opt.get("hp2", 20) == 20 else []
    k0 = 7
    for l in hp[:k0] + ([f"s_add_u32 s{sT+9}, s{sT+8}, {4*HF_PITCH}"] if hp else []) + layer_scalars(1): p(l)
    hp = [l.replace(f"s{sT+8} ", f"s{sT+9} ") if i >= 4 else l for i, l in enumerate(hp[k0:]) if l.startswith("buffer")]
    if HFA(G, 1): hp = hp[3:]
    G1_, C1 = 104, 112
    fin = lambda: G.poll_end_lines(None, st1_ld(G1_, sT + 2, 1), [], st1_ck(G1_, vMT), "st") + coef1(G1_, C1) + norm1(X1, 136, C1) + \
        gate_out(X1, 136, 128, 1, sT + 5) + psum1(X1, C1, 116) + fold1(C1) + ["@wv hp2"] + st1_st(C1, sT + 3, 1)
    if G.opt.get("inslot", 1):
        hs0 = G.opt.get("hps", 0)
        G.between = st1_ld(G1_, sT + 2, 1) + ([] if hs0 else hp)
        G.slot0p = hp if hs0 else []
        f = []
        for l in spaced(plain(fin())):
            if l.startswith("s_cbranch"): f.append("+1")
            f.append("!" + l if l.startswith("buffer") else l)
        G.slot0 = f
    else:
        G.between = st1_ld(G1_, sT + 2, 1) + hp + fin()

def pair_addr():
    return [f"v_lshlrev_b32 v21, 1, v{vSG}", "v_bfe_u32 v22, v0, 4, 1", "v_bfe_u32 v23, v0, 5, 1",
            f"v_mul_u32_u24 v{vH4}, {HF_PITCH}, v22", f"v_lshl_add_u32 v{vH4}, v23, 8, v{vH4}", f"v_lshl_add_u32 v{vH4}, v2, 9, v{vH4}", f"v_add_u32 v{vH4}, v{vH4}, v21",
            f"v_mul_u32_u24 v{vHM}, {HF_PITCH}, v23", f"v_lshl_add_u32 v{vHM}, v22, 3, v{vHM}", f"v_lshl_add_u32 v{vHM}, v2, 8, v{vHM}",
            f"v_add_u32 v{vHM}, v{vHM}, v21", f"v_add_u32 v{vHM}, 2048, v{vHM}"]

def x_hint_addr():
    return [f"s_and_b32 s14, s{sJ}, 24", f"s_lshl_b32 s13, s{sW}, 1", "s_add_u32 s14, s14, s13", "s_lshl_b32 s14, s14, 15",
            f"s_and_b32 s13, s{sX}, 6", "s_lshl_b32 s13, s13, 12", "s_add_u32 s14, s14, s13"]
def x_hint_offs(kind): return [32768*c + 4096*h + 1024*wv + 128*kind for c in range(2) for h in range(2) for wv in range(2)]

def x_start(G, L, between):
    n = G.nf[L]
    att = [l for g in range(n) for l in x_dma(g, L)]
    VR2 = 72
    rd = [f"ds_read_b128 v[{VR2+16*g+4*i}:{VR2+16*g+4*i+3}], v{vVF} offset:{g*16384 + 1024*i}" for g in range(n) for i in range(4)]
    rs = [VR2 + 4*k + 3 for k in range(4*n)]
    ck = [f"v_max3_u32 v{vVA}, v{rs[0]}, v{rs[1]}, v{rs[2]}"]
    k = 3
    while k + 1 < len(rs): ck.append(f"v_max3_u32 v{vVA}, v{vVA}, v{rs[k]}, v{rs[k+1]}"); k += 2
    if k < len(rs): ck.append(f"v_max_u32 v{vVA}, v{vVA}, v{rs[k]}")
    ck.append(f"v_cmp_eq_u32 vcc, -1, v{vVA}")
    if L == 1 and G.opt.get("xe", 0):
        for l in between + G.poll_end_lines(G.xtag, att, rd, ck, "x0"): G.p(l)
    else: G.poll(att, rd, ck, "x0", between)

def mlp(G):
    p = G.p
    G.nf = (G.opt.get("nf0", 2), G.opt.get("nf1", 2))
    K10[0] = G.opt.get("k10", 0)
    if K10[0]: WID[10] = 9
    for L in range(2):
        if L == 0:
            from gen_front import handover
            between = handover(G)
        else:
            between = G.between
        x_start(G, L, between)
        p("s_waitcnt lgkmcnt(0)\ns_barrier")
        G.stamp(f"g1go{L}")
        left = gemm1_normal(G, L)
        if G.stop == "g1" or (G.stop == "g1b" and L == 1): return
        gemm2(G, L, left)
        if G.stop == "g2": return
```

```python
import re

REG = re.compile(r'^(-|\|)?(abs\()?([vas])(\d+|\[(\d+):(\d+)\])\)?\|?$')

def regs_of(tok):
    tok = tok.strip()
    if tok in ("vcc", "exec"):
        return {tok + "_lo", tok + "_hi"}
    if tok in ("vcc_lo", "vcc_hi", "exec_lo", "exec_hi", "m0"):
        return {tok}
    m = REG.match(tok)
    if not m:
        return set()
    k = m.group(3)
    if m.group(5) is not None:
        return {"%s%d" % (k, i) for i in range(int(m.group(5)), int(m.group(6)) + 1)}
    return {"%s%d" % (k, int(m.group(4)))}

TRANS = ("v_exp_f32", "v_log_f32", "v_rcp_f32", "v_rsq_f32", "v_sqrt_f32", "v_sin_f32", "v_cos_f32")

class Ins:
    __slots__ = ("text", "mn", "ops", "mods", "rd", "wr", "kind", "tag", "dpp", "nslots", "cC", "store_data", "islds")
    def __init__(self, text, tag=None):
        self.text = text.strip()
        self.tag = tag
        t = self.text.split(";")[0].strip()
        p = t.split(None, 1)
        self.mn = p[0]
        rest = p[1] if len(p) > 1 else ""
        ops = []; depth = 0; cur = ""
        for ch in rest:
            if ch in "[(": depth += 1
            if ch in "])": depth -= 1
            if ch == "," and depth == 0:
                ops.append(cur.strip()); cur = ""
            else:
                cur += ch
        if cur.strip(): ops.append(cur.strip())
        mods = ""
        if ops:
            q = ops[-1].split(None, 1)
            if len(q) > 1 and not ops[-1].startswith("hwreg"):
                ops[-1] = q[0]; mods = q[1]
        self.ops = ops; self.mods = mods
        self.dpp = ("row_" in mods or "quad_perm" in mods or "_dpp" in self.mn)
        self.nslots = 1
        self.cC = set(); self.store_data = set(); self.islds = False
        mn = self.mn
        R = lambda i: regs_of(ops[i]) if i < len(ops) else set()
        allr = lambda a: set().union(*[R(i) for i in range(a, len(ops))]) if a < len(ops) else set()
        if mn.startswith("v_mfma"):
            self.kind = "mfma"; self.wr = R(0); self.rd = allr(1); self.cC = R(3)
        elif mn.startswith("v_"):
            self.kind = "valu"
            if mn.startswith("v_cmp"):
                self.wr = R(0); self.rd = allr(1)
            elif mn.startswith("v_permlane") and "swap" in mn:
                self.wr = R(0) | R(1); self.rd = R(0) | R(1)
            elif mn.startswith(("v_fmac", "v_dot2c", "v_pk_fmac")):
                self.wr = R(0); self.rd = allr(0)
            elif mn.startswith(("v_add_co", "v_sub_co", "v_addc_co")):
                self.wr = R(0) | R(1); self.rd = allr(2)
            else:
                self.wr = R(0); self.rd = allr(1)
                if mn.startswith("v_cndmask") and len(ops) == 3: self.rd |= {"vcc_lo", "vcc_hi"}
            if self.dpp and "bound_ctrl" not in mods and mn.startswith("v_mov"): self.rd |= R(0)
        elif mn.startswith("ds_"):
            self.kind = "ds"
            if mn.startswith(("ds_read", "ds_bpermute", "ds_swizzle")):
                self.wr = R(0); self.rd = allr(1)
            else:
                self.wr = set(); self.rd = allr(0)
        elif mn.startswith("buffer_") or mn.startswith("global_"):
            self.kind = "vmem"
            lds = re.search(r'\blds\b', mods) is not None or "_lds_" in mn
            self.islds = lds
            if mn in ("buffer_wbl2", "buffer_inv"):
                self.wr = set(); self.rd = set()
            elif lds:
                self.wr = set(); self.rd = allr(0) | {"m0"}
            elif "load" in mn:
                self.wr = R(0); self.rd = allr(1)
            elif mn.startswith("buffer_store"):
                self.wr = set(); self.rd = allr(0)
                if "x4" in mn or "x3" in mn: self.store_data = R(0)
            elif mn.startswith("global_store"):
                self.wr = set(); self.rd = allr(0)
                if "x4" in mn or "x3" in mn: self.store_data = R(1)
            else:
                raise ValueError("unhandled vmem " + self.text)
        elif mn.startswith("s_"):
            self.kind = "salu"
            if mn.startswith(("s_load", "s_memtime", "s_memrealtime")):
                self.kind = "smem"; self.wr = R(0); self.rd = allr(1)
            elif mn.startswith(("s_cmp", "s_bitcmp", "s_cbranch", "s_branch", "s_barrier", "s_waitcnt", "s_nop", "s_endpgm", "s_sleep", "s_setprio")):
                self.wr = set(); self.rd = allr(0) if mn.startswith(("s_cmp", "s_bitcmp")) else set()
                if mn == "s_nop": self.nslots = int(ops[0]) + 1
            elif "saveexec" in mn:
                self.wr = R(0) | {"exec_lo", "exec_hi"}; self.rd = allr(1) | {"exec_lo", "exec_hi"}
            else:
                self.wr = R(0); self.rd = allr(1)
        else:
            raise ValueError("unknown instr: " + self.text)

class Pseudo:
    def __init__(self, kind, arg=None):
        self.kind = kind; self.arg = arg

class Prog:
    def __init__(self):
        self.items = []
        self.uid = 0
        self.stats = {}
    def __call__(self, s, tag=None):
        for l in s.split("\n"):
            l = l.strip().lstrip("!")
            if not l or l.startswith((";", "+")): continue
            if l.endswith(":"):
                self.items.append(Pseudo("label", l[:-1]))
            elif l.startswith("."):
                self.items.append(Pseudo("raw", l))
            elif l.startswith("@wv "):
                self.items.append(Pseudo("wv", l[4:].strip()))
            elif l.startswith("@wr "):
                self.items.append(Pseudo("wr", set().union(*[regs_of(t) for t in l[4:].split()])))
            elif l.startswith("@seed "):
                self.items.append(Pseudo("seed", l[6:].split()))
            elif l.startswith("@wl "):
                self.items.append(Pseudo("wl", l[4:].strip()))
            else:
                t = tag
                if "@" in l:
                    l, t = l.rsplit("@", 1); t = t.strip()
                self.items.append(Ins(l, t))
    def new(self, p="L"):
        self.uid += 1
        return "%s%d" % (p, self.uid)
    def fresh(self):
        self.items.append(Pseudo("fresh"))
    def comment(self, s):
        self.items.append(Pseudo("raw", "; " + s))

    def finalize(self):
        out = []
        vm = []
        lg = []
        def count_after(lst, idx, pos):
            return sum(1 for (o, p) in lst[idx + 1:] if p < pos)
        def place_wait(kind, lst, idx):
            pos = len(out)
            tgt_pos = lst[idx][1]
            k = len(out) - 1; steps = 0
            while k >= 0 and steps < 3 and isinstance(out[k], Ins):
                if out[k].kind == "mfma":
                    if k + 1 > tgt_pos and k + 1 < len(out):
                        nxt = out[k + 1]
                        if nxt.kind in ("valu", "ds", "vmem"):
                            pos = k + 1
                        elif nxt.mn == "s_waitcnt":
                            pos = -(k + 1) - 1
                    break
                if out[k].mn in ("s_barrier",) or out[k].mn.startswith("s_cbranch"): break
                k -= 1; steps += 1
            merge = None
            if pos < 0:
                merge = -(pos + 1); pos = merge
            if kind == "lg" and any(o.kind == "smem" for (o, p) in lst if p < pos):
                n = 0
            else:
                n = count_after(lst, idx, pos)
            n = min(n, 63 if kind == "vm" else 15)
            name = "vmcnt" if kind == "vm" else "lgkmcnt"
            if merge is None and pos == len(out) and out and isinstance(out[-1], Ins) and out[-1].mn == "s_waitcnt":
                merge = len(out) - 1
            if merge is not None:
                w = out[merge]
                m = re.search(name + r'\((\d+)\)', w.text)
                if m:
                    n = min(n, int(m.group(1)))
                    txt = w.text.replace(m.group(0), "%s(%d)" % (name, n))
                else:
                    txt = w.text + " %s(%d)" % (name, n)
                out[merge] = Ins(txt)
            else:
                out.insert(pos, Ins("s_waitcnt %s(%d)" % (name, n)))
                for L in (vm, lg):
                    for i2, (o, p) in enumerate(L):
                        if p >= pos: L[i2] = (o, p + 1)
            before = [e for e in lst if e[1] < pos or (merge is None and e[1] < pos + 1 and e[1] < pos)]
            nb = len(before)
            del lst[:max(0, nb - n)]
        for it in self.items:
            if isinstance(it, Pseudo):
                if it.kind in ("label", "raw"):
                    out.append(it)
                elif it.kind == "fresh":
                    vm.clear(); lg.clear(); out.append(Pseudo("raw", "; --- fresh"))
                elif it.kind == "wr":
                    for kind, lst in (("vm", vm), ("lg", lg)):
                        idx = max([i for i, (o, p) in enumerate(lst) if o.wr & it.arg], default=-1)
                        if idx >= 0: place_wait(kind, lst, idx)
                elif it.kind == "seed":
                    for _ in range(int(it.arg[1])):
                        vm.append((Ins("buffer_inv", it.arg[0]), len(out) - 1))
                elif it.kind in ("wv", "wl"):
                    lst = vm if it.kind == "wv" else lg
                    tags = it.arg.split(",")
                    idx = max([i for i, (o, p) in enumerate(lst) if o.tag in tags], default=-1)
                    if idx >= 0: place_wait("vm" if it.kind == "wv" else "lg", lst, idx)
                continue
            ins = it
            touched = ins.rd | ins.wr
            if ins.mn == "s_waitcnt":
                m = re.search(r'vmcnt\((\d+)\)', ins.text)
                if m: del vm[:max(0, len(vm) - int(m.group(1)))]
                m = re.search(r'lgkmcnt\((\d+)\)', ins.text)
                if m: del lg[:max(0, len(lg) - int(m.group(1)))]
                out.append(ins); continue
            idx = max([i for i, (o, p) in enumerate(vm) if o.wr & (ins.wr if (o.tag or "").endswith("~") else touched) and not ((o.tag or "").endswith("~") and (ins.tag or "").endswith("~"))], default=-1)
            if (ins.tag or "").endswith("~"): idx = -1
            if idx >= 0: place_wait("vm", vm, idx)
            idx = max([i for i, (o, p) in enumerate(lg) if o.wr & touched], default=-1)
            if idx >= 0: place_wait("lg", lg, idx)
            if ins.kind == "vmem": vm.append((ins, len(out)))
            if ins.kind in ("ds", "smem"): lg.append((ins, len(out)))
            out.append(ins)
        pend = None
        for it in out:
            if isinstance(it, Pseudo): continue
            if it.mn.startswith("s_cbranch_vcc") or "vcc_lo" in it.rd: pend = None
            if "vcc_lo" in it.wr:
                assert pend is None, ("vcc overwritten", pend.text, it.text)
                pend = it
        res = []
        hist = []
        slot = 0
        nnop = 0
        for it in out:
            if isinstance(it, Pseudo):
                res.append(it.arg + (":" if it.kind == "label" else "")); continue
            need = 0
            for (p, ps) in reversed(hist):
                d = slot - ps - p.nslots
                if d >= 9: break
                need = max(need, hazard(p, it) - d)
            if need > 0:
                res.append("s_nop %d" % (need - 1)); slot += need; nnop += 1
            res.append(it.text)
            hist.append((it, slot)); slot += it.nslots
            if len(hist) > 16: hist.pop(0)
        self.stats = dict(nops=nnop, n=len(res))
        return res

def isv(s): return {r for r in s if r[0] in "va" and r[1:].isdigit()}
def iss(s): return {r for r in s if not (r[0] in "va" and r[1:].isdigit())}

def hazard(p, c):
    n = 0
    if p.kind == "valu":
        wv = isv(p.wr); ws = iss(p.wr)
        if c.kind == "mfma" and wv & c.rd: n = max(n, 2)
        if c.kind == "valu":
            if wv & c.rd:
                if c.mn.startswith("v_permlane") or c.dpp: n = max(n, 2)
                if c.mn.startswith(("v_readlane", "v_readfirstlane")): n = max(n, 1)
                if p.mn.startswith(TRANS) and not c.mn.startswith(TRANS): n = max(n, 1)
            if p.mn.startswith("v_dot") and wv & (c.rd | c.wr):
                same_acc = (c.mn == p.mn and not (wv & (regs_of(c.ops[1]) | regs_of(c.ops[2]))))
                if not same_acc: n = max(n, 3)
            if ws & c.rd: n = max(n, 2)
        if p.mn.startswith("v_dot") and c.kind in ("ds", "vmem", "mfma") and wv & (c.rd | c.wr): n = max(n, 3)
        if c.kind == "vmem" and ws & c.rd: n = max(n, 5)
    elif p.kind == "mfma":
        D = p.wr
        if c.kind == "mfma":
            ab = regs_of(c.ops[1]) | regs_of(c.ops[2])
            if D & ab: n = max(n, 8)
            if D & c.cC and D != c.cC: n = max(n, 6)
            if D & c.wr and not (D & c.cC): n = max(n, 6)
        elif c.kind in ("valu", "ds", "vmem"):
            if D & (c.rd | c.wr): n = max(n, 8)
            if c.kind == "valu" and p.cC & c.wr: n = max(n, 3)
    elif p.kind == "vmem":
        if p.store_data and c.kind == "valu" and p.store_data & c.wr: n = max(n, 2)
        elif p.store_data and p.store_data & c.wr: n = max(n, 1)
    elif p.kind == "salu":
        if "m0" in p.wr and c.kind == "vmem" and c.islds: n = max(n, 1)
    return n

EXCL = [0]
def lds_cost(t):
    if not t.startswith("ds_"): return 0
    if t.startswith("ds_write_b128"): return 52
    if t.startswith(("ds_read_b128", "ds_write_b32", "ds_read2")): return 16
    return 8

class Weaver:
    def __init__(self, vm_space=4, cap=2, no_s=None):
        self.no_s = no_s or (lambda g: False)
        self.debt = 0; self.lds_max = 24; self.excl = EXCL[0]
        self.g = 0; self.last_vm = -100; self.vm_space = vm_space; self.cap = cap
    def run(self, mf, streams, flush=()):
        out = []
        free = lambda t: (t.startswith("@") or t.endswith(":")) and "\n" not in t
        isvm = lambda t: t.startswith(("buffer_", "global_"))
        for g, m in enumerate(mf):
            out.append(m)
            nv = 0; used_s = self.no_s(self.g + g); pend = None
            self.debt = max(0, self.debt - 16)
            while True:
                placed = False
                for s in streams:
                    if pend and s is pend[0]: continue
                    while s and s[0][0] <= g and (free(s[0][1]) or s[0][1].startswith("+")):
                        t = s.pop(0)[1]
                        if t.startswith("+"):
                            if s: s[0] = (max(s[0][0], g + int(t[1:])), s[0][1])
                        else: out.append(t)
                if not used_s and nv == 0:
                    for s in streams:
                        if not s or s[0][0] > g: continue
                        t = s[0][1]
                        if "\n" in t:
                            if self.g + g - self.last_vm < self.vm_space and t.count("\n") == 1: continue
                            if t.count("\n") > 1:
                                out.append(s.pop(0)[1]); self.last_vm = self.g + g
                                used_s = True; nv = 2; placed = True; break
                            a, b = t.split("\n"); s.pop(0)
                            out.append(a); pend = (s, b); self.last_vm = self.g + g
                            used_s = True; nv = self.cap if self.excl else 1; placed = True; break
                        if t.startswith("s_"):
                            out.append(s.pop(0)[1]); used_s = True; placed = True; break
                    if placed: continue
                for s in streams:
                    if not s or s[0][0] > g: continue
                    if pend and s is pend[0]: continue
                    t = s[0][1]
                    if "\n" in t: continue
                    if isvm(t) and self.g + g - self.last_vm < self.vm_space: continue
                    w = 2 if t.startswith("v_permlane") else 1
                    if self.excl and t.lstrip("!").startswith("buffer_") and ("x4" in t or self.excl > 1): w = self.cap
                    lc = lds_cost(t)
                    if lc and self.debt > 0 and self.debt + min(lc, 16) > self.lds_max: continue
                    if nv + w <= self.cap or nv == 0:
                        self.debt += lc
                        if isvm(t) or t.startswith("!"): self.last_vm = self.g + g
                        out.append(s.pop(0)[1]); nv += w; placed = True; break
                if not placed: break
            if pend: out.append(pend[1])
        self.g += len(mf)
        for k in flush:
            out += [t for (_, t) in streams[k] if not t.startswith("+")]; streams[k].clear()
        for s in streams:
            for i2 in range(len(s)): s[i2] = (max(0, s[i2][0] - len(mf)), s[i2][1])
        return out

def weave(mf, streams, cap=2, vm_space=0):
    st = [list(s) for s in streams]
    return Weaver(vm_space, cap).run(mf, st, flush=range(len(st)))
```
